```python
import torch

def _softmax(x, axis=-1):
    return torch.softmax(x, dim=axis)
def _gelu(x):
    return torch.nn.functional.gelu(x, approximate="tanh")
def _silu(x):
    return torch.nn.functional.silu(x)
def _sigmoid(x):
    return torch.sigmoid(x)
def _layernorm(x, axis=-1, eps=1e-5):
    m = x.mean(dim=axis, keepdim=True)
    v = x.var(dim=axis, keepdim=True, unbiased=False)
    return (x - m) / torch.sqrt(v + eps)
def _scatter_add(tgt, idx, src, axis=0):
    return tgt.clone().index_add_(axis, idx, src)
def _segment_sum(src, seg, n):
    out = torch.zeros((n,) + src.shape[1:], dtype=src.dtype)
    return out.index_add_(0, seg, src)
def _pad(x, pw):
    flat = tuple(v for pair in reversed(pw) for v in pair)
    return torch.nn.functional.pad(x, flat)

kernel_name = 'interleave_layers__linear_kernel_hedgehog__sliding_local_dilated__prompt'

def setup_inputs():

    _w = (lambda a: (lambda t: t.to(torch.bfloat16) if t.is_floating_point() else t)(torch.as_tensor(a)))
    def _A_setup():
        B, S, D, H = 1, 2048, 512, 32
        Dh = D // H
        return {
            "x": _w((lambda *s: torch.randn(*s, dtype=torch.bfloat16) * 0.05)(B, S, D)),
            "wqkv": _w((lambda *s: torch.randn(*s, dtype=torch.bfloat16) * 0.4)(D, 3 * D)),
            "w_phi": _w((lambda *s: torch.randn(*s, dtype=torch.bfloat16) * 0.4)(H, Dh, Dh) * (Dh ** -0.5)),
            "wo": _w((lambda *s: torch.randn(*s, dtype=torch.bfloat16) * 0.05)(D, D)),
        }
    _A_in = _A_setup()

    def _B_setup():
        B, S, D = 1, 2048, 512
        return {
            "x": _w((lambda *s: torch.randn(*s, dtype=torch.bfloat16) * 0.05)(B, S, D)),
            "wqkv": _w((lambda *s: torch.randn(*s, dtype=torch.bfloat16) * 0.1)(D, 3 * D)),
            "wo": _w((lambda *s: torch.randn(*s, dtype=torch.bfloat16) * 0.05)(D, D)),
        }
    _B_in = _B_setup()

    return {
        "A_x": _A_in["x"],
        "A_wqkv": _A_in["wqkv"],
        "A_w_phi": _A_in["w_phi"],
        "A_wo": _A_in["wo"],
        "B_x": _B_in["x"],
        "B_wqkv": _B_in["wqkv"],
        "B_wo": _B_in["wo"],
    }

def reference(A_x, A_wqkv, A_w_phi, A_wo, B_x, B_wqkv, B_wo):
    def _A_ref(x, wqkv, w_phi, wo):
        B, S, D = x.shape
        H = 32; Dh = D // H
        qkv = (lambda x, *d: x.permute(*d))((x @ wqkv).reshape(B, S, 3, H, Dh), 2, 0, 3, 1, 4)
        q, k, v = qkv[0], qkv[1], qkv[2]
        pq = torch.einsum("bhsd,hdf->bhsf", q, w_phi)
        pk = torch.einsum("bhsd,hdf->bhsf", k, w_phi)
        phi_q = torch.concatenate([_softmax(pq, axis=-1), _softmax(-pq, axis=-1)], axis=-1)
        phi_k = torch.concatenate([_softmax(pk, axis=-1), _softmax(-pk, axis=-1)], axis=-1)
        kv = torch.einsum("bhsf,bhsd->bhfd", phi_k, v)
        z  = torch.einsum("bhsf->bhf", phi_k)
        num = torch.einsum("bhqf,bhfd->bhqd", phi_q, kv)
        den = torch.einsum("bhqf,bhf->bhq", phi_q, z)[..., None] + 1e-6
        o = num / den
        return (lambda x, *d: x.permute(*d))(o, 0, 2, 1, 3).reshape(B, S, D) @ wo

    def _B_ref(x, wqkv, wo):
        B, S, D = x.shape
        H = 32; Dh = D // H
        W, dil = 8, 2
        qkv = (lambda x, *d: x.permute(*d))((x @ wqkv).reshape(B, S, 3, H, Dh), 2, 0, 3, 1, 4)
        q, k, v = qkv[0], qkv[1], qkv[2]
        scale = Dh ** -0.5
        pos = torch.arange(S)
        off = torch.arange(W) * dil
        idx = pos[:, None] - off[None, :]
        mask = idx >= 0
        idx_c = torch.where(mask, idx, 0).reshape(-1)
        kg = k[:, :, idx_c, :].reshape(B, H, S, W, Dh)
        vg = v[:, :, idx_c, :].reshape(B, H, S, W, Dh)
        logits = torch.einsum("bhsd,bhswd->bhsw", q, kg) * scale
        logits = torch.where(mask[None, None, :, :], logits, -1e9)
        attn = _softmax(logits, axis=-1)
        o = torch.einsum("bhsw,bhswd->bhsd", attn, vg)
        return (lambda x, *d: x.permute(*d))(o, 0, 2, 1, 3).reshape(B, S, D) @ wo

    x = A_x
    x = x + _A_ref(_layernorm(x, axis=-1), A_wqkv, A_w_phi, A_wo)
    x = x + _B_ref(_layernorm(x, axis=-1), B_wqkv, B_wo)
    x = x + _A_ref(_layernorm(x, axis=-1), A_wqkv, A_w_phi, A_wo)
    x = x + _B_ref(_layernorm(x, axis=-1), B_wqkv, B_wo)
    return x
```

```python
import re

TRANS = ("v_exp_f32", "v_log_f32", "v_rcp_f32", "v_rsq_f32", "v_sqrt_f32", "v_sin_f32", "v_cos_f32", "v_rcp_iflag_f32")

def parse_reg(tok):
    tok = tok.strip()
    tok = tok.lstrip("-")
    m = re.match(r"^(?:abs\()?([vsa])(\d+)\)?$", tok)
    if m: return {(m.group(1), int(m.group(2)))}
    m = re.match(r"^(?:abs\()?([vsa])\[(\d+):(\d+)\]\)?$", tok)
    if m: return {(m.group(1), i) for i in range(int(m.group(2)), int(m.group(3)) + 1)}
    if tok in ("vcc", "vcc_lo", "vcc_hi"): return {("vcc", 0)}
    if tok in ("exec", "exec_lo", "exec_hi"): return {("exec", 0)}
    if tok == "m0": return {("m0", 0)}
    return set()

def mfma_passes(mn):
    if "32x32x16" in mn or "32x32x8" in mn: return 8
    if "16x16x32" in mn or "16x16x16" in mn: return 4
    if mn == "v_mfma_f32_16x16x4_f32": return 8
    if mn == "v_mfma_f32_32x32x2_f32": return 16
    raise ValueError(mn)

class Ins:
    __slots__ = ("text", "mn", "cls", "rd", "wr", "ops", "passes", "sgemm", "srcc", "srcab", "states", "dstkey", "wide_store_data", "is_dpp", "opsel")
    def __init__(self, text):
        self.text = text
        body = text.split(";")[0].strip()
        parts = body.split(None, 1)
        mn = parts[0]
        self.mn = mn
        rest = parts[1] if len(parts) > 1 else ""
        ops = [o.strip() for o in re.split(r",(?![^\[]*\])", rest)] if rest else []
        mods = []
        if ops:
            lastparts = ops[-1].split()
            if len(lastparts) > 1:
                ops[-1] = lastparts[0]; mods = lastparts[1:]
        self.ops = ops
        self.rd = set(); self.wr = set(); self.passes = 0; self.sgemm = False
        self.srcc = set(); self.srcab = set(); self.states = 1; self.dstkey = None
        self.wide_store_data = set(); self.is_dpp = any(m.startswith(("row_", "quad_perm", "wave_", "row_bcast")) for m in mods)
        self.opsel = any(m.startswith(("op_sel", "dst_sel")) for m in mods)
        R = [parse_reg(o) for o in ops]
        if mn == "s_nop":
            self.cls = "nop"; self.states = int(ops[0], 0) + 1
        elif mn.startswith("v_mfma"):
            self.cls = "mfma"; self.passes = mfma_passes(mn); self.sgemm = mn.endswith("_f32") and "bf16" not in mn
            self.wr = R[0]; self.srcab = R[1] | R[2]; self.srcc = R[3]; self.rd = self.srcab | self.srcc
            self.dstkey = (ops[0], self.passes)
        elif mn.startswith("v_"):
            self.cls = "valu"
            if mn.startswith("v_cmp"):
                self.wr = R[0]; self.rd = set().union(*R[1:])
                if mn.startswith("v_cmpx"): self.wr = self.wr | {("exec", 0)}
            elif "permlane" in mn and "swap" in mn:
                self.wr = R[0] | R[1]; self.rd = R[0] | R[1]
            elif "_co_" in mn or mn.startswith("v_div_scale") or mn.startswith("v_mad_u64"):
                self.wr = R[0] | R[1]; self.rd = set().union(*R[2:])
            else:
                self.wr = R[0]; self.rd = set().union(*R[1:]) if len(R) > 1 else set()
                if mn.startswith(("v_fmac", "v_dot2c", "v_pk_fmac", "v_writelane")) or self.is_dpp or "d16" in mn: self.rd = self.rd | R[0]
        elif mn.startswith("ds_"):
            self.cls = "ds"
            if mn.startswith(("ds_read", "ds_bpermute", "ds_permute", "ds_swizzle")):
                self.wr = R[0]; self.rd = set().union(*R[1:])
            else:
                self.rd = set().union(*R)
        elif mn.startswith(("buffer_", "global_")):
            self.cls = "vmem"
            is_lds = "lds" in mods or "_lds_" in mn
            if "load" in mn and not is_lds:
                self.wr = R[0]; self.rd = set().union(*R[1:])
                if "d16" in mn: self.rd = self.rd | R[0]
            elif is_lds:
                self.rd = set().union(*R) | {("m0", 0)}
            else:
                self.rd = set().union(*R) if R else set()
                if "atomic" in mn and "sc0" in mods: self.wr = R[0]
                if "x4" in mn or "x3" in mn:
                    self.wide_store_data = R[0] if mn.startswith("buffer_") else R[1]
        elif mn.startswith("s_"):
            self.cls = "salu"
            if mn.startswith(("s_cmp", "s_cbranch", "s_branch", "s_waitcnt", "s_barrier", "s_endpgm", "s_sleep", "s_setprio", "s_setpc")):
                self.rd = set().union(*R) if R else set()
            else:
                self.wr = R[0] if R else set(); self.rd = set().union(*R[1:]) if len(R) > 1 else set()
                if "saveexec" in mn: self.wr = self.wr | {("exec", 0)}
        else:
            raise ValueError("unknown instruction: " + text)

def vonly(s): return {r for r in s if r[0] in ("v", "a")}
def sonly(s): return {r for r in s if r[0] in ("s", "vcc")}

def required(p, c):
    need = 0
    if p.cls == "valu":
        pv = vonly(p.wr); ps = sonly(p.wr)
        isdot = p.mn.startswith("v_dot")
        if c.cls == "mfma" and pv & c.rd: need = max(need, 2)
        if c.cls == "valu":
            if p.mn in TRANS and c.mn not in TRANS and pv & (c.rd): need = max(need, 1)
            if c.is_dpp and pv & c.rd: need = max(need, 2)
            if "permlane" in c.mn and pv & c.rd: need = max(need, 2)
            if c.mn.startswith(("v_readlane", "v_readfirstlane")) and pv & c.rd: need = max(need, 1)
            if ps & c.rd:
                need = max(need, 4 if c.mn.startswith(("v_readlane", "v_writelane", "v_div_fmas")) else 2)
            if p.opsel and pv & (c.rd | c.wr): need = max(need, 1)
            if isdot and pv & (c.rd | c.wr):
                if c.mn == p.mn and not (pv & (parse_reg(c.ops[1]) | parse_reg(c.ops[2]))): pass
                else: need = max(need, 3)
        if isdot and c.cls in ("vmem", "ds", "mfma") and pv & c.rd: need = max(need, 3)
        if c.cls == "vmem" and ps & c.rd: need = max(need, 5)
        if c.cls == "salu" and ps & c.rd: need = max(need, 1)
        if ("exec", 0) in p.wr: need = max(need, 5)
    elif p.cls == "mfma":
        idx = {2: 0, 4: 1, 8: 2, 16: 3}[p.passes]
        if c.cls == "mfma":
            if p.wr & c.srcab:
                need = max(need, ([4, 6, 10, 18] if p.sgemm else [5, 8, 12, 20])[idx])
            if p.wr & c.srcc:
                same = (c.ops[3] == p.ops[0]) and c.passes == p.passes and c.sgemm == p.sgemm
                if same: need = max(need, [2, 0, 0, 0][idx])
                elif p.sgemm and not c.sgemm: pass
                elif p.sgemm: need = max(need, [2, 4, 8, 16][idx])
                else: need = max(need, [4, 6, 10, 18][idx])
            if p.wr & c.wr and not (p.wr & c.srcc):
                need = max(need, [5, 8, 12, 20][idx])
        else:
            if p.wr & (c.rd | c.wr):
                need = max(need, ([4, 6, 10, 18] if p.sgemm else [5, 8, 12, 20])[idx])
            if c.cls in ("valu", "ds", "vmem") and (p.srcc & c.wr) and not p.sgemm:
                need = max(need, [1, 3, 7, 15][idx])
    elif p.cls == "salu":
        if ("m0", 0) in p.wr and c.cls == "vmem" and ("m0", 0) in c.rd: need = max(need, 1)
    elif p.cls == "vmem":
        if p.wide_store_data & c.wr: need = max(need, 2)
    return need

class Asm:
    def __init__(self):
        self.lines = []
        self.hist = []
        self.nnop = 0
    def raw(self, text):
        self.lines.append(text)
    def label(self, name):
        self.lines.append(name + ":")
    def __call__(self, text):
        for ln in text.strip().split("\n"):
            ln = ln.strip()
            if not ln: continue
            if ln.startswith(";"):
                self.lines.append("  " + ln); continue
            if ln.endswith(":"):
                self.lines.append(ln); continue
            self.emit(ln)
    def emit(self, text):
        ins = Ins(text)
        dist = 0; need_pad = 0
        for p in reversed(self.hist):
            r = required(p, ins)
            if r > dist: need_pad = max(need_pad, r - dist)
            dist += p.states
            if dist > 24: break
        while need_pad > 0:
            n = min(need_pad, 16)
            nop = Ins(f"s_nop {n-1}")
            self.lines.append(f"  s_nop {n-1}")
            self.hist.append(nop); self.nnop += 1
            need_pad -= n
        self.lines.append("  " + text)
        self.hist.append(ins)
        if len(self.hist) > 40: self.hist = self.hist[-40:]
    def fence(self):
        self.emit("s_nop 15"); self.emit("s_nop 3")
    def text(self):
        return "\n".join(self.lines) + "\n"

def kernel_desc(name, vgpr, sgpr=102):
    acc = (vgpr + 3) // 4 * 4
    return f""".p2align 6
.amdhsa_kernel {name}
  .amdhsa_next_free_vgpr {vgpr}
  .amdhsa_next_free_sgpr {sgpr}
  .amdhsa_accum_offset {acc}
  .amdhsa_group_segment_fixed_size 0
  .amdhsa_kernarg_size 80
  .amdhsa_user_sgpr_count 2
  .amdhsa_user_sgpr_kernarg_segment_ptr 1
  .amdhsa_system_sgpr_workgroup_id_x 1
.end_amdhsa_kernel
"""
```

```python
from asmlib import *
from layout import *

def gen_k0(a, name="prep_kernel"):
    a.raw(f".globl {name}\n.p2align 8\n.type {name},@function\n{name}:")
    a(f"""
    s_cmp_ge_u32 s2, 256
    s_cbranch_scc1 L_k0_end
    s_load_dwordx4 s[16:19], s[0:1], 0      ; x, wqkvA
    s_load_dwordx2 s[20:21], s[0:1], 24     ; woA
    s_load_dwordx4 s[24:27], s[0:1], 40
    s_load_dwordx2 s[28:29], s[0:1], 72     ; ws
    v_lshrrev_b32 v1, 6, v0
    v_and_b32 v2, 63, v0                    ; lane
    v_readfirstlane_b32 s30, v1             ; wave
    v_lshlrev_b32 v3, 4, v2                 ; lane*16
    v_lshrrev_b32 v4, 4, v2                 ; kg
    v_and_b32 v5, 15, v2                    ; o / i
    v_mov_b32 v6, 1.0
    v_mov_b32 v7, 0x3f803f80
    s_waitcnt lgkmcnt(0)
    s_mov_b32 s4, s28
    s_mov_b32 s5, s29
    s_mov_b32 s6, {WS_SIZE}
    s_mov_b32 s7, 0x20000
    s_cmp_ge_u32 s30, 2
    s_cbranch_scc1 L_k0_x
    """)
    a(f"""
    s_lshl_b32 s31, s2, 1
    s_add_u32 s31, s31, s30                 ; task
    s_lshr_b32 s32, s31, 5                  ; ks
    s_and_b32 s33, s31, 31                  ; slot
    s_mov_b32 s11, 0x20000
    s_cmp_ge_u32 s33, 24
    s_cbranch_scc1 L_k0_wo
    ; ---- wqkv ----
    s_cmp_ge_u32 s33, 12
    s_cselect_b32 s8, s24, s18
    s_cselect_b32 s9, s25, s19
    s_cselect_b32 s34, 12, 0
    s_cselect_b32 s35, {WQ_B}, {WQ_A}
    s_cselect_b32 s44, 98304, 0
    s_sub_u32 s33, s33, s34                 ; nb 0..11
    s_add_u32 s44, s44, {CSP}
    s_mov_b32 s10, 0x180000
    s_mov_b32 s36, 3072                     ; pitch
    s_and_b32 s37, s33, 3
    s_mul_i32 s37, s37, {4*98304}
    s_add_u32 s35, s35, s37
    s_mul_i32 s37, s32, 6144
    s_add_u32 s35, s35, s37
    s_add_u32 s44, s44, s37
    s_lshr_b32 s37, s33, 2
    s_lshl_b32 s37, s37, 11
    s_add_u32 s35, s35, s37
    s_lshl_b32 s37, s33, 9
    s_add_u32 s44, s44, s37
    v_lshrrev_b32 v8, 2, v5
    v_mul_u32_u24 v8, 98304, v8
    v_bfe_u32 v9, v5, 1, 1
    v_lshlrev_b32 v9, 10, v9
    v_add_u32 v8, v8, v9
    s_mov_b32 s45, 1
    s_branch L_k0_wcommon
L_k0_wo:
    s_cmp_ge_u32 s33, 28
    s_cselect_b32 s8, s26, s20
    s_cselect_b32 s9, s27, s21
    s_cselect_b32 s34, 28, 24
    s_cselect_b32 s35, {WO_B-WO_A}, 0
    s_sub_u32 s33, s33, s34                 ; nb 0..3
    s_add_u32 s35, s35, {WO_A}
    s_mov_b32 s10, 0x80000
    s_mov_b32 s36, 1024
    s_lshl_b32 s37, s33, 17
    s_add_u32 s35, s35, s37
    s_lshl_b32 s37, s32, 12
    s_add_u32 s35, s35, s37
    v_lshrrev_b32 v8, 3, v5
    v_lshlrev_b32 v8, 16, v8
    v_bfe_u32 v9, v5, 1, 2
    v_lshlrev_b32 v9, 10, v9
    v_add_u32 v8, v8, v9
    s_mov_b32 s45, 0
L_k0_wcommon:
    v_lshlrev_b32 v9, 8, v4
    v_add_u32 v8, v8, v9
    v_and_b32 v9, 1, v5
    v_lshlrev_b32 v9, 7, v9
    v_add_u32 v8, v8, v9
    s_lshl_b32 s37, s36, 2
    v_mul_lo_u32 v9, s37, v4
    v_lshlrev_b32 v10, 4, v5
    v_add_u32 v9, v9, v10
    s_lshl_b32 s37, s36, 5
    s_mul_i32 s38, s32, s37
    s_lshl_b32 s37, s33, 8
    s_add_u32 s38, s38, s37
    s_lshl_b32 s39, s36, 4                  ; 16*pitch
    """)
    for e in range(8):
        if e == 4:
            a("s_add_u32 s40, s38, s39")
        elif e == 0:
            a("s_mov_b32 s40, s38")
        else:
            a("s_add_u32 s40, s40, s36")
        a(f"buffer_load_dwordx4 v[{16+4*e}:{19+4*e}], v9, s[8:11], s40 offen")
    a("""
    v_mov_b32 v11, 0x05040100
    v_mov_b32 v12, 0x07060302
    s_waitcnt vmcnt(0)
    """)
    for j in range(8):
        for p in range(4):
            a(f"v_perm_b32 v{48+4*j+p}, v{16+4*(2*p+1)+(j>>1)}, v{16+4*(2*p)+(j>>1)}, v{11+(j&1)}")
        a(f"buffer_store_dwordx4 v[{48+4*j}:{51+4*j}], v8, s[4:7], s35 offen offset:{j*16}")
    a("""
    s_cmp_eq_u32 s45, 0
    s_cbranch_scc1 L_k0_end
    """)
    for j in range(8):
        a(f"v_dot2_f32_bf16 v{16+j}, v{48+4*j}, v7, 0")
    for p in range(1, 4):
        for j in range(8):
            a(f"v_dot2_f32_bf16 v{16+j}, v{48+4*j+p}, v7, v{16+j}")
    for j in range(8):
        a(f"v_mfma_f32_16x16x4_f32 v[{80+4*j}:{83+4*j}], v6, v{16+j}, 0")
    for j in range(8):
        a(f"v_mov_b32 v{24+j}, v{80+4*j}")
    a("""
    v_lshlrev_b32 v9, 5, v5
    s_mov_b64 exec, 0xffff
    buffer_store_dwordx4 v[24:27], v9, s[4:7], s44 offen
    buffer_store_dwordx4 v[28:31], v9, s[4:7], s44 offen offset:16
    s_endpgm
    """)
    a.fence()
    a(f"""
L_k0_x:
    s_mov_b32 s8, s16
    s_mov_b32 s9, s17
    s_mov_b32 s10, 0x200000
    s_mov_b32 s11, 0x20000
    s_and_b32 s31, s2, 7                    ; xcd
    s_lshr_b32 s32, s2, 3                   ; j
    s_lshl_b32 s32, s32, 1
    s_add_u32 s32, s32, s30
    s_sub_u32 s32, s32, 2                   ; u 0..63
    s_lshl_b32 s33, s31, 4
    s_lshr_b32 s34, s32, 2
    s_add_u32 s33, s33, s34                 ; t
    s_and_b32 s34, s32, 3
    s_lshr_b32 s35, s33, 1
    s_lshl_b32 s35, s35, 5
    s_and_b32 s36, s33, 1
    s_add_u32 s35, s35, s36
    s_lshl_b32 s35, s35, 10
    s_lshl_b32 s36, s34, 8
    s_add_u32 s35, s35, s36
    v_lshlrev_b32 v8, 11, v5
    v_lshlrev_b32 v9, 3, v4
    v_add_u32 v8, v8, v9
    """)
    for q in range(4):
        a(f"buffer_load_dwordx2 v[{16+4*q}:{17+4*q}], v8, s[8:11], s35 offen offset:{q*64}")
        a(f"buffer_load_dwordx2 v[{18+4*q}:{19+4*q}], v8, s[8:11], s35 offen offset:{q*64+32}")
    a(f"""
    v_mov_b32 v40, 0
    v_mov_b32 v41, 0
    v_mov_b32 v42, 0
    v_mov_b32 v43, 0
    s_lshl_b32 s36, s2, 10
    s_add_u32 s36, s36, {ZB}
    s_cmp_eq_u32 s30, 2
    s_cbranch_scc0 L_k0_nozero
    buffer_store_dwordx4 v[40:43], v3, s[4:7], s36 offen
L_k0_nozero:
    s_lshl_b32 s36, s33, 14
    s_lshl_b32 s37, s34, 12
    s_add_u32 s36, s36, s37
    s_add_u32 s36, s36, {XF}
    s_lshl_b32 s37, s33, 11
    s_lshl_b32 s38, s34, 9
    s_add_u32 s37, s37, s38
    s_add_u32 s37, s37, {ST}
    s_waitcnt vmcnt(0)
    """)
    for q in range(4):
        a(f"buffer_store_dwordx4 v[{16+4*q}:{19+4*q}], v3, s[4:7], s36 offen offset:{q*1024}")
    for q in range(4):
        a(f"v_dot2_f32_bf16 v{48+2*q}, v{16+4*q}, v7, 0")
        a(f"v_dot2_f32_bf16 v{49+2*q}, v{16+4*q}, v{16+4*q}, 0")
    for p in range(1, 4):
        for q in range(4):
            a(f"v_dot2_f32_bf16 v{48+2*q}, v{16+4*q+p}, v7, v{48+2*q}")
            a(f"v_dot2_f32_bf16 v{49+2*q}, v{16+4*q+p}, v{16+4*q+p}, v{49+2*q}")
    for i in range(8):
        a(f"v_mfma_f32_16x16x4_f32 v[{80+4*i}:{83+4*i}], v6, v{48+i}, 0")
    for i in range(8):
        a(f"v_mov_b32 v{56+i}, v{80+4*i}")
    a("""
    s_mov_b64 exec, 0xffff
    buffer_store_dwordx4 v[56:59], v3, s[4:7], s37 offen
    buffer_store_dwordx4 v[60:63], v3, s[4:7], s37 offen offset:256
L_k0_end:
    s_endpgm
    """)

if __name__ == "__main__":
    a = Asm()
    a.raw("; @launch kernel=prep_kernel grid=(256,1,1) block=(256,1,1) lds=0")
    a.raw('.amdgcn_target "amdgcn-amd-amdhsa--gfx950"\n.text')
    gen_k0(a)
    a.raw('.section .rodata,"a"')
    a.raw(kernel_desc("prep_kernel", 112))
    open("k0.s", "w").write(a.text())
```

```python
WQ_A = 0x000000
WQ_B = 0x180000
WO_A = 0x300000
WO_B = 0x380000
XF   = 0x400000
OF   = 0xC00000
ST   = 0x1400000
CSP  = 0x1500000
ZB   = 0x1540000
KV   = ZB
KVSZ = 0x12000
CNT  = ZB + 2*KVSZ
CNT_X  = CNT
CNT_O  = CNT + 512*64
CNT_KV = CNT + (512+1024)*64
WS_SIZE = 0x4000000
```

```python
from asmlib import *
from layout import *
import sys

LOG2E = 0x3fb8aa3b
LOG2E_Q = 0x3eb8aa3b
LDS_WO = 98304

vL16, vLdsB, vLdsC, vZero, vOne, vOnef, vLane = 1, 2, 3, 4, 5, 6, 7
vId = 8
vPhi = 10
vOnes = 14
vCsA = 16
vCsB = 34
vRes = 52
vBias = 56
vX = 64
vAcc = 128
vW = 152
vT = 200
vX32, vX48, vRowB, vSt, vKvL = 244, 245, 246, 247, 248
vM, vR = 249, 250
vMv = 236
vRv = 240
vHalo = 251
NR = 12

class VM:
    def __init__(self, a): self.a = a; self.q = []
    def issue(self, tag): self.q.append(tag)
    def wait(self, tag):
        if tag not in self.q: return
        i = self.q.index(tag)
        n = len(self.q) - 1 - i
        self.a(f"s_waitcnt vmcnt({n})")
        self.q = self.q[i+1:]
    def wait_all(self):
        self.a("s_waitcnt vmcnt(0)"); self.q = []
    def reset(self): self.q = []

def interleave(*streams):
    out = []
    n = max(len(s) for s in streams)
    for i in range(n):
        for s in streams:
            if i < len(s): out.append(s[i])
    return out

class KM:
    def __init__(self, a, stop=None):
        self.a = a; self.vm = VM(a); self.uid = 0; self.stop = stop
    def lab(self, p):
        self.uid += 1; return f"L_{p}_{self.uid}"
    def poll(self, sreg, target):
        a = self.a; L = self.lab("poll"); D = self.lab("pd")
        a(f"""
        s_mov_b32 s56, 0
{L}:
        s_add_u32 s56, s56, 1
        s_cmp_gt_u32 s56, 0x40000
        s_cbranch_scc1 {D}
        buffer_load_dword v255, v{vZero}, s[4:7], {sreg} offen sc1
        s_waitcnt vmcnt(0)
        v_readfirstlane_b32 s53, v255
        s_cmp_ge_u32 s53, {target}
        s_cbranch_scc1 {D}
        s_sleep 1
        s_branch {L}
{D}:
        """)
        self.vm.reset()
    def dump(self, regs, slot):
        if not getattr(self, "dbg", False): return
        a = self.a
        a(f"s_lshl_b32 s57, s2, 3\ns_add_u32 s57, s57, s32\ns_lshl_b32 s57, s57, 14\ns_add_u32 s57, s57, 0x1800000\nv_lshlrev_b32 v254, 2, v{vLane}")
        for i, r in enumerate(regs):
            a(f"s_add_u32 s58, s57, {(slot+i)*256}\nbuffer_store_dword v{r}, v254, s[4:7], s58 offen")
        a("s_waitcnt vmcnt(0)")
    def signal(self, sreg):
        self.vm.wait_all()
        self.a(f"""
        s_mov_b64 exec, 1
        buffer_atomic_add v{vOne}, v{vZero}, s[4:7], {sreg} offen sc1
        s_mov_b64 exec, -1
        """)
        self.vm.issue("sig")
    def dma_w(self, sbase, nper, ldsbase):
        a = self.a
        a(f"s_mul_i32 s53, s32, {nper*1024}")
        a(f"s_add_u32 s52, {sbase}, s53")
        a(f"s_add_u32 s53, s53, {ldsbase}")
        for g in range(nper // 4):
            a(f"s_mov_b32 m0, s53")
            for i in range(4):
                a(f"buffer_load_dwordx4 v{vL16}, s[4:7], s52 offen offset:{i*1024} lds")
                self.vm.issue("dma")
            if g != nper // 4 - 1:
                a("s_add_u32 s52, s52, 4096\ns_add_u32 s53, s53, 4096")
    def mainloop(self, tiles, nks, wstride, xreg, addr_of, xtag=None, pre=None):
        a = self.a
        seq = [(ks, tl) for ks in range(nks) for tl in tiles]
        D = 8
        issued = 0
        def rd(i):
            ks, (nt, acc, tr) = seq[i]
            vb, off = addr_of(ks, nt)
            r = vW + 4*(i % NR)
            a(f"ds_read_b128 v[{r}:{r+3}], v{vb} offset:{off}")
        for i in range(len(seq)):
            while issued < min(len(seq), i + D):
                rd(issued); issued += 1
            ks, (nt, acc, tr) = seq[i]
            if xtag is not None and (i % len(tiles)) == 0: self.vm.wait((xtag, ks))
            a(f"s_waitcnt lgkmcnt({issued - i - 1})")
            r = vW + 4*(i % NR); x = xreg(ks)
            c = f"v[{acc}:{acc+3}]" if ks > 0 else "0"
            if tr: a(f"v_mfma_f32_16x16x32_bf16 v[{acc}:{acc+3}], v[{r}:{r+3}], v[{x}:{x+3}], {c}")
            else:  a(f"v_mfma_f32_16x16x32_bf16 v[{acc}:{acc+3}], v[{x}:{x+3}], v[{r}:{r+3}], {c}")
    def wq_addr(self, ks, nt):
        off = (ks*6 + nt)*1024
        return (vL16, off) if off < 49152 else (vLdsB, off - 49152)
    def stats(self, ld, vm_, vr_, t):
        a = self.a
        a(f"""
        v_add_f32 v{ld}, v{ld}, v{ld+2}
        v_add_f32 v{ld+1}, v{ld+1}, v{ld+3}
        v_add_f32 v{ld+4}, v{ld+4}, v{ld+6}
        v_add_f32 v{ld+5}, v{ld+5}, v{ld+7}
        v_add_f32 v{ld}, v{ld}, v{ld+4}
        v_add_f32 v{ld+1}, v{ld+1}, v{ld+5}
        v_mfma_f32_16x16x4_f32 v[{t}:{t+3}], v{vOnef}, v{ld}, 0
        v_mfma_f32_16x16x4_f32 v[{t+4}:{t+7}], v{vOnef}, v{ld+1}, 0
        v_mul_f32 v{t}, 0x3b000000, v{t}
        v_mul_f32 v{t+4}, 0x3b000000, v{t+4}
        v_fma_f32 v{t+4}, -v{t}, v{t}, v{t+4}
        v_max_f32 v{t+4}, 0, v{t+4}
        v_cvt_pk_bf16_f32 v{t+1}, v{t}, v{t+4}
        v_lshlrev_b32 v{vm_}, 16, v{t+1}
        v_and_b32 v{t+4}, 0xffff0000, v{t+1}
        v_add_f32 v{t+4}, 0x3727c5ac, v{t+4}
        v_cvt_pk_bf16_f32 v{t+4}, v{t+4}, v{t+4}
        v_lshlrev_b32 v{t+4}, 16, v{t+4}
        v_sqrt_f32 v{t+4}, v{t+4}
        v_cvt_pk_bf16_f32 v{t+4}, v{t+4}, v{t+4}
        v_lshlrev_b32 v{t+4}, 16, v{t+4}
        v_rcp_f32 v{vr_}, v{t+4}
        """)
    def stats_v(self, vm_, vr_):
        a = self.a
        for r in range(4):
            a(f"ds_bpermute_b32 v{vMv+r}, v{vRowB}, v{vm_} offset:{4*r}")
            a(f"ds_bpermute_b32 v{vRv+r}, v{vRowB}, v{vr_} offset:{4*r}")
    def scaleT(self, acc, cs, out, vm_=vM, vr_=vR):
        s = []
        for r in range(4): s.append(f"v_fma_f32 v{acc+r}, -v{vm_}, v{cs+r}, v{acc+r}")
        for r in range(4): s.append(f"v_mul_f32 v{acc+r}, v{acc+r}, v{vr_}")
        s.append(f"v_cvt_pk_bf16_f32 v{out}, v{acc}, v{acc+1}")
        s.append(f"v_cvt_pk_bf16_f32 v{out+1}, v{acc+2}, v{acc+3}")
        return s
    def scaleN(self, acc, cs, out):
        s = []
        for r in range(4): s.append(f"v_fma_f32 v{acc+r}, -v{vMv+r}, v{cs}, v{acc+r}")
        for r in range(4): s.append(f"v_mul_f32 v{acc+r}, v{acc+r}, v{vRv+r}")
        s.append(f"v_cvt_pk_bf16_f32 v{out}, v{acc}, v{acc+1}")
        s.append(f"v_cvt_pk_bf16_f32 v{out+1}, v{acc+2}, v{acc+3}")
        return s
    def round4(self, p, t):
        return [f"v_cvt_pk_bf16_f32 v{t}, v{p}, v{p+1}", f"v_cvt_pk_bf16_f32 v{t+1}, v{p+2}, v{p+3}",
                f"v_lshlrev_b32 v{p}, 16, v{t}", f"v_and_b32 v{p+1}, 0xffff0000, v{t}",
                f"v_lshlrev_b32 v{p+2}, 16, v{t+1}", f"v_and_b32 v{p+3}, 0xffff0000, v{t+1}"]
    def xlane(self, src, d):
        return [f"ds_swizzle_b32 v{d}, v{src} offset:0x401f",
                f"ds_bpermute_b32 v{d+1}, v{vX32}, v{src}",
                f"ds_bpermute_b32 v{d+2}, v{vX48}, v{src}"]
    def featmap(self, accs, css, outs, tb):
        a = self.a
        T = [tb, tb + 24]
        a("\n".join(interleave(*[self.scaleT(accs[h], css[h], T[h]+4) for h in range(2)])))
        for h in range(2):
            a(f"v_mfma_f32_16x16x16_bf16 v[{T[h]}:{T[h]+3}], v[{vPhi+2*h}:{vPhi+2*h+1}], v[{T[h]+4}:{T[h]+5}], 0")
        st = []
        for h in range(2):
            t = T[h]
            s = self.round4(t, t+4)
            s += [f"v_max_f32 v{t+6}, v{t}, v{t+1}", f"v_min_f32 v{t+7}, v{t}, v{t+1}",
                  f"v_max_f32 v{t+8}, v{t+2}, v{t+3}", f"v_min_f32 v{t+9}, v{t+2}, v{t+3}",
                  f"v_max_f32 v{t+6}, v{t+6}, v{t+8}", f"v_min_f32 v{t+7}, v{t+7}, v{t+9}"]
            s += self.xlane(t+6, t+8) + self.xlane(t+7, t+11)
            st.append(s)
        a("\n".join(interleave(*st)))
        a("s_waitcnt lgkmcnt(0)")
        st = []
        for h in range(2):
            t = T[h]
            s = [f"v_max_f32 v{t+6}, v{t+6}, v{t+8}", f"v_min_f32 v{t+7}, v{t+7}, v{t+11}",
                 f"v_max_f32 v{t+9}, v{t+9}, v{t+10}", f"v_min_f32 v{t+12}, v{t+12}, v{t+13}",
                 f"v_max_f32 v{t+6}, v{t+6}, v{t+9}", f"v_min_f32 v{t+7}, v{t+7}, v{t+12}",
                 f"v_mul_f32 v{t+6}, s60, v{t+6}", f"v_mul_f32 v{t+7}, s60, v{t+7}"]
            for r in range(4):
                s.append(f"v_fma_f32 v{t+14+r}, v{t+r}, s60, -v{t+6}")
                s.append(f"v_fma_f32 v{t+18+r}, -v{t+r}, s60, v{t+7}")
            for r in range(8): s.append(f"v_exp_f32 v{t+14+r}, v{t+14+r}")
            s += [f"v_add_f32 v{t+4}, v{t+14}, v{t+15}", f"v_add_f32 v{t+5}, v{t+18}, v{t+19}",
                  f"v_add_f32 v{t+6}, v{t+16}, v{t+17}", f"v_add_f32 v{t+7}, v{t+20}, v{t+21}",
                  f"v_add_f32 v{t+4}, v{t+4}, v{t+6}", f"v_add_f32 v{t+5}, v{t+5}, v{t+7}",
                  f"v_mfma_f32_16x16x4_f32 v[{t}:{t+3}], v{vOnef}, v{t+4}, 0",
                  f"v_mfma_f32_16x16x4_f32 v[{t+8}:{t+11}], v{vOnef}, v{t+5}, 0"]
            st.append(s)
        a("\n".join(interleave(*st)))
        st = []
        for h in range(2):
            t = T[h]; o = outs[h]
            s = [f"v_rcp_f32 v{t}, v{t}", f"v_rcp_f32 v{t+8}, v{t+8}"]
            for r in range(4):
                s.append(f"v_mul_f32 v{t+14+r}, v{t+14+r}, v{t}")
                s.append(f"v_mul_f32 v{t+18+r}, v{t+18+r}, v{t+8}")
            for r in range(4):
                s.append(f"v_cvt_pk_bf16_f32 v{o+r}, v{t+14+2*r}, v{t+15+2*r}")
            st.append(s)
        a("\n".join(interleave(*st)))

    def gen(self, name):
        a = self.a; vm = self.vm
        a.raw(f".globl {name}\n.p2align 8\n.type {name},@function\n{name}:")
        a(f"""
        s_cmp_ge_u32 s2, 256
        s_cbranch_scc1 L_km_end
        s_load_dwordx2 s[16:17], s[0:1], 16     ; w_phi
        s_load_dwordx2 s[18:19], s[0:1], 56     ; out
        s_load_dwordx2 s[20:21], s[0:1], 72     ; ws
        v_lshrrev_b32 v{vT}, 6, v0
        v_and_b32 v{vLane}, 63, v0
        v_readfirstlane_b32 s32, v{vT}          ; wave
        v_lshlrev_b32 v{vL16}, 4, v{vLane}
        v_add_u32 v{vLdsB}, 49152, v{vL16}
        v_mov_b32 v{vZero}, 0
        v_mov_b32 v{vOne}, 1
        v_mov_b32 v{vOnef}, 1.0
        v_mov_b32 v{vOnes}, 0x3f803f80
        v_mov_b32 v{vOnes+1}, 0x3f803f80
        s_and_b32 s30, s2, 7
        s_lshr_b32 s31, s2, 3
        s_lshl_b32 s30, s30, 1
        s_and_b32 s53, s31, 1
        s_add_u32 s30, s30, s53                 ; rb
        s_lshr_b32 s31, s31, 1                  ; ct
        s_lshl_b32 s33, s30, 3
        s_add_u32 s33, s33, s32                 ; t
        s_lshl_b32 s34, s30, 1
        s_and_b32 s53, s31, 1
        s_add_u32 s34, s34, s53                 ; hb
        s_lshr_b32 s35, s31, 1                  ; c8
        s_lshr_b32 s36, s32, 1                  ; rt
        s_and_b32 s37, s32, 1                   ; kh
        s_lshl_b32 s38, s34, 2
        s_add_u32 s38, s38, s36                 ; t2
        s_mov_b32 s39, 0
        s_mov_b32 s60, {LOG2E}
        s_mov_b32 s61, {LOG2E_Q}
        s_waitcnt lgkmcnt(0)
        s_mov_b32 s4, s20
        s_mov_b32 s5, s21
        s_mov_b32 s6, {WS_SIZE}
        s_mov_b32 s7, 0x20000
        s_mov_b32 s8, s18
        s_mov_b32 s9, s19
        s_mov_b32 s10, 0x200000
        s_mov_b32 s11, 0x20000
        s_mov_b32 s12, s16
        s_mov_b32 s13, s17
        s_mov_b32 s14, 16384
        s_mov_b32 s15, 0x20000
        s_mul_i32 s62, s31, 98304
        s_lshl_b32 s63, s35, 16
        """)
        a(f"""
        v_lshrrev_b32 v{vT+1}, 4, v{vLane}      ; g
        v_and_b32 v{vT+2}, 15, v{vLane}         ; i
        v_lshlrev_b32 v{vT+3}, 7, v{vT+1}
        v_lshlrev_b32 v{vT+4}, 1, v{vT+2}
        v_add_u32 v{vT+3}, v{vT+3}, v{vT+4}
        s_lshl_b32 s53, s31, 10
        """)
        for h in range(2):
            for e in range(4):
                a(f"buffer_load_ushort v{vW+16+4*h+e}, v{vT+3}, s[12:15], s53 offen offset:{h*512+e*32}")
                vm.issue("phi")
        vm.q[-1] = "philast"
        self.dma_w("s62", 12, 0)
        a(f"""
        v_lshrrev_b32 v{vT+1}, 4, v{vLane}      ; g
        v_and_b32 v{vT+2}, 15, v{vLane}         ; i
        s_lshl_b32 s53, s37, 15
        s_add_u32 s53, s53, {LDS_WO}
        v_add_u32 v{vLdsC}, s53, v{vL16}
        v_xor_b32 v{vX32}, 32, v{vLane}
        v_lshlrev_b32 v{vX32}, 2, v{vX32}
        v_xor_b32 v{vX48}, 48, v{vLane}
        v_lshlrev_b32 v{vX48}, 2, v{vX48}
        v_lshlrev_b32 v{vRowB}, 4, v{vT+1}      ; (4g)*4
        v_lshlrev_b32 v{vSt}, 9, v{vT+1}
        v_lshlrev_b32 v{vT+3}, 4, v{vT+2}
        v_add_u32 v{vSt}, v{vSt}, v{vT+3}       ; g*512 + i*16
        v_lshrrev_b32 v{vT+3}, 2, v{vT+2}
        v_lshlrev_b32 v{vKvL}, 8, v{vT+3}
        v_lshlrev_b32 v{vT+3}, 6, v{vT+1}
        v_add_u32 v{vKvL}, v{vKvL}, v{vT+3}
        v_and_b32 v{vT+3}, 3, v{vT+2}
        v_lshlrev_b32 v{vT+3}, 2, v{vT+3}
        v_add_u32 v{vKvL}, v{vKvL}, v{vT+3}
        v_add_u32 v{vKvL}, {LDS_WO}, v{vKvL}
        """)
        a(f"""
        s_lshl_b32 s64, s38, 4
        s_lshl_b32 s53, s35, 1
        s_add_u32 s64, s64, s53
        s_add_u32 s64, s64, s37
        s_lshl_b32 s64, s64, 10
        s_add_u32 s53, s64, {XF}
        buffer_load_dwordx4 v[{vRes}:{vRes+3}], v{vL16}, s[4:7], s53 offen
        """)
        vm.issue("res")
        a(f"""
        v_lshlrev_b32 v{vT+3}, 2, v{vT+1}
        v_sub_u32 v{vT+3}, v{vT+2}, v{vT+3}     ; j-4g
        v_mov_b32 v{vT+4}, 0x3f80
        v_mov_b32 v{vT+5}, 0x3f800000
        v_cmp_eq_u32 vcc, 0, v{vT+3}
        v_cndmask_b32 v{vId}, 0, v{vT+4}, vcc
        v_cmp_eq_u32 vcc, 1, v{vT+3}
        v_cndmask_b32 v{vId}, v{vId}, v{vT+5}, vcc
        v_cmp_eq_u32 vcc, 2, v{vT+3}
        v_cndmask_b32 v{vId+1}, 0, v{vT+4}, vcc
        v_cmp_eq_u32 vcc, 3, v{vT+3}
        v_cndmask_b32 v{vId+1}, v{vId+1}, v{vT+5}, vcc
        v_mov_b32 v{vT+4}, 0xf149f2ca
        s_cmp_lt_u32 s33, 2
        s_cselect_b32 s53, -100, -9
        """)
        for r in range(4):
            a(f"""
            v_subrev_u32 v{vT+5}, {r}, v{vT+3}
            v_cmp_gt_u32 vcc, 8, v{vT+5}
            v_cndmask_b32 v{vBias+r}, v{vT+4}, 0, vcc
            v_cmp_ge_i32 vcc, s53, v{vT+5}
            v_cndmask_b32 v{vBias+4+r}, v{vT+4}, 0, vcc
            """)
        vm.wait("philast")
        for i in range(4): a(f"v_lshl_or_b32 v{vPhi+i}, v{vW+17+2*i}, 16, v{vW+16+2*i}")
        a(f"""
        v_cmp_le_u32 vcc, 96, v0
        v_subrev_u32 v{vT+5}, 96, v0
        v_cndmask_b32 v{vT+5}, v0, v{vT+5}, vcc          ; c
        v_mov_b32 v{vT+6}, 98304
        v_cndmask_b32 v{vT+6}, 0, v{vT+6}, vcc
        v_lshrrev_b32 v{vT+7}, 5, v{vT+5}
        v_lshlrev_b32 v{vT+7}, 11, v{vT+7}
        v_add_u32 v{vT+6}, v{vT+6}, v{vT+7}
        v_and_b32 v{vT+7}, 31, v{vT+5}
        v_lshlrev_b32 v{vT+7}, 2, v{vT+7}
        v_add_u32 v{vT+6}, v{vT+6}, v{vT+7}
        s_lshl_b32 s53, s31, 7
        s_add_u32 s53, s53, {CSP}
        s_cmp_ge_u32 s32, 3
        s_cbranch_scc1 L_cs_skip
        """)
        for k in range(16):
            a(f"buffer_load_dword v{vW+k}, v{vT+6}, s[4:7], s53 offen")
            if k != 15: a("s_add_u32 s53, s53, 6144")
        a("s_waitcnt vmcnt(0)")
        for st in (8, 4, 2, 1):
            for k in range(st): a(f"v_add_f32 v{vW+k}, v{vW+k}, v{vW+k+st}")
        a(f"""
        v_lshlrev_b32 v{vT+5}, 2, v0
        v_add_u32 v{vT+5}, {LDS_WO}, v{vT+5}
        ds_write_b32 v{vT+5}, v{vW}
        s_waitcnt lgkmcnt(0)
L_cs_skip:
        s_barrier
        v_add_u32 v{vT+5}, {LDS_WO}, v{vRowB}    ; g*16
        v_lshlrev_b32 v{vT+6}, 2, v{vT+2}
        v_add_u32 v{vT+6}, {LDS_WO}, v{vT+6}     ; i*4
        """)
        for m, base in ((0, vCsA), (1, vCsB)):
            for nt in range(4):
                a(f"ds_read_b128 v[{base+4*nt}:{base+4*nt+3}], v{vT+5} offset:{m*384+nt*64}")
            for nt in range(4, 6):
                a(f"ds_read_b32 v{base+16+nt-4}, v{vT+6} offset:{m*384+nt*64}")
        a("s_waitcnt lgkmcnt(0)\ns_barrier")
        a.fence()
        a(f"""
L_layer:
        s_lshl_b32 s53, s39, 21                 ; l*2MB
        s_lshl_b32 s54, s33, 14
        s_add_u32 s40, s53, s54
        s_add_u32 s40, s40, {XF}                ; sXin
        s_lshl_b32 s55, s31, 10
        s_add_u32 s42, s53, s54
        s_add_u32 s42, s42, s55
        s_add_u32 s42, s42, {OF}                ; sOout
        s_lshl_b32 s54, s38, 14
        s_lshl_b32 s55, s37, 13
        s_add_u32 s43, s53, s54
        s_add_u32 s43, s43, s55
        s_add_u32 s43, s43, {OF}                ; sOin
        s_add_u32 s44, s53, s64
        s_add_u32 s44, s44, {XF + 0x200000}     ; sXout
        s_lshl_b32 s53, s39, 18
        s_lshl_b32 s54, s33, 11
        s_add_u32 s41, s53, s54
        s_add_u32 s41, s41, {ST}                ; sSTin
        s_lshl_b32 s54, s38, 11
        s_add_u32 s45, s53, s54
        s_lshr_b32 s54, s35, 1
        s_lshl_b32 s54, s54, 9
        s_add_u32 s45, s45, s54
        s_and_b32 s54, s35, 1
        s_lshl_b32 s54, s54, 8
        s_add_u32 s45, s45, s54
        s_lshl_b32 s54, s37, 3
        s_add_u32 s45, s45, s54
        s_add_u32 s45, s45, {ST + 0x40000}
        ; counters
        s_lshl_b32 s53, s39, 7
        s_add_u32 s54, s53, s33
        s_lshl_b32 s46, s54, 6
        s_add_u32 s46, s46, {CNT_X}             ; wait X (l, t)
        s_lshl_b32 s54, s54, 1
        s_lshr_b32 s55, s31, 3
        s_add_u32 s54, s54, s55
        s_lshl_b32 s47, s54, 6
        s_add_u32 s47, s47, {CNT_O}
        s_add_u32 s54, s53, s38
        s_lshl_b32 s49, s54, 6
        s_add_u32 s49, s49, {CNT_X + 128*64}    ; signal X (l+1, t2)
        s_lshl_b32 s54, s54, 1
        s_add_u32 s54, s54, s37
        s_lshl_b32 s48, s54, 6
        s_add_u32 s48, s48, {CNT_O}
        s_lshr_b32 s53, s39, 1
        s_lshl_b32 s54, s53, 4
        s_add_u32 s54, s54, s31
        s_lshl_b32 s50, s54, 6
        s_add_u32 s50, s50, {CNT_KV}
        s_mul_i32 s51, s53, {KVSZ}
        s_mul_i32 s54, s31, 4352
        s_add_u32 s51, s51, s54
        s_add_u32 s51, s51, {KV}
        s_cmp_eq_u32 s39, 0
        s_cbranch_scc1 L_nopollx
        """)
        self.poll("s46", 16)
        a.fence()
        a("L_nopollx:")
        vm.reset()
        for ks in range(16):
            if ks % 4 == 0 and ks: a("s_add_u32 s40, s40, 4096")
            a(f"buffer_load_dwordx4 v[{vX+4*ks}:{vX+4*ks+3}], v{vL16}, s[4:7], s40 offen offset:{(ks%4)*1024} sc1")
            vm.issue(("x", ks))
        a(f"buffer_load_dwordx4 v[{vT+24}:{vT+27}], v{vSt}, s[4:7], s41 offen sc1"); vm.issue("st0")
        a(f"buffer_load_dwordx4 v[{vT+28}:{vT+31}], v{vSt}, s[4:7], s41 offen offset:256 sc1"); vm.issue("st1")
        a("""
        s_and_b32 s53, s39, 1
        s_cmp_eq_u32 s53, 1
        s_cbranch_scc1 L_B
        """)
        saved_q = list(vm.q)
        self.phaseA()
        a("s_branch L_WO")
        a.fence()
        a("L_B:")
        vm.q = list(saved_q)
        self.phaseB()
        a.fence()
        a("L_WO:")
        vm.reset()
        self.phaseWo()
        a("L_km_end:\ns_endpgm")

    def phaseA(self):
        a = self.a; vm = self.vm
        a(f"""
        s_cmp_lg_u32 s32, 0
        s_cbranch_scc1 L_A_nozero
        v_mov_b32 v{vT}, 0
        v_mov_b32 v{vT+1}, 0
        v_mov_b32 v{vT+2}, 0
        v_mov_b32 v{vT+3}, 0
        """)
        for i in range(5): a(f"ds_write_b128 v{vLdsC}, v[{vT}:{vT+3}] offset:{i*1024}")
        a("s_waitcnt lgkmcnt(0)\nL_A_nozero:")
        vm.wait(("x", 0))
        a("s_barrier")
        K0, K1, V0, V1, Q0, Q1 = [vAcc + 4*i for i in range(6)]
        self.mainloop([(2, K0, True), (3, K1, True), (4, V0, False), (5, V1, False)], 16, 6, lambda ks: vX+4*ks, self.wq_addr, xtag="x")
        vm.wait("st1")
        self.stats(vT+24, vM, vR, vT)
        self.stats_v(vM, vR)
        a("s_waitcnt lgkmcnt(0)")
        self.dump([vM, vR] + list(range(vMv, vMv+8)) + list(range(K0, K0+16)) + list(range(vCsA, vCsA+18)) + [vPhi, vPhi+1, vPhi+2, vPhi+3, vId, vId+1], 0)
        PK = [vT+0, vT+4]
        self.featmap([K0, K1], [vCsA+8, vCsA+12], PK, vW)
        self.dump(list(range(vT, vT+8)), 50)
        VP = [vT+8, vT+10]
        a("\n".join(interleave(self.scaleN(V0, vCsA+16, VP[0]), self.scaleN(V1, vCsA+17, VP[1]))))
        for h in range(2):
            for sgn in range(2):
                d = vW + 4*(2*h+sgn)
                a(f"v_mfma_f32_16x16x16_bf16 v[{d}:{d+3}], v[{PK[h]+2*sgn}:{PK[h]+2*sgn+1}], v[{vId}:{vId+1}], 0")
        for i in range(4):
            d = vW + 4*i
            a(f"v_cvt_pk_bf16_f32 v{vW+16+2*i}, v{d}, v{d+1}")
            a(f"v_cvt_pk_bf16_f32 v{vW+17+2*i}, v{d+2}, v{d+3}")
        for i in range(4):
            h = i >> 1; b = vW + 16 + 2*i
            a(f"v_mfma_f32_16x16x16_bf16 v[{vW+24+4*i}:{vW+27+4*i}], v[{VP[h]}:{VP[h]+1}], v[{b}:{b+1}], 0")
            a(f"v_mfma_f32_16x16x16_bf16 v[{vW+4*i}:{vW+3+4*i}], v[{vOnes}:{vOnes+1}], v[{b}:{b+1}], 0")
        for i in range(4):
            h = i >> 1; sgn = i & 1
            for r in range(4):
                a(f"ds_add_f32 v{vKvL}, v{vW+24+4*i+r} offset:{h*2176 + sgn*1024 + 16*r}")
        a(f"""
        v_lshlrev_b32 v{vT+12}, 2, v{vLane}
        v_add_u32 v{vT+12}, {LDS_WO}, v{vT+12}
        s_mov_b64 exec, 0xffff
        """)
        for i in range(4):
            h = i >> 1; sgn = i & 1
            a(f"ds_add_f32 v{vT+12}, v{vW+4*i} offset:{h*2176 + 2048 + sgn*64}")
        a("""
        s_mov_b64 exec, -1
        s_waitcnt lgkmcnt(0)
        s_barrier
        s_cmp_lg_u32 s32, 0
        s_cbranch_scc1 L_A_noatom
        """)
        for i in range(17): a(f"ds_read_b32 v{vW+i}, v{vT+12} offset:{i*256}")
        a(f"v_lshlrev_b32 v{vT+13}, 2, v{vLane}\ns_add_u32 s53, s51, 4096\ns_waitcnt lgkmcnt(0)")
        for i in range(16): a(f"buffer_atomic_add_f32 v{vW+i}, v{vT+13}, s[4:7], s51 offen offset:{i*256}")
        a(f"buffer_atomic_add_f32 v{vW+16}, v{vT+13}, s[4:7], s53 offen")
        a.fence()
        a("L_A_noatom:")
        self.mainloop([(0, Q0, True), (1, Q1, True)], 16, 6, lambda ks: vX+4*ks, self.wq_addr)
        PQ = [vT+0, vT+4]
        self.featmap([Q0, Q1], [vCsA+0, vCsA+4], PQ, vW)
        a("""
        s_cmp_lg_u32 s32, 0
        s_cbranch_scc1 L_A_nosig
        """)
        self.signal("s50")
        a("L_A_nosig:")
        vm.reset()
        a(f"s_add_u32 s54, s63, {WO_A}")
        self.dma_w("s54", 8, LDS_WO)
        self.poll("s50", 16)
        for h in range(2):
            b = vW + 16*h
            a(f"buffer_load_dwordx4 v[{b}:{b+3}], v{vL16}, s[4:7], s51 offen offset:{h*2176} sc1")
            a(f"buffer_load_dwordx4 v[{b+4}:{b+7}], v{vL16}, s[4:7], s51 offen offset:{h*2176+1024} sc1")
        a("s_add_u32 s53, s51, 2048")
        for h in range(2):
            b = vW + 16*h
            a(f"buffer_load_dwordx4 v[{b+8}:{b+11}], v{vRowB}, s[4:7], s53 offen offset:{h*2176} sc1")
            a(f"buffer_load_dwordx4 v[{b+12}:{b+15}], v{vRowB}, s[4:7], s53 offen offset:{h*2176+64} sc1")
        a("s_waitcnt vmcnt(0)")
        for h in range(2):
            b = vW + 16*h; o = vW + 32 + 8*h
            for i in range(8): a(f"v_cvt_pk_bf16_f32 v{o+i}, v{b+2*i}, v{b+2*i+1}")
        for h in range(2):
            o = vW + 32 + 8*h; d = vW + 8*h
            a(f"v_mfma_f32_16x16x32_bf16 v[{d}:{d+3}], v[{o}:{o+3}], v[{PQ[h]}:{PQ[h]+3}], 0")
            a(f"v_mfma_f32_16x16x32_bf16 v[{d+4}:{d+7}], v[{o+4}:{o+7}], v[{PQ[h]}:{PQ[h]+3}], 0")
        st = []
        for h in range(2):
            d = vW + 8*h; t = vW + 16 + 4*h
            s = [f"v_cvt_pk_bf16_f32 v{d+4}, v{d+4}, v{d+4}", f"v_lshlrev_b32 v{d+4}, 16, v{d+4}",
                 f"v_add_f32 v{d+4}, 0x358637bd, v{d+4}", f"v_cvt_pk_bf16_f32 v{d+4}, v{d+4}, v{d+4}",
                 f"v_lshlrev_b32 v{d+4}, 16, v{d+4}", f"v_rcp_f32 v{d+4}, v{d+4}"]
            s += self.round4(d, t)
            for r in range(4): s.append(f"v_mul_f32 v{d+r}, v{d+r}, v{d+4}")
            s += [f"v_cvt_pk_bf16_f32 v{vT+8+2*h}, v{d}, v{d+1}", f"v_cvt_pk_bf16_f32 v{vT+9+2*h}, v{d+2}, v{d+3}"]
            st.append(s)
        a("\n".join(interleave(*st)))
        a(f"buffer_store_dwordx4 v[{vT+8}:{vT+11}], v{vL16}, s[4:7], s42 offen sc1")
        self.signal("s47")

    def phaseB(self):
        a = self.a; vm = self.vm
        HX = LDS_WO + 32768 + 4096
        a(f"""
        s_cmp_ge_u32 s32, 2
        s_cbranch_scc1 L_B_nozero
        v_mov_b32 v{vT}, 0
        v_mov_b32 v{vT+1}, 0
        v_mov_b32 v{vT+2}, 0
        v_mov_b32 v{vT+3}, 0
        s_lshl_b32 s53, s32, 13
        s_add_u32 s53, s53, {LDS_WO}
        v_add_u32 v{vT+4}, s53, v{vL16}
        ds_write_b128 v{vT+4}, v[{vT}:{vT+3}]
        ds_write_b128 v{vT+4}, v[{vT}:{vT+3}] offset:1024
        s_waitcnt lgkmcnt(0)
L_B_nozero:
        s_cmp_lt_u32 s32, 4
        s_cselect_b32 s65, 1, 0
        s_cmp_eq_u32 s30, 0
        s_cselect_b32 s65, 0, s65
        s_cmp_eq_u32 s65, 0
        s_cbranch_scc1 L_B_nohalo1
        s_lshl_b32 s54, s32, 6
        s_sub_u32 s54, s46, s54
        s_sub_u32 s55, s54, 128
        s_sub_u32 s54, s54, 64
        """)
        saved = list(vm.q)
        self.poll("s55", 16)
        self.poll("s54", 16)
        vm.q = saved
        a(f"""
        v_bfe_u32 v{vT}, v{vLane}, 3, 1
        v_lshlrev_b32 v{vT+1}, 14, v{vT}
        v_or_b32 v{vT+2}, 128, v{vL16}
        v_add_u32 v{vT+1}, v{vT+1}, v{vT+2}
        s_add_u32 s54, s32, 2
        s_lshl_b32 s54, s54, 14
        s_sub_u32 s54, s40, s54
        s_sub_u32 s54, s54, 12288
        s_lshl_b32 s55, s32, 12
        s_add_u32 s54, s54, s55
        s_lshl_b32 s55, s32, 13
        s_add_u32 s55, s55, {HX}
        s_mov_b32 m0, s55
        """)
        for i in range(4):
            a(f"buffer_load_dwordx4 v{vT+1}, s[4:7], s54 offen offset:{i*1024} sc1 lds")
        a(f"""
        v_lshlrev_b32 v{vT+1}, 11, v{vT}
        v_or_b32 v{vT+2}, 128, v{vSt}
        v_add_u32 v{vT+1}, v{vT+1}, v{vT+2}
        s_add_u32 s54, s32, 2
        s_lshl_b32 s54, s54, 11
        s_sub_u32 s54, s41, s54
        buffer_load_dwordx4 v[{vT+16}:{vT+19}], v{vT+1}, s[4:7], s54 offen sc1
        buffer_load_dwordx4 v[{vT+20}:{vT+23}], v{vT+1}, s[4:7], s54 offen offset:256 sc1
        s_waitcnt vmcnt(0)
L_B_nohalo1:
        """)
        vm.wait(("x", 0))
        a("s_barrier")
        Q0, Q1, K0, K1, V0, V1 = [vAcc + 4*i for i in range(6)]
        self.mainloop([(0, Q0, True), (1, Q1, True), (2, K0, True), (3, K1, True), (4, V0, False), (5, V1, False)], 16, 6, lambda ks: vX+4*ks, self.wq_addr, xtag="x")
        vm.wait("st1")
        a(f"""
        s_cmp_eq_u32 s65, 0
        s_cbranch_scc1 L_B_nohalo2
        v_add_u32 v{vHalo}, {HX}, v{vL16}
        s_add_u32 s53, s32, 2
        s_lshl_b32 s53, s53, 10
        v_add_u32 v{vHalo+1}, s53, v{vL16}
        v_add_u32 v{vHalo+2}, s53, v{vLdsB}
        """)
        for ks in range(16): a(f"ds_read_b128 v[{vX+4*ks}:{vX+4*ks+3}], v{vHalo} offset:{(ks>>2)*8192+(ks&3)*1024}")
        self.stats(vT+16, vHalo+3, vHalo+4, vT)
        self.stats_v(vHalo+3, vHalo+4)
        a("s_waitcnt lgkmcnt(0)")
        def haddr(ks, nt):
            off = ks*6*1024
            return (vHalo+1, off) if off < 49152 else (vHalo+2, off - 49152)
        HA = vT + 8
        a("s_cmp_ge_u32 s32, 2\ns_cbranch_scc1 L_B_halov")
        self.mainloop([(0, HA, True)], 16, 6, lambda ks: vX+4*ks, haddr)
        for r in range(4):
            a(f"s_cmp_eq_u32 s32, 0\ns_cselect_b64 vcc, -1, 0\nv_cndmask_b32 v{vT+12+r}, v{vCsB+12+r}, v{vCsB+8+r}, vcc")
        a("\n".join(self.scaleT(HA, vT+12, vT+16, vHalo+3, vHalo+4)))
        a(f"""
        v_bfe_u32 v{vT}, v{vLane}, 3, 1
        v_lshlrev_b32 v{vT}, 13, v{vT}
        v_or_b32 v{vT+1}, 128, v{vL16}
        v_add_u32 v{vT}, v{vT}, v{vT+1}
        s_lshl_b32 s53, s32, 3
        s_add_u32 s53, s53, {LDS_WO}
        v_add_u32 v{vT}, s53, v{vT}
        ds_write_b64 v{vT}, v[{vT+16}:{vT+17}]
        s_branch L_B_nohalo2
        """)
        a.fence()
        a("L_B_halov:")
        self.mainloop([(0, HA, False)], 16, 6, lambda ks: vX+4*ks, haddr)
        a(f"s_cmp_eq_u32 s32, 2\ns_cselect_b64 vcc, -1, 0\nv_cndmask_b32 v{vT+12}, v{vCsB+17}, v{vCsB+16}, vcc")
        a("\n".join(self.scaleN(HA, vT+12, vT+16)))
        a(f"""
        v_lshrrev_b32 v{vT}, 5, v{vLane}
        v_lshlrev_b32 v{vT}, 13, v{vT}
        v_or_b32 v{vT+1}, 512, v{vL16}
        v_add_u32 v{vT}, v{vT}, v{vT+1}
        s_lshl_b32 s53, s32, 3
        s_add_u32 s53, s53, {LDS_WO + 1024 - 16}
        v_add_u32 v{vT}, s53, v{vT}
        ds_write_b64 v{vT}, v[{vT+16}:{vT+17}]
        """)
        a.fence()
        a("L_B_nohalo2:")
        self.stats(vT+24, vM, vR, vT)
        self.stats_v(vM, vR)
        QP = vW; KP = vW + 4; VPk = vW + 8
        a("\n".join(interleave(self.scaleT(K0, vCsB+8, KP), self.scaleT(K1, vCsB+12, KP+2),
                               self.scaleT(Q0, vCsB+0, QP), self.scaleT(Q1, vCsB+4, QP+2))))
        a("s_waitcnt lgkmcnt(0)")
        a("\n".join(interleave(self.scaleN(V0, vCsB+16, VPk), self.scaleN(V1, vCsB+17, VPk+2))))
        a(f"""
        s_lshl_b32 s53, s32, 13
        s_add_u32 s53, s53, {LDS_WO}
        v_add_u32 v{vT}, s53, v{vL16}
        s_cmp_ge_u32 s32, 6
        s_cbranch_scc1 L_B_nowr
        ds_write_b128 v{vT}, v[{KP}:{KP+3}] offset:16384
        ds_write_b128 v{vT}, v[{VPk}:{VPk+3}] offset:17408
L_B_nowr:
        s_waitcnt lgkmcnt(0)
        s_barrier
        ds_read_b128 v[{vW+12}:{vW+15}], v{vT}
        ds_read_b128 v[{vW+16}:{vW+19}], v{vT} offset:1024
        """)
        KPp = vW + 12; VPp = vW + 16
        S = [vW + 20, vW + 28]
        for h in range(2):
            a(f"v_mfma_f32_16x16x16_bf16 v[{S[h]}:{S[h]+3}], v[{KP+2*h}:{KP+2*h+1}], v[{QP+2*h}:{QP+2*h+1}], 0")
        a("s_waitcnt lgkmcnt(0)")
        for h in range(2):
            a(f"v_mfma_f32_16x16x16_bf16 v[{S[h]+4}:{S[h]+7}], v[{KPp+2*h}:{KPp+2*h+1}], v[{QP+2*h}:{QP+2*h+1}], 0")
        AV = [vT+0, vT+4]
        for h in range(2):
            a(f"v_mov_b32 v{AV[h]}, v{VPp+2*h}\nv_mov_b32 v{AV[h]+1}, v{VPp+2*h+1}\nv_mov_b32 v{AV[h]+2}, v{VPk+2*h}\nv_mov_b32 v{AV[h]+3}, v{VPk+2*h+1}")
        st = []
        for h in range(2):
            s_ = S[h]; t = vT + 8 + 8*h
            s = self.round4(s_, t) + self.round4(s_+4, t+2)
            for r in range(8): s.append(f"v_add_f32 v{s_+r}, v{s_+r}, v{vBias+r}")
            s += [f"v_max_f32 v{t}, v{s_}, v{s_+1}", f"v_max_f32 v{t+1}, v{s_+2}, v{s_+3}",
                  f"v_max_f32 v{t+2}, v{s_+4}, v{s_+5}", f"v_max_f32 v{t+3}, v{s_+6}, v{s_+7}",
                  f"v_max_f32 v{t}, v{t}, v{t+1}", f"v_max_f32 v{t+2}, v{t+2}, v{t+3}", f"v_max_f32 v{t}, v{t}, v{t+2}"]
            s += self.xlane(t, t+1)
            st.append(s)
        a("\n".join(interleave(*st)))
        a("s_waitcnt lgkmcnt(0)")
        st = []
        for h in range(2):
            s_ = S[h]; t = vT + 8 + 8*h
            s = [f"v_max_f32 v{t}, v{t}, v{t+1}", f"v_max_f32 v{t+2}, v{t+2}, v{t+3}", f"v_max_f32 v{t}, v{t}, v{t+2}",
                 f"v_mul_f32 v{t}, s61, v{t}"]
            for r in range(8): s.append(f"v_fma_f32 v{s_+r}, v{s_+r}, s61, -v{t}")
            for r in range(8): s.append(f"v_exp_f32 v{s_+r}, v{s_+r}")
            s += [f"v_add_f32 v{t}, v{s_}, v{s_+1}", f"v_add_f32 v{t+1}, v{s_+2}, v{s_+3}",
                  f"v_add_f32 v{t+2}, v{s_+4}, v{s_+5}", f"v_add_f32 v{t+3}, v{s_+6}, v{s_+7}",
                  f"v_add_f32 v{t}, v{t}, v{t+1}", f"v_add_f32 v{t+2}, v{t+2}, v{t+3}", f"v_add_f32 v{t}, v{t}, v{t+2}",
                  f"v_mfma_f32_16x16x4_f32 v[{t+4}:{t+7}], v{vOnef}, v{t}, 0"]
            st.append(s)
        a("\n".join(interleave(*st)))
        st = []
        for h in range(2):
            s_ = S[h]; t = vT + 8 + 8*h
            s = [f"v_rcp_f32 v{t+4}, v{t+4}"]
            for r in range(8): s.append(f"v_mul_f32 v{s_+r}, v{s_+r}, v{t+4}")
            s += [f"v_cvt_pk_bf16_f32 v{t}, v{s_+4}, v{s_+5}", f"v_cvt_pk_bf16_f32 v{t+1}, v{s_+6}, v{s_+7}",
                  f"v_cvt_pk_bf16_f32 v{t+2}, v{s_}, v{s_+1}", f"v_cvt_pk_bf16_f32 v{t+3}, v{s_+2}, v{s_+3}",
                  f"v_mfma_f32_16x16x32_bf16 v[{s_}:{s_+3}], v[{AV[h]}:{AV[h]+3}], v[{t}:{t+3}], 0"]
            st.append(s)
        a("\n".join(interleave(*st)))
        for h in range(2):
            a(f"v_cvt_pk_bf16_f32 v{vW+2*h}, v{S[h]}, v{S[h]+1}\nv_cvt_pk_bf16_f32 v{vW+2*h+1}, v{S[h]+2}, v{S[h]+3}")
        a(f"buffer_store_dwordx4 v[{vW}:{vW+3}], v{vL16}, s[4:7], s42 offen sc1")
        self.signal("s47")
        a(f"s_add_u32 s54, s63, {WO_B}")
        self.dma_w("s54", 8, LDS_WO)

    def phaseWo(self):
        a = self.a; vm = self.vm
        self.poll("s48", 8)
        for ks in range(8):
            if ks == 4: a("s_add_u32 s43, s43, 4096")
            a(f"buffer_load_dwordx4 v[{vX+4*ks}:{vX+4*ks+3}], v{vL16}, s[4:7], s43 offen offset:{(ks%4)*1024} sc1")
            vm.issue(("o", ks))
        a("s_barrier")
        T = [vAcc + 4*i for i in range(4)]
        self.mainloop([(i, T[i], True) for i in range(4)], 8, 4, lambda ks: vX+4*ks, lambda ks, nt: (vLdsC, (ks*4+nt)*1024), xtag="o")
        a(f"""
        s_xor_b32 s53, s32, 1
        s_mul_i32 s53, s53, 12288
        v_add_u32 v{vT}, s53, v{vL16}
        s_mul_i32 s53, s32, 12288
        v_add_u32 v{vT+1}, s53, v{vL16}
        s_cmp_eq_u32 s37, 0
        s_cbranch_scc1 L_W_k0
        ds_write_b128 v{vT}, v[{T[0]}:{T[0]+3}]
        ds_write_b128 v{vT}, v[{T[1]}:{T[1]+3}] offset:1024
        """)
        for r in range(8): a(f"v_mov_b32 v{vW+r}, v{T[2]+r}")
        a(f"""
        s_branch L_W_k1
L_W_k0:
        ds_write_b128 v{vT}, v[{T[2]}:{T[2]+3}]
        ds_write_b128 v{vT}, v[{T[3]}:{T[3]+3}] offset:1024
        """)
        for r in range(8): a(f"v_mov_b32 v{vW+r}, v{T[0]+r}")
        a(f"""
L_W_k1:
        s_waitcnt lgkmcnt(0)
        s_barrier
        ds_read_b128 v[{vW+8}:{vW+11}], v{vT+1}
        ds_read_b128 v[{vW+12}:{vW+15}], v{vT+1} offset:1024
        """)
        for p in range(4):
            a(f"v_lshlrev_b32 v{vW+16+2*p}, 16, v{vRes+p}\nv_and_b32 v{vW+17+2*p}, 0xffff0000, v{vRes+p}")
        a("s_waitcnt lgkmcnt(0)")
        for r in range(8): a(f"v_add_f32 v{vW+r}, v{vW+r}, v{vW+8+r}")
        a("\n".join(interleave(self.round4(vW, vW+8), self.round4(vW+4, vW+10))))
        for r in range(8): a(f"v_add_f32 v{vW+r}, v{vW+r}, v{vW+16+r}")
        for p in range(4): a(f"v_cvt_pk_bf16_f32 v{vRes+p}, v{vW+2*p}, v{vW+2*p+1}")
        a("""
        s_cmp_eq_u32 s39, 3
        s_cbranch_scc1 L_final
        """)
        a(f"buffer_store_dwordx4 v[{vRes}:{vRes+3}], v{vL16}, s[4:7], s44 offen sc1")
        a(f"v_dot2_f32_bf16 v{vW}, v{vRes}, v{vOnes}, 0\nv_dot2_f32_bf16 v{vW+1}, v{vRes}, v{vRes}, 0")
        for p in range(1, 4):
            a(f"v_dot2_f32_bf16 v{vW}, v{vRes+p}, v{vOnes}, v{vW}\nv_dot2_f32_bf16 v{vW+1}, v{vRes+p}, v{vRes+p}, v{vW+1}")
        a(f"""
        v_mfma_f32_16x16x4_f32 v[{vW+4}:{vW+7}], v{vOnef}, v{vW}, 0
        v_mfma_f32_16x16x4_f32 v[{vW+8}:{vW+11}], v{vOnef}, v{vW+1}, 0
        v_mov_b32 v{vW+5}, v{vW+8}
        s_mov_b64 exec, 0xffff
        buffer_store_dwordx2 v[{vW+4}:{vW+5}], v{vL16}, s[4:7], s45 offen sc1
        s_mov_b64 exec, -1
        """)
        self.signal("s49")
        if self.stop is not None:
            a(f"s_cmp_eq_u32 s39, {self.stop}\ns_cbranch_scc1 L_km_end")
        a(f"""
        s_and_b32 s53, s39, 1
        s_cmp_eq_u32 s53, 0
        s_cselect_b32 s54, {WQ_B}, 0
        s_add_u32 s54, s54, s62
        """)
        self.dma_w("s54", 12, 0)
        a("""
        s_add_u32 s39, s39, 1
        s_branch L_layer
        """)
        a.fence()
        a(f"""
L_final:
        v_and_b32 v{vT}, 15, v{vLane}
        v_lshlrev_b32 v{vT}, 11, v{vT}
        v_lshrrev_b32 v{vT+1}, 4, v{vLane}
        v_lshlrev_b32 v{vT+1}, 3, v{vT+1}
        v_add_u32 v{vT}, v{vT}, v{vT+1}
        s_lshr_b32 s53, s38, 1
        s_lshl_b32 s53, s53, 5
        s_and_b32 s54, s38, 1
        s_add_u32 s53, s53, s54
        s_lshl_b32 s53, s53, 10
        s_lshl_b32 s54, s35, 7
        s_add_u32 s53, s53, s54
        s_lshl_b32 s54, s37, 6
        s_add_u32 s53, s53, s54
        buffer_store_dwordx2 v[{vRes}:{vRes+1}], v{vT}, s[8:11], s53 offen
        buffer_store_dwordx2 v[{vRes+2}:{vRes+3}], v{vT}, s[8:11], s53 offen offset:32
        """)

def build(path, stop=None, dbg=False):
    from gen_k0 import gen_k0
    a = Asm()
    a.raw("; @launch kernel=prep_kernel grid=(256,1,1) block=(256,1,1) lds=0")
    a.raw("; @launch kernel=main_kernel grid=(256,1,1) block=(512,1,1) lds=163840")
    a.raw('.amdgcn_target "amdgcn-amd-amdhsa--gfx950"\n.text')
    gen_k0(a)
    a.hist = []
    km = KM(a, stop); km.dbg = dbg; km.gen("main_kernel")
    a.raw('.section .rodata,"a"')
    a.raw(kernel_desc("prep_kernel", 112))
    a.raw(kernel_desc("main_kernel", 256))
    open(path, "w").write(a.text())
    return a

if __name__ == "__main__":
    stop = int(sys.argv[2]) if len(sys.argv) > 2 else None
    a = build(sys.argv[1] if len(sys.argv) > 1 else "km.s", stop, len(sys.argv) > 3)
    print("nops inserted", a.nnop, "lines", len(a.lines))
```

```python
from asmlib import *
from layout import *

def gen_k0(a, name="prep_kernel"):
    a.raw(f".globl {name}\n.p2align 8\n.type {name},@function\n{name}:")
    a(f"""
    s_cmp_ge_u32 s2, 256
    s_cbranch_scc1 L_k0_end
    s_load_dwordx4 s[16:19], s[0:1], 0      ; x, wqkvA
    s_load_dwordx2 s[20:21], s[0:1], 24     ; woA
    s_load_dwordx4 s[24:27], s[0:1], 40
    s_load_dwordx2 s[28:29], s[0:1], 72     ; ws
    v_lshrrev_b32 v1, 6, v0
    v_and_b32 v2, 63, v0                    ; lane
    v_readfirstlane_b32 s30, v1             ; wave
    v_lshlrev_b32 v3, 4, v2                 ; lane*16
    v_lshrrev_b32 v4, 4, v2                 ; kg
    v_and_b32 v5, 15, v2                    ; o / i
    v_mov_b32 v6, 1.0
    v_mov_b32 v7, 0x3f803f80
    s_waitcnt lgkmcnt(0)
    s_mov_b32 s4, s28
    s_mov_b32 s5, s29
    s_mov_b32 s6, {WS_SIZE}
    s_mov_b32 s7, 0x20000
    s_cmp_ge_u32 s30, 2
    s_cbranch_scc1 L_k0_x
    """)
    a(f"""
    s_lshl_b32 s31, s2, 1
    s_add_u32 s31, s31, s30                 ; task
    s_lshr_b32 s32, s31, 5                  ; ks
    s_and_b32 s33, s31, 31                  ; slot
    s_mov_b32 s11, 0x20000
    s_cmp_ge_u32 s33, 24
    s_cbranch_scc1 L_k0_wo
    ; ---- wqkv ----
    s_cmp_ge_u32 s33, 12
    s_cselect_b32 s8, s24, s18
    s_cselect_b32 s9, s25, s19
    s_cselect_b32 s34, 12, 0
    s_cselect_b32 s35, {WQ_B}, {WQ_A}
    s_cselect_b32 s44, 98304, 0
    s_sub_u32 s33, s33, s34                 ; nb 0..11
    s_add_u32 s44, s44, {CSP}
    s_mov_b32 s10, 0x180000
    s_mov_b32 s36, 3072                     ; pitch
    s_and_b32 s37, s33, 3
    s_mul_i32 s37, s37, {4*98304}
    s_add_u32 s35, s35, s37
    s_mul_i32 s37, s32, 6144
    s_add_u32 s35, s35, s37
    s_add_u32 s44, s44, s37
    s_lshr_b32 s37, s33, 2
    s_lshl_b32 s37, s37, 11
    s_add_u32 s35, s35, s37
    s_lshl_b32 s37, s33, 9
    s_add_u32 s44, s44, s37
    v_lshrrev_b32 v8, 2, v5
    v_mul_u32_u24 v8, 98304, v8
    v_bfe_u32 v9, v5, 1, 1
    v_lshlrev_b32 v9, 10, v9
    v_add_u32 v8, v8, v9
    s_mov_b32 s45, 1
    s_branch L_k0_wcommon
L_k0_wo:
    s_cmp_ge_u32 s33, 28
    s_cselect_b32 s8, s26, s20
    s_cselect_b32 s9, s27, s21
    s_cselect_b32 s34, 28, 24
    s_cselect_b32 s35, {WO_B-WO_A}, 0
    s_sub_u32 s33, s33, s34                 ; nb 0..3
    s_add_u32 s35, s35, {WO_A}
    s_mov_b32 s10, 0x80000
    s_mov_b32 s36, 1024
    s_lshl_b32 s37, s33, 17
    s_add_u32 s35, s35, s37
    s_lshl_b32 s37, s32, 11
    s_add_u32 s35, s35, s37
    v_lshrrev_b32 v8, 2, v5
    v_lshlrev_b32 v8, 15, v8
    v_bfe_u32 v9, v5, 1, 1
    v_lshlrev_b32 v9, 10, v9
    v_add_u32 v8, v8, v9
    s_mov_b32 s45, 0
L_k0_wcommon:
    v_lshlrev_b32 v9, 8, v4
    v_add_u32 v8, v8, v9
    v_and_b32 v9, 1, v5
    v_lshlrev_b32 v9, 7, v9
    v_add_u32 v8, v8, v9
    s_lshl_b32 s37, s36, 2
    v_mul_lo_u32 v9, s37, v4
    v_lshlrev_b32 v10, 4, v5
    v_add_u32 v9, v9, v10
    s_lshl_b32 s37, s36, 5
    s_mul_i32 s38, s32, s37
    s_lshl_b32 s37, s33, 8
    s_add_u32 s38, s38, s37
    s_lshl_b32 s39, s36, 4                  ; 16*pitch
    """)
    for e in range(8):
        if e == 4:
            a("s_add_u32 s40, s38, s39")
        elif e == 0:
            a("s_mov_b32 s40, s38")
        else:
            a("s_add_u32 s40, s40, s36")
        a(f"buffer_load_dwordx4 v[{16+4*e}:{19+4*e}], v9, s[8:11], s40 offen")
    a(f"""
    v_mov_b32 v11, 0x05040100
    v_mov_b32 v12, 0x07060302
    v_mov_b32 v48, -1
    v_mov_b32 v49, -1
    v_mov_b32 v50, -1
    v_mov_b32 v51, -1
    s_cmp_eq_u32 s30, 0
    s_cbranch_scc0 L_k0_arm1
    s_lshl_b32 s41, s2, 12
    s_add_u32 s41, s41, {HXF}
    buffer_store_dwordx4 v[48:51], v3, s[4:7], s41 offen
    buffer_store_dwordx4 v[48:51], v3, s[4:7], s41 offen offset:1024
    buffer_store_dwordx4 v[48:51], v3, s[4:7], s41 offen offset:2048
    buffer_store_dwordx4 v[48:51], v3, s[4:7], s41 offen offset:3072
    s_branch L_k0_arm2
L_k0_arm1:
    s_lshl_b32 s41, s2, 12
    s_add_u32 s41, s41, {KVP}
    buffer_store_dwordx4 v[48:51], v3, s[4:7], s41 offen
    buffer_store_dwordx4 v[48:51], v3, s[4:7], s41 offen offset:1024
    buffer_store_dwordx4 v[48:51], v3, s[4:7], s41 offen offset:2048
    buffer_store_dwordx4 v[48:51], v3, s[4:7], s41 offen offset:3072
    s_lshl_b32 s41, s2, 9
    s_add_u32 s41, s41, {HST}
    s_mov_b64 exec, 0xffffffff
    buffer_store_dwordx4 v[48:51], v3, s[4:7], s41 offen
    s_lshl_b32 s41, s2, 8
    s_add_u32 s41, s41, {ZP}
    s_mov_b64 exec, 0xffff
    buffer_store_dwordx4 v[48:51], v3, s[4:7], s41 offen
    s_mov_b64 exec, -1
L_k0_arm2:
    s_waitcnt vmcnt(0)
    """)
    for j in range(8):
        for p in range(4):
            a(f"v_perm_b32 v{48+4*j+p}, v{16+4*(2*p+1)+(j>>1)}, v{16+4*(2*p)+(j>>1)}, v{11+(j&1)}")
        a(f"buffer_store_dwordx4 v[{48+4*j}:{51+4*j}], v8, s[4:7], s35 offen offset:{j*16}")
    a("""
    s_cmp_eq_u32 s45, 0
    s_cbranch_scc1 L_k0_end
    """)
    for j in range(8):
        a(f"v_dot2_f32_bf16 v{16+j}, v{48+4*j}, v7, 0")
    for p in range(1, 4):
        for j in range(8):
            a(f"v_dot2_f32_bf16 v{16+j}, v{48+4*j+p}, v7, v{16+j}")
    for j in range(8):
        a(f"v_mfma_f32_16x16x4_f32 v[{80+4*j}:{83+4*j}], v6, v{16+j}, 0")
    for j in range(8):
        a(f"v_mov_b32 v{24+j}, v{80+4*j}")
    a("""
    v_lshlrev_b32 v9, 5, v5
    s_mov_b64 exec, 0xffff
    buffer_store_dwordx4 v[24:27], v9, s[4:7], s44 offen
    buffer_store_dwordx4 v[28:31], v9, s[4:7], s44 offen offset:16
    s_endpgm
    """)
    a.fence()
    a(f"""
L_k0_x:
    s_mov_b32 s8, s16
    s_mov_b32 s9, s17
    s_mov_b32 s10, 0x200000
    s_mov_b32 s11, 0x20000
    s_and_b32 s31, s2, 7                    ; xcd
    s_lshr_b32 s32, s2, 3                   ; j
    s_lshl_b32 s32, s32, 1
    s_add_u32 s32, s32, s30
    s_sub_u32 s32, s32, 2                   ; u 0..63
    s_lshl_b32 s33, s31, 4
    s_lshr_b32 s34, s32, 2
    s_add_u32 s33, s33, s34                 ; t
    s_and_b32 s34, s32, 3
    s_lshr_b32 s35, s33, 1
    s_lshl_b32 s35, s35, 5
    s_and_b32 s36, s33, 1
    s_add_u32 s35, s35, s36
    s_lshl_b32 s35, s35, 10
    s_lshl_b32 s36, s34, 8
    s_add_u32 s35, s35, s36
    v_lshlrev_b32 v8, 11, v5
    v_lshlrev_b32 v9, 3, v4
    v_add_u32 v8, v8, v9
    """)
    for q in range(4):
        a(f"buffer_load_dwordx2 v[{16+4*q}:{17+4*q}], v8, s[8:11], s35 offen offset:{q*64}")
        a(f"buffer_load_dwordx2 v[{18+4*q}:{19+4*q}], v8, s[8:11], s35 offen offset:{q*64+32}")
    a(f"""
    v_mov_b32 v40, 0
    v_mov_b32 v41, 0
    v_mov_b32 v42, 0
    v_mov_b32 v43, 0
    s_lshl_b32 s36, s2, 10
    s_add_u32 s36, s36, {ZB}
    s_cmp_eq_u32 s30, 2
    s_cbranch_scc0 L_k0_nozero
    buffer_store_dwordx4 v[40:43], v3, s[4:7], s36 offen
L_k0_nozero:
    s_lshl_b32 s36, s33, 14
    s_lshl_b32 s37, s34, 12
    s_add_u32 s36, s36, s37
    s_add_u32 s36, s36, {XF}
    s_lshl_b32 s37, s33, 11
    s_lshl_b32 s38, s34, 9
    s_add_u32 s37, s37, s38
    s_add_u32 s37, s37, {ST}
    v_mov_b32 v44, -1
    v_mov_b32 v45, -1
    v_mov_b32 v46, -1
    v_mov_b32 v47, -1
    s_add_u32 s38, s36, 0x200000
    s_add_u32 s39, s36, {OF - XF}
    s_add_u32 s40, s37, 0x40000
    """)
    for q in range(4):
        a(f"buffer_store_dwordx4 v[44:47], v3, s[4:7], s38 offen offset:{q*1024}")
        a(f"buffer_store_dwordx4 v[44:47], v3, s[4:7], s39 offen offset:{q*1024}")
    a("""
    s_mov_b64 exec, 0xffffffff
    buffer_store_dwordx4 v[44:47], v3, s[4:7], s40 offen
    s_mov_b64 exec, -1
    s_waitcnt vmcnt(9)
    """)
    for q in range(4):
        a(f"buffer_store_dwordx4 v[{16+4*q}:{19+4*q}], v3, s[4:7], s36 offen offset:{q*1024}")
    for q in range(4):
        a(f"v_dot2_f32_bf16 v{48+2*q}, v{16+4*q}, v7, 0")
        a(f"v_dot2_f32_bf16 v{49+2*q}, v{16+4*q}, v{16+4*q}, 0")
    for p in range(1, 4):
        for q in range(4):
            a(f"v_dot2_f32_bf16 v{48+2*q}, v{16+4*q+p}, v7, v{48+2*q}")
            a(f"v_dot2_f32_bf16 v{49+2*q}, v{16+4*q+p}, v{16+4*q+p}, v{49+2*q}")
    for i in range(8):
        a(f"v_mfma_f32_16x16x4_f32 v[{80+4*i}:{83+4*i}], v6, v{48+i}, 0")
    for i in range(8):
        a(f"v_mov_b32 v{56+i}, v{80+4*i}")
    a("""
    s_mov_b64 exec, 0xffff
    buffer_store_dwordx4 v[56:59], v3, s[4:7], s37 offen
    buffer_store_dwordx4 v[60:63], v3, s[4:7], s37 offen offset:256
L_k0_end:
    s_endpgm
    """)

if __name__ == "__main__":
    a = Asm()
    a.raw("; @launch kernel=prep_kernel grid=(256,1,1) block=(256,1,1) lds=0")
    a.raw('.amdgcn_target "amdgcn-amd-amdhsa--gfx950"\n.text')
    gen_k0(a)
    a.raw('.section .rodata,"a"')
    a.raw(kernel_desc("prep_kernel", 112))
    open("k0.s", "w").write(a.text())
```

```python
from asmlib import *
from layout import *
import sys

LOG2E = 0x3fb8aa3b
LOG2E_Q = 0x3eb8aa3b
LDS_WO = 98304

vL16, vLdsB, vLdsC, vZero, vOne, vOnef, vLane = 1, 2, 3, 4, 5, 6, 7
vId = 8
vPhi = 10
vOnes = 14
vCsA = 16
vCsB = 34
vRes = 52
vBias = 56
vX = 64
vAcc = 128
vW = 152
vT = 200
vX32, vX48, vRowB, vSt, vKvL = 244, 245, 246, 247, 248
vM, vR = 249, 250
vMv = 236
vRv = 240
vHalo = 251
NR = 12

class VM:
    def __init__(self, a): self.a = a; self.q = []
    def issue(self, tag): self.q.append(tag)
    def wait(self, tag):
        if tag not in self.q: return
        i = self.q.index(tag)
        n = len(self.q) - 1 - i
        self.a(f"s_waitcnt vmcnt({n})")
        self.q = self.q[i+1:]
    def wait_all(self):
        self.a("s_waitcnt vmcnt(0)"); self.q = []
    def reset(self): self.q = []

def interleave(*streams):
    out = []
    n = max(len(s) for s in streams)
    for i in range(n):
        for s in streams:
            if i < len(s): out.append(s[i])
    return out

class KM:
    def __init__(self, a, stop=None):
        self.a = a; self.vm = VM(a); self.uid = 0; self.stop = stop
    def lab(self, p):
        self.uid += 1; return f"L_{p}_{self.uid}"
    def poll(self, sreg, target):
        a = self.a; L = self.lab("poll"); D = self.lab("pd")
        a(f"""
        s_mov_b32 s56, 0
{L}:
        s_add_u32 s56, s56, 1
        s_cmp_gt_u32 s56, 0x40000
        s_cbranch_scc1 {D}
        buffer_load_dword v255, v{vZero}, s[4:7], {sreg} offen sc1
        s_waitcnt vmcnt(0)
        v_readfirstlane_b32 s53, v255
        s_cmp_ge_u32 s53, {target}
        s_cbranch_scc1 {D}
        s_sleep 1
        s_branch {L}
{D}:
        """)
        self.vm.reset()
    def dump(self, regs, slot):
        if not getattr(self, "dbg", False): return
        a = self.a
        a(f"s_lshl_b32 s57, s2, 3\ns_add_u32 s57, s57, s32\ns_lshl_b32 s57, s57, 14\ns_add_u32 s57, s57, 0x1800000\nv_lshlrev_b32 v254, 2, v{vLane}")
        for i, r in enumerate(regs):
            a(f"s_add_u32 s58, s57, {(slot+i)*256}\nbuffer_store_dword v{r}, v254, s[4:7], s58 offen")
        a("s_waitcnt vmcnt(0)")
    def stamp(self, k):
        if not getattr(self, "prof", False): return
        self.a(f"s_memtime s[70:71]\ns_waitcnt lgkmcnt(0)\ns_lshl_b32 s72, s39, 4\ns_add_u32 m0, s72, {k}\ns_nop 1\nv_writelane_b32 v232, s70, m0")
    def stamp_dump(self):
        if not getattr(self, "prof", False): return
        self.a(f"s_lshl_b32 s57, s2, 3\ns_add_u32 s57, s57, s32\ns_lshl_b32 s57, s57, 8\ns_add_u32 s57, s57, 0x1800000\nv_lshlrev_b32 v254, 2, v{vLane}\nbuffer_store_dword v232, v254, s[4:7], s57 offen")
    def signal(self, sreg):
        self.vm.wait_all()
        self.a(f"""
        s_mov_b64 exec, 1
        buffer_atomic_add v{vOne}, v{vZero}, s[4:7], {sreg} offen sc1
        s_mov_b64 exec, -1
        """)
        self.vm.issue("sig")
    def dma_w(self, sbase, nper, ldsbase):
        a = self.a
        a(f"s_mul_i32 s53, s32, {nper*1024}")
        a(f"s_add_u32 s52, {sbase}, s53")
        a(f"s_add_u32 s53, s53, {ldsbase}")
        for g in range(nper // 4):
            a(f"s_mov_b32 m0, s53")
            for i in range(4):
                a(f"buffer_load_dwordx4 v{vL16}, s[4:7], s52 offen offset:{i*1024} lds")
                self.vm.issue("dma")
            if g != nper // 4 - 1:
                a("s_add_u32 s52, s52, 4096\ns_add_u32 s53, s53, 4096")
    def mainloop(self, tiles, nks, wstride, xreg, addr_of, xtag=None, pre=None):
        a = self.a
        seq = [(ks, tl) for ks in range(nks) for tl in tiles]
        D = 8
        issued = 0
        def rd(i):
            ks, (nt, acc, tr) = seq[i]
            vb, off = addr_of(ks, nt)
            r = vW + 4*(i % NR)
            a(f"ds_read_b128 v[{r}:{r+3}], v{vb} offset:{off}")
        for i in range(len(seq)):
            while issued < min(len(seq), i + D):
                rd(issued); issued += 1
            ks, (nt, acc, tr) = seq[i]
            if xtag is not None and (i % len(tiles)) == 0: self.vm.wait((xtag, ks))
            a(f"s_waitcnt lgkmcnt({issued - i - 1})")
            r = vW + 4*(i % NR); x = xreg(ks)
            c = f"v[{acc}:{acc+3}]" if ks > 0 else "0"
            if tr: a(f"v_mfma_f32_16x16x32_bf16 v[{acc}:{acc+3}], v[{r}:{r+3}], v[{x}:{x+3}], {c}")
            else:  a(f"v_mfma_f32_16x16x32_bf16 v[{acc}:{acc+3}], v[{x}:{x+3}], v[{r}:{r+3}], {c}")
    def wq_addr(self, ks, nt):
        off = (ks*6 + nt)*1024
        return (vL16, off) if off < 49152 else (vLdsB, off - 49152)
    def stats(self, ld, vm_, vr_, t):
        a = self.a
        a(f"""
        v_add_f32 v{ld}, v{ld}, v{ld+2}
        v_add_f32 v{ld+1}, v{ld+1}, v{ld+3}
        v_add_f32 v{ld+4}, v{ld+4}, v{ld+6}
        v_add_f32 v{ld+5}, v{ld+5}, v{ld+7}
        v_add_f32 v{ld}, v{ld}, v{ld+4}
        v_add_f32 v{ld+1}, v{ld+1}, v{ld+5}
        v_mfma_f32_16x16x4_f32 v[{t}:{t+3}], v{vOnef}, v{ld}, 0
        v_mfma_f32_16x16x4_f32 v[{t+4}:{t+7}], v{vOnef}, v{ld+1}, 0
        v_mul_f32 v{t}, 0x3b000000, v{t}
        v_mul_f32 v{t+4}, 0x3b000000, v{t+4}
        v_fma_f32 v{t+4}, -v{t}, v{t}, v{t+4}
        v_max_f32 v{t+4}, 0, v{t+4}
        v_cvt_pk_bf16_f32 v{t+1}, v{t}, v{t+4}
        v_lshlrev_b32 v{vm_}, 16, v{t+1}
        v_and_b32 v{t+4}, 0xffff0000, v{t+1}
        v_add_f32 v{t+4}, 0x3727c5ac, v{t+4}
        v_cvt_pk_bf16_f32 v{t+4}, v{t+4}, v{t+4}
        v_lshlrev_b32 v{t+4}, 16, v{t+4}
        v_sqrt_f32 v{t+4}, v{t+4}
        v_cvt_pk_bf16_f32 v{t+4}, v{t+4}, v{t+4}
        v_lshlrev_b32 v{t+4}, 16, v{t+4}
        v_rcp_f32 v{vr_}, v{t+4}
        """)
    def stats_v(self, vm_, vr_):
        a = self.a
        for r in range(4):
            a(f"ds_bpermute_b32 v{vMv+r}, v{vRowB}, v{vm_} offset:{4*r}")
            a(f"ds_bpermute_b32 v{vRv+r}, v{vRowB}, v{vr_} offset:{4*r}")
    def scaleT(self, acc, cs, out, vm_=vM, vr_=vR):
        s = []
        for r in range(4): s.append(f"v_fma_f32 v{acc+r}, -v{vm_}, v{cs+r}, v{acc+r}")
        for r in range(4): s.append(f"v_mul_f32 v{acc+r}, v{acc+r}, v{vr_}")
        s.append(f"v_cvt_pk_bf16_f32 v{out}, v{acc}, v{acc+1}")
        s.append(f"v_cvt_pk_bf16_f32 v{out+1}, v{acc+2}, v{acc+3}")
        return s
    def scaleN(self, acc, cs, out):
        s = []
        for r in range(4): s.append(f"v_fma_f32 v{acc+r}, -v{vMv+r}, v{cs}, v{acc+r}")
        for r in range(4): s.append(f"v_mul_f32 v{acc+r}, v{acc+r}, v{vRv+r}")
        s.append(f"v_cvt_pk_bf16_f32 v{out}, v{acc}, v{acc+1}")
        s.append(f"v_cvt_pk_bf16_f32 v{out+1}, v{acc+2}, v{acc+3}")
        return s
    def round4(self, p, t):
        return [f"v_cvt_pk_bf16_f32 v{t}, v{p}, v{p+1}", f"v_cvt_pk_bf16_f32 v{t+1}, v{p+2}, v{p+3}",
                f"v_lshlrev_b32 v{p}, 16, v{t}", f"v_and_b32 v{p+1}, 0xffff0000, v{t}",
                f"v_lshlrev_b32 v{p+2}, 16, v{t+1}", f"v_and_b32 v{p+3}, 0xffff0000, v{t+1}"]
    def xlane(self, src, d):
        return [f"ds_swizzle_b32 v{d}, v{src} offset:0x401f",
                f"ds_bpermute_b32 v{d+1}, v{vX32}, v{src}",
                f"ds_bpermute_b32 v{d+2}, v{vX48}, v{src}"]
    def featmap(self, accs, css, outs, tb):
        a = self.a
        T = [tb, tb + 24]
        a("\n".join(interleave(*[self.scaleT(accs[h], css[h], T[h]+4) for h in range(2)])))
        for h in range(2):
            a(f"v_mfma_f32_16x16x16_bf16 v[{T[h]}:{T[h]+3}], v[{vPhi+2*h}:{vPhi+2*h+1}], v[{T[h]+4}:{T[h]+5}], 0")
        st = []
        for h in range(2):
            t = T[h]
            s = self.round4(t, t+4)
            s += [f"v_max_f32 v{t+6}, v{t}, v{t+1}", f"v_min_f32 v{t+7}, v{t}, v{t+1}",
                  f"v_max_f32 v{t+8}, v{t+2}, v{t+3}", f"v_min_f32 v{t+9}, v{t+2}, v{t+3}",
                  f"v_max_f32 v{t+6}, v{t+6}, v{t+8}", f"v_min_f32 v{t+7}, v{t+7}, v{t+9}"]
            s += self.xlane(t+6, t+8) + self.xlane(t+7, t+11)
            st.append(s)
        a("\n".join(interleave(*st)))
        a("s_waitcnt lgkmcnt(0)")
        st = []
        for h in range(2):
            t = T[h]
            s = [f"v_max_f32 v{t+6}, v{t+6}, v{t+8}", f"v_min_f32 v{t+7}, v{t+7}, v{t+11}",
                 f"v_max_f32 v{t+9}, v{t+9}, v{t+10}", f"v_min_f32 v{t+12}, v{t+12}, v{t+13}",
                 f"v_max_f32 v{t+6}, v{t+6}, v{t+9}", f"v_min_f32 v{t+7}, v{t+7}, v{t+12}",
                 f"v_mul_f32 v{t+6}, s60, v{t+6}", f"v_mul_f32 v{t+7}, s60, v{t+7}"]
            for r in range(4):
                s.append(f"v_fma_f32 v{t+14+r}, v{t+r}, s60, -v{t+6}")
                s.append(f"v_fma_f32 v{t+18+r}, -v{t+r}, s60, v{t+7}")
            for r in range(8): s.append(f"v_exp_f32 v{t+14+r}, v{t+14+r}")
            s += [f"v_add_f32 v{t+4}, v{t+14}, v{t+15}", f"v_add_f32 v{t+5}, v{t+18}, v{t+19}",
                  f"v_add_f32 v{t+6}, v{t+16}, v{t+17}", f"v_add_f32 v{t+7}, v{t+20}, v{t+21}",
                  f"v_add_f32 v{t+4}, v{t+4}, v{t+6}", f"v_add_f32 v{t+5}, v{t+5}, v{t+7}",
                  f"v_mfma_f32_16x16x4_f32 v[{t}:{t+3}], v{vOnef}, v{t+4}, 0",
                  f"v_mfma_f32_16x16x4_f32 v[{t+8}:{t+11}], v{vOnef}, v{t+5}, 0"]
            st.append(s)
        a("\n".join(interleave(*st)))
        st = []
        for h in range(2):
            t = T[h]; o = outs[h]
            s = [f"v_rcp_f32 v{t}, v{t}", f"v_rcp_f32 v{t+8}, v{t+8}"]
            for r in range(4):
                s.append(f"v_mul_f32 v{t+14+r}, v{t+14+r}, v{t}")
                s.append(f"v_mul_f32 v{t+18+r}, v{t+18+r}, v{t+8}")
            for r in range(4):
                s.append(f"v_cvt_pk_bf16_f32 v{o+r}, v{t+14+2*r}, v{t+15+2*r}")
            st.append(s)
        a("\n".join(interleave(*st)))

    def gen(self, name):
        a = self.a; vm = self.vm
        a.raw(f".globl {name}\n.p2align 8\n.type {name},@function\n{name}:")
        a(f"""
        s_cmp_ge_u32 s2, 256
        s_cbranch_scc1 L_km_end
        s_load_dwordx2 s[16:17], s[0:1], 16     ; w_phi
        s_load_dwordx2 s[18:19], s[0:1], 56     ; out
        s_load_dwordx2 s[20:21], s[0:1], 72     ; ws
        v_lshrrev_b32 v{vT}, 6, v0
        v_and_b32 v{vLane}, 63, v0
        v_readfirstlane_b32 s32, v{vT}          ; wave
        v_lshlrev_b32 v{vL16}, 4, v{vLane}
        v_add_u32 v{vLdsB}, 49152, v{vL16}
        v_mov_b32 v{vZero}, 0
        v_mov_b32 v{vOne}, 1
        v_mov_b32 v{vOnef}, 1.0
        v_mov_b32 v{vOnes}, 0x3f803f80
        v_mov_b32 v{vOnes+1}, 0x3f803f80
        s_and_b32 s30, s2, 7
        s_lshr_b32 s31, s2, 3
        s_lshl_b32 s30, s30, 1
        s_and_b32 s53, s31, 1
        s_add_u32 s30, s30, s53                 ; rb
        s_lshr_b32 s31, s31, 1                  ; ct
        s_lshl_b32 s33, s30, 3
        s_add_u32 s33, s33, s32                 ; t
        s_lshl_b32 s34, s30, 1
        s_and_b32 s53, s31, 1
        s_add_u32 s34, s34, s53                 ; hb
        s_lshr_b32 s35, s31, 1                  ; c8
        s_lshr_b32 s36, s32, 1                  ; rt
        s_and_b32 s37, s32, 1                   ; kh
        s_lshl_b32 s38, s34, 2
        s_add_u32 s38, s38, s36                 ; t2
        s_mov_b32 s39, 0
        s_mov_b32 s60, {LOG2E}
        s_mov_b32 s61, {LOG2E_Q}
        s_waitcnt lgkmcnt(0)
        s_mov_b32 s4, s20
        s_mov_b32 s5, s21
        s_mov_b32 s6, {WS_SIZE}
        s_mov_b32 s7, 0x20000
        s_mov_b32 s8, s18
        s_mov_b32 s9, s19
        s_mov_b32 s10, 0x200000
        s_mov_b32 s11, 0x20000
        s_mov_b32 s12, s16
        s_mov_b32 s13, s17
        s_mov_b32 s14, 16384
        s_mov_b32 s15, 0x20000
        s_mul_i32 s62, s31, 98304
        s_lshl_b32 s63, s35, 16
        """)
        self.stamp(15)
        a(f"""
        v_lshrrev_b32 v{vT+1}, 4, v{vLane}      ; g
        v_and_b32 v{vT+2}, 15, v{vLane}         ; i
        v_lshlrev_b32 v{vT+3}, 7, v{vT+1}
        v_lshlrev_b32 v{vT+4}, 1, v{vT+2}
        v_add_u32 v{vT+3}, v{vT+3}, v{vT+4}
        s_lshl_b32 s53, s31, 10
        """)
        for h in range(2):
            for e in range(4):
                a(f"buffer_load_ushort v{vW+16+4*h+e}, v{vT+3}, s[12:15], s53 offen offset:{h*512+e*32}")
                vm.issue("phi")
        vm.q[-1] = "philast"
        self.dma_w("s62", 12, 0)
        a(f"""
        v_lshrrev_b32 v{vT+1}, 4, v{vLane}      ; g
        v_and_b32 v{vT+2}, 15, v{vLane}         ; i
        s_lshl_b32 s53, s37, 15
        s_add_u32 s53, s53, {LDS_WO}
        v_add_u32 v{vLdsC}, s53, v{vL16}
        v_xor_b32 v{vX32}, 32, v{vLane}
        v_lshlrev_b32 v{vX32}, 2, v{vX32}
        v_xor_b32 v{vX48}, 48, v{vLane}
        v_lshlrev_b32 v{vX48}, 2, v{vX48}
        v_lshlrev_b32 v{vRowB}, 4, v{vT+1}      ; (4g)*4
        v_lshlrev_b32 v{vSt}, 9, v{vT+1}
        v_lshlrev_b32 v{vT+3}, 4, v{vT+2}
        v_add_u32 v{vSt}, v{vSt}, v{vT+3}       ; g*512 + i*16
        v_lshrrev_b32 v{vT+3}, 2, v{vT+2}
        v_lshlrev_b32 v{vKvL}, 8, v{vT+3}
        v_lshlrev_b32 v{vT+3}, 6, v{vT+1}
        v_add_u32 v{vKvL}, v{vKvL}, v{vT+3}
        v_and_b32 v{vT+3}, 3, v{vT+2}
        v_lshlrev_b32 v{vT+3}, 2, v{vT+3}
        v_add_u32 v{vKvL}, v{vKvL}, v{vT+3}
        v_add_u32 v{vKvL}, {LDS_WO}, v{vKvL}
        """)
        a(f"""
        s_lshl_b32 s64, s38, 4
        s_lshl_b32 s53, s35, 1
        s_add_u32 s64, s64, s53
        s_add_u32 s64, s64, s37
        s_lshl_b32 s64, s64, 10
        s_add_u32 s53, s64, {XF}
        buffer_load_dwordx4 v[{vRes}:{vRes+3}], v{vL16}, s[4:7], s53 offen
        """)
        vm.issue("res")
        a(f"""
        v_lshlrev_b32 v{vT+3}, 2, v{vT+1}
        v_sub_u32 v{vT+3}, v{vT+2}, v{vT+3}     ; j-4g
        v_mov_b32 v{vT+4}, 0x3f80
        v_mov_b32 v{vT+5}, 0x3f800000
        v_cmp_eq_u32 vcc, 0, v{vT+3}
        v_cndmask_b32 v{vId}, 0, v{vT+4}, vcc
        v_cmp_eq_u32 vcc, 1, v{vT+3}
        v_cndmask_b32 v{vId}, v{vId}, v{vT+5}, vcc
        v_cmp_eq_u32 vcc, 2, v{vT+3}
        v_cndmask_b32 v{vId+1}, 0, v{vT+4}, vcc
        v_cmp_eq_u32 vcc, 3, v{vT+3}
        v_cndmask_b32 v{vId+1}, v{vId+1}, v{vT+5}, vcc
        v_mov_b32 v{vT+4}, 0xf149f2ca
        s_cmp_lt_u32 s33, 2
        s_cselect_b32 s53, -100, -9
        """)
        for r in range(4):
            a(f"""
            v_subrev_u32 v{vT+5}, {r}, v{vT+3}
            v_cmp_gt_u32 vcc, 8, v{vT+5}
            v_cndmask_b32 v{vBias+r}, v{vT+4}, 0, vcc
            v_cmp_ge_i32 vcc, s53, v{vT+5}
            v_cndmask_b32 v{vBias+4+r}, v{vT+4}, 0, vcc
            """)
        vm.wait("philast")
        for i in range(4): a(f"v_lshl_or_b32 v{vPhi+i}, v{vW+17+2*i}, 16, v{vW+16+2*i}")
        a(f"""
        v_cmp_le_u32 vcc, 96, v0
        v_subrev_u32 v{vT+5}, 96, v0
        v_cndmask_b32 v{vT+5}, v0, v{vT+5}, vcc          ; c
        v_mov_b32 v{vT+6}, 98304
        v_cndmask_b32 v{vT+6}, 0, v{vT+6}, vcc
        v_lshrrev_b32 v{vT+7}, 5, v{vT+5}
        v_lshlrev_b32 v{vT+7}, 11, v{vT+7}
        v_add_u32 v{vT+6}, v{vT+6}, v{vT+7}
        v_and_b32 v{vT+7}, 31, v{vT+5}
        v_lshlrev_b32 v{vT+7}, 2, v{vT+7}
        v_add_u32 v{vT+6}, v{vT+6}, v{vT+7}
        s_lshl_b32 s53, s31, 7
        s_add_u32 s53, s53, {CSP}
        s_cmp_ge_u32 s32, 3
        s_cbranch_scc1 L_cs_skip
        """)
        for k in range(16):
            a(f"buffer_load_dword v{vW+k}, v{vT+6}, s[4:7], s53 offen")
            if k != 15: a("s_add_u32 s53, s53, 6144")
        a("s_waitcnt vmcnt(0)")
        for st in (8, 4, 2, 1):
            for k in range(st): a(f"v_add_f32 v{vW+k}, v{vW+k}, v{vW+k+st}")
        a(f"""
        v_lshlrev_b32 v{vT+5}, 2, v0
        v_add_u32 v{vT+5}, {LDS_WO}, v{vT+5}
        ds_write_b32 v{vT+5}, v{vW}
        s_waitcnt lgkmcnt(0)
L_cs_skip:
        s_barrier
        v_add_u32 v{vT+5}, {LDS_WO}, v{vRowB}    ; g*16
        v_lshlrev_b32 v{vT+6}, 2, v{vT+2}
        v_add_u32 v{vT+6}, {LDS_WO}, v{vT+6}     ; i*4
        """)
        for m, base in ((0, vCsA), (1, vCsB)):
            for nt in range(4):
                a(f"ds_read_b128 v[{base+4*nt}:{base+4*nt+3}], v{vT+5} offset:{m*384+nt*64}")
            for nt in range(4, 6):
                a(f"ds_read_b32 v{base+16+nt-4}, v{vT+6} offset:{m*384+nt*64}")
        a("s_waitcnt lgkmcnt(0)\ns_barrier")
        a.fence()
        a(f"""
L_layer:
        s_lshl_b32 s53, s39, 21                 ; l*2MB
        s_lshl_b32 s54, s33, 14
        s_add_u32 s40, s53, s54
        s_add_u32 s40, s40, {XF}                ; sXin
        s_lshl_b32 s55, s31, 10
        s_add_u32 s42, s53, s54
        s_add_u32 s42, s42, s55
        s_add_u32 s42, s42, {OF}                ; sOout
        s_lshl_b32 s54, s38, 14
        s_lshl_b32 s55, s37, 13
        s_add_u32 s43, s53, s54
        s_add_u32 s43, s43, s55
        s_add_u32 s43, s43, {OF}                ; sOin
        s_add_u32 s44, s53, s64
        s_add_u32 s44, s44, {XF + 0x200000}     ; sXout
        s_lshl_b32 s53, s39, 18
        s_lshl_b32 s54, s33, 11
        s_add_u32 s41, s53, s54
        s_add_u32 s41, s41, {ST}                ; sSTin
        s_lshl_b32 s54, s38, 11
        s_add_u32 s45, s53, s54
        s_lshr_b32 s54, s35, 1
        s_lshl_b32 s54, s54, 9
        s_add_u32 s45, s45, s54
        s_and_b32 s54, s35, 1
        s_lshl_b32 s54, s54, 8
        s_add_u32 s45, s45, s54
        s_lshl_b32 s54, s37, 3
        s_add_u32 s45, s45, s54
        s_add_u32 s45, s45, {ST + 0x40000}
        ; counters
        s_lshl_b32 s53, s39, 7
        s_add_u32 s54, s53, s33
        s_lshl_b32 s46, s54, 6
        s_add_u32 s46, s46, {CNT_X}             ; wait X (l, t)
        s_lshl_b32 s54, s54, 1
        s_lshr_b32 s55, s31, 3
        s_add_u32 s54, s54, s55
        s_lshl_b32 s47, s54, 6
        s_add_u32 s47, s47, {CNT_O}
        s_add_u32 s54, s53, s38
        s_lshl_b32 s49, s54, 6
        s_add_u32 s49, s49, {CNT_X + 128*64}    ; signal X (l+1, t2)
        s_lshl_b32 s54, s54, 1
        s_add_u32 s54, s54, s37
        s_lshl_b32 s48, s54, 6
        s_add_u32 s48, s48, {CNT_O}
        s_lshr_b32 s53, s39, 1
        s_lshl_b32 s54, s53, 4
        s_add_u32 s54, s54, s31
        s_lshl_b32 s50, s54, 6
        s_add_u32 s50, s50, {CNT_KV}
        s_mul_i32 s51, s53, {KVSZ}
        s_mul_i32 s54, s31, 4352
        s_add_u32 s51, s51, s54
        s_add_u32 s51, s51, {KV}
        """)
        self.stamp(0)
        a("""
        s_cmp_eq_u32 s39, 0
        s_cbranch_scc1 L_nopollx
        """)
        self.poll("s46", 16)
        a.fence()
        a("L_nopollx:")
        self.stamp(1)
        vm.reset()
        for ks in range(16):
            if ks % 4 == 0 and ks: a("s_add_u32 s40, s40, 4096")
            a(f"buffer_load_dwordx4 v[{vX+4*ks}:{vX+4*ks+3}], v{vL16}, s[4:7], s40 offen offset:{(ks%4)*1024} sc1")
            vm.issue(("x", ks))
        a(f"buffer_load_dwordx4 v[{vT+24}:{vT+27}], v{vSt}, s[4:7], s41 offen sc1"); vm.issue("st0")
        a(f"buffer_load_dwordx4 v[{vT+28}:{vT+31}], v{vSt}, s[4:7], s41 offen offset:256 sc1"); vm.issue("st1")
        a("""
        s_and_b32 s53, s39, 1
        s_cmp_eq_u32 s53, 1
        s_cbranch_scc1 L_B
        """)
        saved_q = list(vm.q)
        self.phaseA()
        a("s_branch L_WO")
        a.fence()
        a("L_B:")
        vm.q = list(saved_q)
        self.phaseB()
        a.fence()
        a("L_WO:")
        vm.reset()
        self.phaseWo()
        a("L_km_end:\ns_endpgm")

    def phaseA(self):
        a = self.a; vm = self.vm
        a(f"""
        s_cmp_lg_u32 s32, 0
        s_cbranch_scc1 L_A_nozero
        v_mov_b32 v{vT}, 0
        v_mov_b32 v{vT+1}, 0
        v_mov_b32 v{vT+2}, 0
        v_mov_b32 v{vT+3}, 0
        """)
        for i in range(5): a(f"ds_write_b128 v{vLdsC}, v[{vT}:{vT+3}] offset:{i*1024}")
        a("s_waitcnt lgkmcnt(0)\nL_A_nozero:")
        vm.wait(("x", 0))
        a("s_barrier")
        self.stamp(2)
        K0, K1, V0, V1, Q0, Q1 = [vAcc + 4*i for i in range(6)]
        self.mainloop([(2, K0, True), (3, K1, True), (4, V0, False), (5, V1, False)], 16, 6, lambda ks: vX+4*ks, self.wq_addr, xtag="x")
        self.stamp(3)
        vm.wait("st1")
        self.stats(vT+24, vM, vR, vT)
        self.stats_v(vM, vR)
        a("s_waitcnt lgkmcnt(0)")
        self.dump([vM, vR] + list(range(vMv, vMv+8)) + list(range(K0, K0+16)) + list(range(vCsA, vCsA+18)) + [vPhi, vPhi+1, vPhi+2, vPhi+3, vId, vId+1], 0)
        PK = [vT+0, vT+4]
        self.featmap([K0, K1], [vCsA+8, vCsA+12], PK, vW)
        self.dump(list(range(vT, vT+8)), 50)
        VP = [vT+8, vT+10]
        a("\n".join(interleave(self.scaleN(V0, vCsA+16, VP[0]), self.scaleN(V1, vCsA+17, VP[1]))))
        for h in range(2):
            for sgn in range(2):
                d = vW + 4*(2*h+sgn)
                a(f"v_mfma_f32_16x16x16_bf16 v[{d}:{d+3}], v[{PK[h]+2*sgn}:{PK[h]+2*sgn+1}], v[{vId}:{vId+1}], 0")
        for i in range(4):
            d = vW + 4*i
            a(f"v_cvt_pk_bf16_f32 v{vW+16+2*i}, v{d}, v{d+1}")
            a(f"v_cvt_pk_bf16_f32 v{vW+17+2*i}, v{d+2}, v{d+3}")
        for i in range(4):
            h = i >> 1; b = vW + 16 + 2*i
            a(f"v_mfma_f32_16x16x16_bf16 v[{vW+24+4*i}:{vW+27+4*i}], v[{VP[h]}:{VP[h]+1}], v[{b}:{b+1}], 0")
            a(f"v_mfma_f32_16x16x16_bf16 v[{vW+4*i}:{vW+3+4*i}], v[{vOnes}:{vOnes+1}], v[{b}:{b+1}], 0")
        for i in range(4):
            h = i >> 1; sgn = i & 1
            for r in range(4):
                a(f"ds_add_f32 v{vKvL}, v{vW+24+4*i+r} offset:{h*2176 + sgn*1024 + 16*r}")
        a(f"""
        v_lshlrev_b32 v{vT+12}, 2, v{vLane}
        v_add_u32 v{vT+12}, {LDS_WO}, v{vT+12}
        s_mov_b64 exec, 0xffff
        """)
        for i in range(4):
            h = i >> 1; sgn = i & 1
            a(f"ds_add_f32 v{vT+12}, v{vW+4*i} offset:{h*2176 + 2048 + sgn*64}")
        a("""
        s_mov_b64 exec, -1
        s_waitcnt lgkmcnt(0)
        s_barrier
        s_cmp_lg_u32 s32, 0
        s_cbranch_scc1 L_A_noatom
        """)
        for i in range(17): a(f"ds_read_b32 v{vW+i}, v{vT+12} offset:{i*256}")
        a(f"v_lshlrev_b32 v{vT+13}, 2, v{vLane}\ns_add_u32 s53, s51, 4096\ns_waitcnt lgkmcnt(0)")
        for i in range(16): a(f"buffer_atomic_add_f32 v{vW+i}, v{vT+13}, s[4:7], s51 offen offset:{i*256}")
        a(f"buffer_atomic_add_f32 v{vW+16}, v{vT+13}, s[4:7], s53 offen")
        a.fence()
        a("L_A_noatom:")
        self.stamp(4)
        self.mainloop([(0, Q0, True), (1, Q1, True)], 16, 6, lambda ks: vX+4*ks, self.wq_addr)
        PQ = [vT+0, vT+4]
        self.featmap([Q0, Q1], [vCsA+0, vCsA+4], PQ, vW)
        a("""
        s_cmp_lg_u32 s32, 0
        s_cbranch_scc1 L_A_nosig
        """)
        self.signal("s50")
        a("L_A_nosig:")
        self.stamp(5)
        vm.reset()
        a(f"s_add_u32 s54, s63, {WO_A}")
        self.dma_w("s54", 8, LDS_WO)
        self.poll("s50", 16)
        self.stamp(6)
        for h in range(2):
            b = vW + 16*h
            a(f"buffer_load_dwordx4 v[{b}:{b+3}], v{vL16}, s[4:7], s51 offen offset:{h*2176} sc1")
            a(f"buffer_load_dwordx4 v[{b+4}:{b+7}], v{vL16}, s[4:7], s51 offen offset:{h*2176+1024} sc1")
        a("s_add_u32 s53, s51, 2048")
        for h in range(2):
            b = vW + 16*h
            a(f"buffer_load_dwordx4 v[{b+8}:{b+11}], v{vRowB}, s[4:7], s53 offen offset:{h*2176} sc1")
            a(f"buffer_load_dwordx4 v[{b+12}:{b+15}], v{vRowB}, s[4:7], s53 offen offset:{h*2176+64} sc1")
        a("s_waitcnt vmcnt(0)")
        for h in range(2):
            b = vW + 16*h; o = vW + 32 + 8*h
            for i in range(8): a(f"v_cvt_pk_bf16_f32 v{o+i}, v{b+2*i}, v{b+2*i+1}")
        for h in range(2):
            o = vW + 32 + 8*h; d = vW + 8*h
            a(f"v_mfma_f32_16x16x32_bf16 v[{d}:{d+3}], v[{o}:{o+3}], v[{PQ[h]}:{PQ[h]+3}], 0")
            a(f"v_mfma_f32_16x16x32_bf16 v[{d+4}:{d+7}], v[{o+4}:{o+7}], v[{PQ[h]}:{PQ[h]+3}], 0")
        st = []
        for h in range(2):
            d = vW + 8*h; t = vW + 16 + 4*h
            s = [f"v_cvt_pk_bf16_f32 v{d+4}, v{d+4}, v{d+4}", f"v_lshlrev_b32 v{d+4}, 16, v{d+4}",
                 f"v_add_f32 v{d+4}, 0x358637bd, v{d+4}", f"v_cvt_pk_bf16_f32 v{d+4}, v{d+4}, v{d+4}",
                 f"v_lshlrev_b32 v{d+4}, 16, v{d+4}", f"v_rcp_f32 v{d+4}, v{d+4}"]
            s += self.round4(d, t)
            for r in range(4): s.append(f"v_mul_f32 v{d+r}, v{d+r}, v{d+4}")
            s += [f"v_cvt_pk_bf16_f32 v{vT+8+2*h}, v{d}, v{d+1}", f"v_cvt_pk_bf16_f32 v{vT+9+2*h}, v{d+2}, v{d+3}"]
            st.append(s)
        a("\n".join(interleave(*st)))
        a(f"buffer_store_dwordx4 v[{vT+8}:{vT+11}], v{vL16}, s[4:7], s42 offen sc1")
        self.signal("s47")

    def phaseB(self):
        a = self.a; vm = self.vm
        HX = LDS_WO + 32768 + 4096
        a(f"""
        s_cmp_ge_u32 s32, 2
        s_cbranch_scc1 L_B_nozero
        v_mov_b32 v{vT}, 0
        v_mov_b32 v{vT+1}, 0
        v_mov_b32 v{vT+2}, 0
        v_mov_b32 v{vT+3}, 0
        s_lshl_b32 s53, s32, 13
        s_add_u32 s53, s53, {LDS_WO}
        v_add_u32 v{vT+4}, s53, v{vL16}
        ds_write_b128 v{vT+4}, v[{vT}:{vT+3}]
        ds_write_b128 v{vT+4}, v[{vT}:{vT+3}] offset:1024
        s_waitcnt lgkmcnt(0)
L_B_nozero:
        s_cmp_lt_u32 s32, 4
        s_cselect_b32 s65, 1, 0
        s_cmp_eq_u32 s30, 0
        s_cselect_b32 s65, 0, s65
        s_cmp_eq_u32 s65, 0
        s_cbranch_scc1 L_B_nohalo1
        s_lshl_b32 s54, s32, 6
        s_sub_u32 s54, s46, s54
        s_sub_u32 s55, s54, 128
        s_sub_u32 s54, s54, 64
        """)
        saved = list(vm.q)
        self.poll("s55", 16)
        self.poll("s54", 16)
        vm.q = saved
        a(f"""
        v_bfe_u32 v{vT}, v{vLane}, 3, 1
        v_lshlrev_b32 v{vT+1}, 14, v{vT}
        v_or_b32 v{vT+2}, 128, v{vL16}
        v_add_u32 v{vT+1}, v{vT+1}, v{vT+2}
        s_add_u32 s54, s32, 2
        s_lshl_b32 s54, s54, 14
        s_sub_u32 s54, s40, s54
        s_sub_u32 s54, s54, 12288
        s_lshl_b32 s55, s32, 12
        s_add_u32 s54, s54, s55
        s_lshl_b32 s55, s32, 13
        s_add_u32 s55, s55, {HX}
        s_mov_b32 m0, s55
        """)
        for i in range(4):
            a(f"buffer_load_dwordx4 v{vT+1}, s[4:7], s54 offen offset:{i*1024} sc1 lds")
        a(f"""
        v_lshlrev_b32 v{vT+1}, 11, v{vT}
        v_or_b32 v{vT+2}, 128, v{vSt}
        v_add_u32 v{vT+1}, v{vT+1}, v{vT+2}
        s_add_u32 s54, s32, 2
        s_lshl_b32 s54, s54, 11
        s_sub_u32 s54, s41, s54
        buffer_load_dwordx4 v[{vT+16}:{vT+19}], v{vT+1}, s[4:7], s54 offen sc1
        buffer_load_dwordx4 v[{vT+20}:{vT+23}], v{vT+1}, s[4:7], s54 offen offset:256 sc1
        s_waitcnt vmcnt(0)
L_B_nohalo1:
        """)
        vm.wait(("x", 0))
        a("s_barrier")
        self.stamp(2)
        Q0, Q1, K0, K1, V0, V1 = [vAcc + 4*i for i in range(6)]
        self.mainloop([(0, Q0, True), (1, Q1, True), (2, K0, True), (3, K1, True), (4, V0, False), (5, V1, False)], 16, 6, lambda ks: vX+4*ks, self.wq_addr, xtag="x")
        self.stamp(3)
        vm.wait("st1")
        a(f"""
        s_cmp_eq_u32 s65, 0
        s_cbranch_scc1 L_B_nohalo2
        v_add_u32 v{vHalo}, {HX}, v{vL16}
        s_add_u32 s53, s32, 2
        s_lshl_b32 s53, s53, 10
        v_add_u32 v{vHalo+1}, s53, v{vL16}
        v_add_u32 v{vHalo+2}, s53, v{vLdsB}
        """)
        for ks in range(16): a(f"ds_read_b128 v[{vX+4*ks}:{vX+4*ks+3}], v{vHalo} offset:{(ks>>2)*8192+(ks&3)*1024}")
        self.stats(vT+16, vHalo+3, vHalo+4, vT)
        self.stats_v(vHalo+3, vHalo+4)
        a("s_waitcnt lgkmcnt(0)")
        def haddr(ks, nt):
            off = ks*6*1024
            return (vHalo+1, off) if off < 49152 else (vHalo+2, off - 49152)
        HA = vT + 8
        a("s_cmp_ge_u32 s32, 2\ns_cbranch_scc1 L_B_halov")
        self.mainloop([(0, HA, True)], 16, 6, lambda ks: vX+4*ks, haddr)
        for r in range(4):
            a(f"s_cmp_eq_u32 s32, 0\ns_cselect_b64 vcc, -1, 0\nv_cndmask_b32 v{vT+12+r}, v{vCsB+12+r}, v{vCsB+8+r}, vcc")
        a("\n".join(self.scaleT(HA, vT+12, vT+16, vHalo+3, vHalo+4)))
        a(f"""
        v_bfe_u32 v{vT}, v{vLane}, 3, 1
        v_lshlrev_b32 v{vT}, 13, v{vT}
        v_or_b32 v{vT+1}, 128, v{vL16}
        v_add_u32 v{vT}, v{vT}, v{vT+1}
        s_lshl_b32 s53, s32, 3
        s_add_u32 s53, s53, {LDS_WO}
        v_add_u32 v{vT}, s53, v{vT}
        ds_write_b64 v{vT}, v[{vT+16}:{vT+17}]
        s_branch L_B_nohalo2
        """)
        a.fence()
        a("L_B_halov:")
        self.mainloop([(0, HA, False)], 16, 6, lambda ks: vX+4*ks, haddr)
        a(f"s_cmp_eq_u32 s32, 2\ns_cselect_b64 vcc, -1, 0\nv_cndmask_b32 v{vT+12}, v{vCsB+17}, v{vCsB+16}, vcc")
        a("\n".join(self.scaleN(HA, vT+12, vT+16)))
        a(f"""
        v_lshrrev_b32 v{vT}, 5, v{vLane}
        v_lshlrev_b32 v{vT}, 13, v{vT}
        v_or_b32 v{vT+1}, 512, v{vL16}
        v_add_u32 v{vT}, v{vT}, v{vT+1}
        s_lshl_b32 s53, s32, 3
        s_add_u32 s53, s53, {LDS_WO + 1024 - 16}
        v_add_u32 v{vT}, s53, v{vT}
        ds_write_b64 v{vT}, v[{vT+16}:{vT+17}]
        """)
        a.fence()
        a("L_B_nohalo2:")
        self.stamp(4)
        self.stats(vT+24, vM, vR, vT)
        self.stats_v(vM, vR)
        QP = vW; KP = vW + 4; VPk = vW + 8
        a("\n".join(interleave(self.scaleT(K0, vCsB+8, KP), self.scaleT(K1, vCsB+12, KP+2),
                               self.scaleT(Q0, vCsB+0, QP), self.scaleT(Q1, vCsB+4, QP+2))))
        a("s_waitcnt lgkmcnt(0)")
        a("\n".join(interleave(self.scaleN(V0, vCsB+16, VPk), self.scaleN(V1, vCsB+17, VPk+2))))
        a(f"""
        s_lshl_b32 s53, s32, 13
        s_add_u32 s53, s53, {LDS_WO}
        v_add_u32 v{vT}, s53, v{vL16}
        s_cmp_ge_u32 s32, 6
        s_cbranch_scc1 L_B_nowr
        ds_write_b128 v{vT}, v[{KP}:{KP+3}] offset:16384
        ds_write_b128 v{vT}, v[{VPk}:{VPk+3}] offset:17408
L_B_nowr:
        s_waitcnt lgkmcnt(0)
        s_barrier
        ds_read_b128 v[{vW+12}:{vW+15}], v{vT}
        ds_read_b128 v[{vW+16}:{vW+19}], v{vT} offset:1024
        """)
        self.stamp(5)
        KPp = vW + 12; VPp = vW + 16
        S = [vW + 20, vW + 28]
        for h in range(2):
            a(f"v_mfma_f32_16x16x16_bf16 v[{S[h]}:{S[h]+3}], v[{KP+2*h}:{KP+2*h+1}], v[{QP+2*h}:{QP+2*h+1}], 0")
        a("s_waitcnt lgkmcnt(0)")
        for h in range(2):
            a(f"v_mfma_f32_16x16x16_bf16 v[{S[h]+4}:{S[h]+7}], v[{KPp+2*h}:{KPp+2*h+1}], v[{QP+2*h}:{QP+2*h+1}], 0")
        AV = [vT+0, vT+4]
        for h in range(2):
            a(f"v_mov_b32 v{AV[h]}, v{VPp+2*h}\nv_mov_b32 v{AV[h]+1}, v{VPp+2*h+1}\nv_mov_b32 v{AV[h]+2}, v{VPk+2*h}\nv_mov_b32 v{AV[h]+3}, v{VPk+2*h+1}")
        st = []
        for h in range(2):
            s_ = S[h]; t = vT + 8 + 8*h
            s = self.round4(s_, t) + self.round4(s_+4, t+2)
            for r in range(8): s.append(f"v_add_f32 v{s_+r}, v{s_+r}, v{vBias+r}")
            s += [f"v_max_f32 v{t}, v{s_}, v{s_+1}", f"v_max_f32 v{t+1}, v{s_+2}, v{s_+3}",
                  f"v_max_f32 v{t+2}, v{s_+4}, v{s_+5}", f"v_max_f32 v{t+3}, v{s_+6}, v{s_+7}",
                  f"v_max_f32 v{t}, v{t}, v{t+1}", f"v_max_f32 v{t+2}, v{t+2}, v{t+3}", f"v_max_f32 v{t}, v{t}, v{t+2}"]
            s += self.xlane(t, t+1)
            st.append(s)
        a("\n".join(interleave(*st)))
        a("s_waitcnt lgkmcnt(0)")
        st = []
        for h in range(2):
            s_ = S[h]; t = vT + 8 + 8*h
            s = [f"v_max_f32 v{t}, v{t}, v{t+1}", f"v_max_f32 v{t+2}, v{t+2}, v{t+3}", f"v_max_f32 v{t}, v{t}, v{t+2}",
                 f"v_mul_f32 v{t}, s61, v{t}"]
            for r in range(8): s.append(f"v_fma_f32 v{s_+r}, v{s_+r}, s61, -v{t}")
            for r in range(8): s.append(f"v_exp_f32 v{s_+r}, v{s_+r}")
            s += [f"v_add_f32 v{t}, v{s_}, v{s_+1}", f"v_add_f32 v{t+1}, v{s_+2}, v{s_+3}",
                  f"v_add_f32 v{t+2}, v{s_+4}, v{s_+5}", f"v_add_f32 v{t+3}, v{s_+6}, v{s_+7}",
                  f"v_add_f32 v{t}, v{t}, v{t+1}", f"v_add_f32 v{t+2}, v{t+2}, v{t+3}", f"v_add_f32 v{t}, v{t}, v{t+2}",
                  f"v_mfma_f32_16x16x4_f32 v[{t+4}:{t+7}], v{vOnef}, v{t}, 0"]
            st.append(s)
        a("\n".join(interleave(*st)))
        st = []
        for h in range(2):
            s_ = S[h]; t = vT + 8 + 8*h
            s = [f"v_rcp_f32 v{t+4}, v{t+4}"]
            for r in range(8): s.append(f"v_mul_f32 v{s_+r}, v{s_+r}, v{t+4}")
            s += [f"v_cvt_pk_bf16_f32 v{t}, v{s_+4}, v{s_+5}", f"v_cvt_pk_bf16_f32 v{t+1}, v{s_+6}, v{s_+7}",
                  f"v_cvt_pk_bf16_f32 v{t+2}, v{s_}, v{s_+1}", f"v_cvt_pk_bf16_f32 v{t+3}, v{s_+2}, v{s_+3}",
                  f"v_mfma_f32_16x16x32_bf16 v[{s_}:{s_+3}], v[{AV[h]}:{AV[h]+3}], v[{t}:{t+3}], 0"]
            st.append(s)
        a("\n".join(interleave(*st)))
        for h in range(2):
            a(f"v_cvt_pk_bf16_f32 v{vW+2*h}, v{S[h]}, v{S[h]+1}\nv_cvt_pk_bf16_f32 v{vW+2*h+1}, v{S[h]+2}, v{S[h]+3}")
        a(f"buffer_store_dwordx4 v[{vW}:{vW+3}], v{vL16}, s[4:7], s42 offen sc1")
        self.signal("s47")
        a(f"s_add_u32 s54, s63, {WO_B}")
        self.dma_w("s54", 8, LDS_WO)

    def phaseWo(self):
        a = self.a; vm = self.vm
        self.stamp(7)
        self.poll("s48", 8)
        self.stamp(8)
        for ks in range(8):
            if ks == 4: a("s_add_u32 s43, s43, 4096")
            a(f"buffer_load_dwordx4 v[{vX+4*ks}:{vX+4*ks+3}], v{vL16}, s[4:7], s43 offen offset:{(ks%4)*1024} sc1")
            vm.issue(("o", ks))
        a("s_barrier")
        T = [vAcc + 4*i for i in range(4)]
        self.mainloop([(i, T[i], True) for i in range(4)], 8, 4, lambda ks: vX+4*ks, lambda ks, nt: (vLdsC, (ks*4+nt)*1024), xtag="o")
        self.stamp(9)
        a(f"""
        s_xor_b32 s53, s32, 1
        s_mul_i32 s53, s53, 12288
        v_add_u32 v{vT}, s53, v{vL16}
        s_mul_i32 s53, s32, 12288
        v_add_u32 v{vT+1}, s53, v{vL16}
        s_cmp_eq_u32 s37, 0
        s_cbranch_scc1 L_W_k0
        ds_write_b128 v{vT}, v[{T[0]}:{T[0]+3}]
        ds_write_b128 v{vT}, v[{T[1]}:{T[1]+3}] offset:1024
        """)
        for r in range(8): a(f"v_mov_b32 v{vW+r}, v{T[2]+r}")
        a(f"""
        s_branch L_W_k1
L_W_k0:
        ds_write_b128 v{vT}, v[{T[2]}:{T[2]+3}]
        ds_write_b128 v{vT}, v[{T[3]}:{T[3]+3}] offset:1024
        """)
        for r in range(8): a(f"v_mov_b32 v{vW+r}, v{T[0]+r}")
        a(f"""
L_W_k1:
        s_waitcnt lgkmcnt(0)
        s_barrier
        ds_read_b128 v[{vW+8}:{vW+11}], v{vT+1}
        ds_read_b128 v[{vW+12}:{vW+15}], v{vT+1} offset:1024
        """)
        for p in range(4):
            a(f"v_lshlrev_b32 v{vW+16+2*p}, 16, v{vRes+p}\nv_and_b32 v{vW+17+2*p}, 0xffff0000, v{vRes+p}")
        a("s_waitcnt lgkmcnt(0)")
        for r in range(8): a(f"v_add_f32 v{vW+r}, v{vW+r}, v{vW+8+r}")
        a("\n".join(interleave(self.round4(vW, vW+8), self.round4(vW+4, vW+10))))
        for r in range(8): a(f"v_add_f32 v{vW+r}, v{vW+r}, v{vW+16+r}")
        for p in range(4): a(f"v_cvt_pk_bf16_f32 v{vRes+p}, v{vW+2*p}, v{vW+2*p+1}")
        a("""
        s_cmp_eq_u32 s39, 3
        s_cbranch_scc1 L_final
        """)
        a(f"buffer_store_dwordx4 v[{vRes}:{vRes+3}], v{vL16}, s[4:7], s44 offen sc1")
        a(f"v_dot2_f32_bf16 v{vW}, v{vRes}, v{vOnes}, 0\nv_dot2_f32_bf16 v{vW+1}, v{vRes}, v{vRes}, 0")
        for p in range(1, 4):
            a(f"v_dot2_f32_bf16 v{vW}, v{vRes+p}, v{vOnes}, v{vW}\nv_dot2_f32_bf16 v{vW+1}, v{vRes+p}, v{vRes+p}, v{vW+1}")
        a(f"""
        v_mfma_f32_16x16x4_f32 v[{vW+4}:{vW+7}], v{vOnef}, v{vW}, 0
        v_mfma_f32_16x16x4_f32 v[{vW+8}:{vW+11}], v{vOnef}, v{vW+1}, 0
        v_mov_b32 v{vW+5}, v{vW+8}
        s_mov_b64 exec, 0xffff
        buffer_store_dwordx2 v[{vW+4}:{vW+5}], v{vL16}, s[4:7], s45 offen sc1
        s_mov_b64 exec, -1
        """)
        self.stamp(10)
        self.signal("s49")
        self.stamp(11)
        if self.stop is not None:
            a(f"s_cmp_eq_u32 s39, {self.stop}\ns_cbranch_scc1 L_km_end")
        a(f"""
        s_and_b32 s53, s39, 1
        s_cmp_eq_u32 s53, 0
        s_cselect_b32 s54, {WQ_B}, 0
        s_add_u32 s54, s54, s62
        """)
        self.dma_w("s54", 12, 0)
        a("""
        s_add_u32 s39, s39, 1
        s_branch L_layer
        """)
        a.fence()
        a(f"""
L_final:
        v_and_b32 v{vT}, 15, v{vLane}
        v_lshlrev_b32 v{vT}, 11, v{vT}
        v_lshrrev_b32 v{vT+1}, 4, v{vLane}
        v_lshlrev_b32 v{vT+1}, 3, v{vT+1}
        v_add_u32 v{vT}, v{vT}, v{vT+1}
        s_lshr_b32 s53, s38, 1
        s_lshl_b32 s53, s53, 5
        s_and_b32 s54, s38, 1
        s_add_u32 s53, s53, s54
        s_lshl_b32 s53, s53, 10
        s_lshl_b32 s54, s35, 7
        s_add_u32 s53, s53, s54
        s_lshl_b32 s54, s37, 6
        s_add_u32 s53, s53, s54
        buffer_store_dwordx2 v[{vRes}:{vRes+1}], v{vT}, s[8:11], s53 offen
        buffer_store_dwordx2 v[{vRes+2}:{vRes+3}], v{vT}, s[8:11], s53 offen offset:32
        """)
        self.stamp(10)
        self.stamp_dump()

def build(path, stop=None, dbg=False):
    from gen_k0 import gen_k0
    a = Asm()
    a.raw("; @launch kernel=prep_kernel grid=(256,1,1) block=(256,1,1) lds=0")
    a.raw("; @launch kernel=main_kernel grid=(256,1,1) block=(512,1,1) lds=163840")
    a.raw('.amdgcn_target "amdgcn-amd-amdhsa--gfx950"\n.text')
    gen_k0(a)
    a.hist = []
    km = KM(a, stop); km.dbg = (dbg == 'dbg'); km.prof = (dbg == 'prof'); km.gen("main_kernel")
    a.raw('.section .rodata,"a"')
    a.raw(kernel_desc("prep_kernel", 112))
    a.raw(kernel_desc("main_kernel", 256))
    open(path, "w").write(a.text())
    return a

if __name__ == "__main__":
    stop = int(sys.argv[2]) if len(sys.argv) > 2 and sys.argv[2] != "-" else None
    a = build(sys.argv[1] if len(sys.argv) > 1 else "km.s", stop, sys.argv[3] if len(sys.argv) > 3 else None)
    print("nops inserted", a.nnop, "lines", len(a.lines))
```

```python
WQ_A = 0x000000
WQ_B = 0x180000
WO_A = 0x300000
WO_B = 0x380000
XF   = 0x400000
OF   = 0xC00000
ST   = 0x1400000
CSP  = 0x1500000
ZB   = 0x1540000
KV   = ZB
KVSZ = 0x12000
CNT  = ZB + 2*KVSZ
CNT_X  = CNT
CNT_O  = CNT + 64*128
CNT_KV = CNT + 128*128
WS_SIZE = 0x4000000
HNT = ZB + 0x2A000
XID = CNT
HXF = 0x1600000
HST = 0x1700000
KVP = 0x1A00000
ZP = 0x1C00000
```

```python
from asmlib import *
from layout import *
import sys
from gen_km import VM, interleave, LOG2E, LOG2E_Q

LDS_WO = 98304
XCH = 131072

vL16, vLdsB, vLdsC, vZero, vOne, vOnef, vLane = 1, 2, 3, 4, 5, 6, 7
vId = 8
vPhi = 10
vL4 = 14
vTch = 15
vCsA = 16
vCsB = 34
vRes = 52
vBias = 56
vX = 64
vAcc = 128
vW = 152
vT = 200
vStamp = 232
vDummy = 233
vXch = 234
vL1k = 235
vMv = 236; vRv = 240
vX32, vX48, vRowB, vSt = 244, 245, 246, 247
vOnes = 248
vM, vR = 252, 253
vPoll = 254
vTmp = 255
vHalo = vT + 26
NR = 12

class KM:
    def __init__(self, a, stop=None):
        self.a = a; self.vm = VM(a); self.uid = 0; self.stop = stop; self.prof = False; self.outl = []; self.force_slow = False
    def lab(self, p):
        self.uid += 1; return f"L_{p}_{self.uid}"
    def stamp(self, k):
        if not self.prof: return
        self.a(f"s_memtime s[70:71]\ns_waitcnt lgkmcnt(0)\ns_lshl_b32 s72, s39, 4\ns_add_u32 m0, s72, {k}\ns_nop 1\nv_writelane_b32 v{vStamp}, s70, m0")
    def rstamp(self, k):
        if not self.prof: return
        self.a(f"s_memrealtime s[70:71]\ns_waitcnt lgkmcnt(0)\nv_writelane_b32 v{vStamp}, s70, {k}")
    def stamp_dump(self):
        if not self.prof: return
        self.rstamp(62)
        self.a(f"s_lshl_b32 s57, s2, 3\ns_add_u32 s57, s57, s32\ns_lshl_b32 s57, s57, 8\ns_add_u32 s57, s57, 0x1800000\nbuffer_store_dword v{vStamp}, v{vL4}, s[4:7], s57 offen")
    def poll1(self, sreg, target):
        a = self.a; L = self.lab("poll"); D = self.lab("pd")
        a(f"""
        s_mov_b32 s56, 0
{L}:
        s_add_u32 s56, s56, 1
        s_cmp_gt_u32 s56, 0x40000
        s_cbranch_scc1 {D}
        buffer_load_dword v{vPoll}, v{vZero}, s[4:7], {sreg} offen sc1
        s_waitcnt vmcnt(0)
        v_readfirstlane_b32 s53, v{vPoll}
        s_cmp_ge_u32 s53, {target}
        s_cbranch_scc1 {D}
        s_sleep 2
        s_branch {L}
{D}:
        """)
    def sync(self, sig, waits, others=None):
        a = self.a; S = self.lab("sy"); O = self.lab("so")
        a(f"""
        s_barrier
        s_cmp_lg_u32 s32, 0
        s_cbranch_scc1 {O}
        s_mov_b64 exec, 1
        buffer_atomic_add v{vOne}, v{vZero}, s[4:7], {sig} offen sc1
        """)
        for w in waits:
            if isinstance(w, tuple):
                K = self.lab("sk")
                a(f"s_cmp_eq_u32 {w[1]}, 0\ns_cbranch_scc1 {K}")
                self.poll1(w[0], 16); a(f"{K}:")
            else:
                self.poll1(w, 16)
        a(f"""
        s_mov_b64 exec, -1
        s_branch {S}
{O}:
        """)
        if others: others(S)
        a(f"""
{S}:
        s_barrier
        """)
    def dma_w(self, sbase, nper, ldsbase):
        a = self.a
        a(f"s_mul_i32 s53, s32, {nper*1024}")
        a(f"s_add_u32 s52, {sbase}, s53")
        a(f"s_add_u32 s53, s53, {ldsbase}")
        for g in range(nper // 4):
            a(f"s_mov_b32 m0, s53")
            for i in range(4):
                a(f"buffer_load_dwordx4 v{vL16}, s[4:7], s52 offen offset:{i*1024} lds")
                self.vm.issue("dma")
            if g != nper // 4 - 1:
                a("s_add_u32 s52, s52, 4096\ns_add_u32 s53, s53, 4096")
    def touch(self, sbase, nper):
        a = self.a
        a(f"s_mul_i32 s53, s32, {nper*1024}\ns_add_u32 s52, {sbase}, s53")
        if nper == 12:
            a(f"buffer_load_dword v{vDummy}, v{vTch}, s[4:7], s52 offen"); self.vm.issue("t")
            a(f"s_add_u32 s52, s52, 4096\nbuffer_load_dword v{vDummy}, v{vTch}, s[4:7], s52 offen"); self.vm.issue("t")
        else:
            a(f"s_mov_b64 exec, 0xffffffff\nbuffer_load_dword v{vDummy}, v{vTch}, s[4:7], s52 offen\ns_mov_b64 exec, -1"); self.vm.issue("t")
    def mainloop(self, tiles, nks, xreg, addr_of, xtag=None):
        a = self.a
        seq = [(ks, tl) for ks in range(nks) for tl in tiles]
        D = 8
        issued = 0
        def rd(i):
            ks, (nt, acc, tr) = seq[i]
            vb, off = addr_of(ks, nt)
            r = vW + 4*(i % NR)
            a(f"ds_read_b128 v[{r}:{r+3}], v{vb} offset:{off}")
        for i in range(len(seq)):
            while issued < min(len(seq), i + D):
                rd(issued); issued += 1
            ks, (nt, acc, tr) = seq[i]
            if xtag is not None and (i % len(tiles)) == 0: self.vm.wait((xtag, ks))
            a(f"s_waitcnt lgkmcnt({issued - i - 1})")
            r = vW + 4*(i % NR); x = xreg(ks)
            c = f"v[{acc}:{acc+3}]" if ks > 0 else "0"
            if tr: a(f"v_mfma_f32_16x16x32_bf16 v[{acc}:{acc+3}], v[{r}:{r+3}], v[{x}:{x+3}], {c}")
            else:  a(f"v_mfma_f32_16x16x32_bf16 v[{acc}:{acc+3}], v[{x}:{x+3}], v[{r}:{r+3}], {c}")
    def hint_wait(self, sreg, mask="0xffff"):
        a = self.a; L = self.lab("hw"); D = self.lab("hd")
        a(f"""
        s_mov_b32 s56, 0
        s_mov_b64 exec, {mask}
{L}:
        buffer_load_dword v{vPoll}, v{vL4}, s[4:7], {sreg} offen sc1
        s_add_u32 s56, s56, 1
        s_cmp_gt_u32 s56, 0x40000
        s_cbranch_scc1 {D}
        s_waitcnt vmcnt(0)
        v_cmp_ne_u32 vcc, 1, v{vPoll}
        s_cbranch_vccz {D}
        s_sleep 1
        s_branch {L}
{D}:
        s_mov_b64 exec, -1
        """)
        self.vm.reset()
    def hint_set(self, sreg):
        self.a(f"""
        s_lshl_b32 s53, s31, 2
        s_add_u32 s53, s53, {sreg}
        s_mov_b64 exec, 1
        buffer_store_dword v{vOne}, v{vZero}, s[4:7], s53 offen sc1
        s_mov_b64 exec, -1
        """)
    def dstore(self, lines):
        a = self.a; S = self.lab("ds"); D = self.lab("dd")
        a(f"s_cmp_eq_u32 s73, 0\ns_cbranch_scc1 {S}")
        a("\n".join(l.replace(" @", "") for l in lines))
        a(f"s_branch {D}\n{S}:")
        a("\n".join(l.replace(" @", " sc1") for l in lines))
        a(f"{D}:")
    def issue_group(self, sbase, g, tag):
        a = self.a
        if g: a(f"s_add_u32 s58, {sbase}, {g*4096}")
        sb = "s58" if g else sbase
        for i in range(4):
            ks = 4*g + i
            a(f"buffer_load_dwordx4 v[{vX+4*ks}:{vX+4*ks+3}], v{vL16}, s[4:7], {sb} offen offset:{i*1024} sc1")
            if tag: self.vm.issue((tag, ks))
    def check(self, base, n, reissue, hint=None):
        a = self.a; C = self.lab("chk"); R = self.lab("rt"); D = self.lab("cd")
        a(f"s_mov_b32 s56, 0\n{C}:")
        a(f"v_max3_u32 v{vTmp}, v{base}, v{base+1}, v{base+2}")
        i = 3
        while i < n:
            if i + 1 < n: a(f"v_max3_u32 v{vTmp}, v{vTmp}, v{base+i}, v{base+i+1}"); i += 2
            else: a(f"v_max_u32 v{vTmp}, v{vTmp}, v{base+i}"); i += 1
        a(f"v_cmp_eq_u32 vcc, -1, v{vTmp}\ns_cbranch_vccnz {R}\n{D}:")
        self.outl.append((R, C, D, reissue, hint))
    def flush_outl(self):
        a = self.a
        for (R, C, D, reissue, hint) in self.outl:
            a.fence()
            a(f"{R}:\ns_add_u32 s56, s56, 1\ns_cmp_gt_u32 s56, 0x40000\ns_cbranch_scc1 {D}\ns_sleep 1")
            if hint is not None:
                sbase, g = hint
                a(f"""
                s_mov_b64 exec, 0xffff
                buffer_load_dword v{vPoll}, v{vL1k}, s[4:7], {sbase} offen offset:1020 sc1
                s_waitcnt vmcnt(0)
                v_cmp_eq_u32 vcc, -1, v{vPoll}
                s_mov_b64 exec, -1
                s_cbranch_vccnz {R}
                """)
            reissue()
            a(f"s_waitcnt vmcnt(0)\ns_branch {C}")
        self.outl = []
    def streamloop(self, tiles, sbase, tag, addr_of, fillers={}):
        a = self.a
        seq = [(ks, tl) for ks in range(16) for tl in tiles]
        D = 8
        issued = 0
        def rd(i):
            ks, (nt, acc, tr) = seq[i]
            vb, off = addr_of(ks, nt)
            r = vW + 4*(i % NR)
            a(f"ds_read_b128 v[{r}:{r+3}], v{vb} offset:{off}")
        for i in range(len(seq)):
            while issued < min(len(seq), i + D):
                rd(issued); issued += 1
            ks, (nt, acc, tr) = seq[i]
            if i % (4*len(tiles)) == 0:
                g = ks // 4
                self.vm.wait((tag, ks+3))
                def reis(g=g):
                    self.issue_group(sbase, g, None)
                    if g < 3: self.issue_group(sbase, g+1, None)
                self.check(vX+16*g, 16, reis, (sbase, g))
                if g + 2 <= 3: self.issue_group(sbase, g+2, tag)
                if g in fillers: fillers[g]()
            a(f"s_waitcnt lgkmcnt({issued - i - 1})")
            r = vW + 4*(i % NR); x = vX + 4*ks
            c = f"v[{acc}:{acc+3}]" if ks > 0 else "0"
            if tr: a(f"v_mfma_f32_16x16x32_bf16 v[{acc}:{acc+3}], v[{r}:{r+3}], v[{x}:{x+3}], {c}")
            else:  a(f"v_mfma_f32_16x16x32_bf16 v[{acc}:{acc+3}], v[{x}:{x+3}], v[{r}:{r+3}], {c}")
    def st_loads(self, tag=True):
        a = self.a
        a(f"buffer_load_dwordx4 v[{vT+24}:{vT+27}], v{vSt}, s[4:7], s41 offen sc1")
        a(f"buffer_load_dwordx4 v[{vT+28}:{vT+31}], v{vSt}, s[4:7], s41 offen offset:256 sc1")
        if tag: self.vm.issue("st0"); self.vm.issue("st1")
    def wq_addr(self, ks, nt):
        off = (ks*6 + nt)*1024
        return (vL16, off) if off < 49152 else (vLdsB, off - 49152)
    def stats(self, ld, vm_, vr_, t):
        self.a(f"""
        v_add_f32 v{ld}, v{ld}, v{ld+2}
        v_add_f32 v{ld+1}, v{ld+1}, v{ld+3}
        v_add_f32 v{ld+4}, v{ld+4}, v{ld+6}
        v_add_f32 v{ld+5}, v{ld+5}, v{ld+7}
        v_add_f32 v{ld}, v{ld}, v{ld+4}
        v_add_f32 v{ld+1}, v{ld+1}, v{ld+5}
        v_mfma_f32_16x16x4_f32 v[{t}:{t+3}], v{vOnef}, v{ld}, 0
        v_mfma_f32_16x16x4_f32 v[{t+4}:{t+7}], v{vOnef}, v{ld+1}, 0
        v_mul_f32 v{t}, 0x3b000000, v{t}
        v_mul_f32 v{t+4}, 0x3b000000, v{t+4}
        v_fma_f32 v{t+4}, -v{t}, v{t}, v{t+4}
        v_max_f32 v{t+4}, 0, v{t+4}
        v_cvt_pk_bf16_f32 v{t+1}, v{t}, v{t+4}
        v_lshlrev_b32 v{vm_}, 16, v{t+1}
        v_and_b32 v{t+4}, 0xffff0000, v{t+1}
        v_add_f32 v{t+4}, 0x3727c5ac, v{t+4}
        v_cvt_pk_bf16_f32 v{t+4}, v{t+4}, v{t+4}
        v_lshlrev_b32 v{t+4}, 16, v{t+4}
        v_sqrt_f32 v{t+4}, v{t+4}
        v_cvt_pk_bf16_f32 v{t+4}, v{t+4}, v{t+4}
        v_lshlrev_b32 v{t+4}, 16, v{t+4}
        v_rcp_f32 v{vr_}, v{t+4}
        """)
    def stats_v(self, vm_, vr_):
        a = self.a
        for r in range(4):
            a(f"ds_bpermute_b32 v{vMv+r}, v{vRowB}, v{vm_} offset:{4*r}")
            a(f"ds_bpermute_b32 v{vRv+r}, v{vRowB}, v{vr_} offset:{4*r}")
    def scaleT(self, acc, cs, out, vm_=vM, vr_=vR):
        s = []
        for r in range(4): s.append(f"v_fma_f32 v{acc+r}, -v{vm_}, v{cs+r}, v{acc+r}")
        for r in range(4): s.append(f"v_mul_f32 v{acc+r}, v{acc+r}, v{vr_}")
        s.append(f"v_cvt_pk_bf16_f32 v{out}, v{acc}, v{acc+1}")
        s.append(f"v_cvt_pk_bf16_f32 v{out+1}, v{acc+2}, v{acc+3}")
        return s
    def scaleN(self, acc, cs, out):
        s = []
        for r in range(4): s.append(f"v_fma_f32 v{acc+r}, -v{vMv+r}, v{cs}, v{acc+r}")
        for r in range(4): s.append(f"v_mul_f32 v{acc+r}, v{acc+r}, v{vRv+r}")
        s.append(f"v_cvt_pk_bf16_f32 v{out}, v{acc}, v{acc+1}")
        s.append(f"v_cvt_pk_bf16_f32 v{out+1}, v{acc+2}, v{acc+3}")
        return s
    def round4(self, p, t):
        return [f"v_cvt_pk_bf16_f32 v{t}, v{p}, v{p+1}", f"v_cvt_pk_bf16_f32 v{t+1}, v{p+2}, v{p+3}",
                f"v_lshlrev_b32 v{p}, 16, v{t}", f"v_and_b32 v{p+1}, 0xffff0000, v{t}",
                f"v_lshlrev_b32 v{p+2}, 16, v{t+1}", f"v_and_b32 v{p+3}, 0xffff0000, v{t+1}"]
    def xlane(self, src, d):
        return [f"ds_swizzle_b32 v{d}, v{src} offset:0x401f",
                f"ds_bpermute_b32 v{d+1}, v{vX32}, v{src}",
                f"ds_bpermute_b32 v{d+2}, v{vX48}, v{src}"]
    def featmap(self, accs, css, outs, tb, extra=None):
        a = self.a
        T = [tb, tb + 24]
        a("\n".join(interleave(*[self.scaleT(accs[h], css[h], T[h]+4) for h in range(2)])))
        for h in range(2):
            a(f"v_mfma_f32_16x16x16_bf16 v[{T[h]}:{T[h]+3}], v[{vPhi+2*h}:{vPhi+2*h+1}], v[{T[h]+4}:{T[h]+5}], 0")
        if extra: a("s_waitcnt lgkmcnt(0)\n" + "\n".join(extra))
        st = []
        for h in range(2):
            t = T[h]
            s = self.round4(t, t+4)
            s += [f"v_max_f32 v{t+6}, v{t}, v{t+1}", f"v_min_f32 v{t+7}, v{t}, v{t+1}",
                  f"v_max_f32 v{t+8}, v{t+2}, v{t+3}", f"v_min_f32 v{t+9}, v{t+2}, v{t+3}",
                  f"v_max_f32 v{t+6}, v{t+6}, v{t+8}", f"v_min_f32 v{t+7}, v{t+7}, v{t+9}"]
            s += self.xlane(t+6, t+8) + self.xlane(t+7, t+11)
            st.append(s)
        a("\n".join(interleave(*st)))
        a("s_waitcnt lgkmcnt(0)")
        st = []
        for h in range(2):
            t = T[h]
            s = [f"v_max_f32 v{t+6}, v{t+6}, v{t+8}", f"v_min_f32 v{t+7}, v{t+7}, v{t+11}",
                 f"v_max_f32 v{t+9}, v{t+9}, v{t+10}", f"v_min_f32 v{t+12}, v{t+12}, v{t+13}",
                 f"v_max_f32 v{t+6}, v{t+6}, v{t+9}", f"v_min_f32 v{t+7}, v{t+7}, v{t+12}",
                 f"v_mul_f32 v{t+6}, s60, v{t+6}", f"v_mul_f32 v{t+7}, s60, v{t+7}"]
            for r in range(4):
                s.append(f"v_fma_f32 v{t+14+r}, v{t+r}, s60, -v{t+6}")
                s.append(f"v_fma_f32 v{t+18+r}, -v{t+r}, s60, v{t+7}")
            for r in range(8): s.append(f"v_exp_f32 v{t+14+r}, v{t+14+r}")
            s += [f"v_add_f32 v{t+4}, v{t+14}, v{t+15}", f"v_add_f32 v{t+5}, v{t+18}, v{t+19}",
                  f"v_add_f32 v{t+6}, v{t+16}, v{t+17}", f"v_add_f32 v{t+7}, v{t+20}, v{t+21}",
                  f"v_add_f32 v{t+4}, v{t+4}, v{t+6}", f"v_add_f32 v{t+5}, v{t+5}, v{t+7}",
                  f"v_mfma_f32_16x16x4_f32 v[{t}:{t+3}], v{vOnef}, v{t+4}, 0",
                  f"v_mfma_f32_16x16x4_f32 v[{t+8}:{t+11}], v{vOnef}, v{t+5}, 0"]
            st.append(s)
        a("\n".join(interleave(*st)))
        st = []
        for h in range(2):
            t = T[h]; o = outs[h]
            s = [f"v_rcp_f32 v{t}, v{t}", f"v_rcp_f32 v{t+8}, v{t+8}"]
            for r in range(4):
                s.append(f"v_mul_f32 v{t+14+r}, v{t+14+r}, v{t}")
                s.append(f"v_mul_f32 v{t+18+r}, v{t+18+r}, v{t+8}")
            for r in range(4):
                s.append(f"v_cvt_pk_bf16_f32 v{o+r}, v{t+14+2*r}, v{t+15+2*r}")
            st.append(s)
        a("\n".join(interleave(*st)))

    def layer_offsets(self):
        self.a(f"""
        s_lshl_b32 s53, s39, 21                 ; l*2MB
        s_lshl_b32 s54, s33, 14
        s_add_u32 s53, s53, s54
        s_add_u32 s40, s53, {XF}                ; sXin
        s_add_u32 s43, s53, {OF}                ; sOin
        s_lshl_b32 s55, s31, 10
        s_add_u32 s42, s43, s55                 ; sOout
        s_add_u32 s44, s40, s55
        s_add_u32 s44, s44, 0x200000            ; sXout
        s_lshl_b32 s53, s39, 18
        s_lshl_b32 s54, s33, 11
        s_add_u32 s41, s53, s54
        s_add_u32 s41, s41, {ST}                ; sSTin
        s_add_u32 s45, s41, s64                 ; sSTout
        s_lshl_b32 s53, s39, 7
        s_add_u32 s54, s53, s33
        s_lshl_b32 s54, s54, 6
        s_add_u32 s47, s54, {HNT}               ; hint O (l, t)
        s_add_u32 s46, s54, {HNT + 0x8000}      ; hint X (l, t)
        s_add_u32 s49, s46, {128*64}            ; hint X (l+1, t)
        s_lshr_b32 s53, s39, 1
        s_lshl_b32 s54, s53, 4
        s_add_u32 s54, s54, s31
        s_lshl_b32 s50, s54, 12
        s_add_u32 s50, s50, {ZP}
        s_lshl_b32 s51, s54, 16
        s_add_u32 s51, s51, {KVP}
        s_and_b32 s53, s39, 1
        s_cmp_eq_u32 s53, 0
        s_cselect_b32 s66, 0, {WO_B-WO_A}
        s_cselect_b32 s68, {WO_B-WO_A}, 0
        s_cselect_b32 s67, {WQ_B}, 0
        s_cselect_b32 s65, s30, 0
        s_add_u32 s66, s66, s63
        s_add_u32 s68, s68, s63
        s_add_u32 s67, s67, s62
        """)
    def xloads(self):
        self.issue_group("s40", 0, "x"); self.issue_group("s40", 1, "x")

    def gen(self, name):
        a = self.a; vm = self.vm
        a.raw(f".globl {name}\n.p2align 8\n.type {name},@function\n{name}:")
        a(f"""
        s_cmp_ge_u32 s2, 256
        s_cbranch_scc1 L_km_end
        s_load_dwordx2 s[16:17], s[0:1], 16     ; w_phi
        s_load_dwordx2 s[18:19], s[0:1], 56     ; out
        s_load_dwordx2 s[20:21], s[0:1], 72     ; ws
        v_lshrrev_b32 v{vT}, 6, v0
        v_and_b32 v{vLane}, 63, v0
        v_readfirstlane_b32 s32, v{vT}          ; wave
        v_lshlrev_b32 v{vL16}, 4, v{vLane}
        v_lshlrev_b32 v{vL4}, 2, v{vLane}
        v_lshlrev_b32 v{vTch}, 7, v{vLane}
        v_lshlrev_b32 v{vL1k}, 10, v{vLane}
        v_lshrrev_b32 v{vT+1}, 4, v{vLane}      ; g
        v_and_b32 v{vT+2}, 15, v{vLane}         ; i
        v_lshlrev_b32 v{vSt}, 9, v{vT+1}
        v_lshlrev_b32 v{vT+3}, 4, v{vT+2}
        v_add_u32 v{vSt}, v{vSt}, v{vT+3}       ; g*512 + i*16
        s_and_b32 s30, s2, 7
        s_lshr_b32 s31, s2, 3
        s_lshl_b32 s30, s30, 1
        s_and_b32 s53, s31, 1
        s_add_u32 s30, s30, s53                 ; rb
        s_lshr_b32 s31, s31, 1                  ; ct
        s_lshl_b32 s33, s30, 3
        s_add_u32 s33, s33, s32                 ; t
        s_mov_b32 s39, 0
        s_mov_b32 s60, {LOG2E}
        s_mov_b32 s61, {LOG2E_Q}
        s_mul_i32 s62, s31, 98304
        s_lshl_b32 s63, s31, 15
        s_add_u32 s63, s63, {WO_A}
        ; s64 = 0x40000 + (p>>2)*512 + ((p>>1)&1)*256 + (p&1)*8, p = ct
        s_lshr_b32 s64, s31, 1
        s_lshl_b32 s64, s64, 8
        s_and_b32 s53, s31, 1
        s_lshl_b32 s53, s53, 3
        s_add_u32 s64, s64, s53
        s_add_u32 s64, s64, 0x40000
        v_cmp_le_u32 vcc, 96, v0
        v_subrev_u32 v{vT+5}, 96, v0
        v_cndmask_b32 v{vT+5}, v0, v{vT+5}, vcc          ; c
        v_mov_b32 v{vT+6}, 98304
        v_cndmask_b32 v{vT+6}, 0, v{vT+6}, vcc
        v_lshrrev_b32 v{vT+7}, 5, v{vT+5}
        v_lshlrev_b32 v{vT+7}, 11, v{vT+7}
        v_add_u32 v{vT+6}, v{vT+6}, v{vT+7}
        v_and_b32 v{vT+7}, 31, v{vT+5}
        v_lshlrev_b32 v{vT+7}, 2, v{vT+7}
        v_add_u32 v{vT+6}, v{vT+6}, v{vT+7}
        v_lshlrev_b32 v{vT+3}, 7, v{vT+1}
        v_lshlrev_b32 v{vT+4}, 1, v{vT+2}
        v_add_u32 v{vT+3}, v{vT+3}, v{vT+4}
        """)
        self.layer_offsets()
        a(f"""
        s_waitcnt lgkmcnt(0)
        s_mov_b32 s4, s20
        s_mov_b32 s5, s21
        s_mov_b32 s6, {WS_SIZE}
        s_mov_b32 s7, 0x20000
        s_mov_b32 s8, s18
        s_mov_b32 s9, s19
        s_mov_b32 s10, 0x200000
        s_mov_b32 s11, 0x20000
        s_mov_b32 s12, s16
        s_mov_b32 s13, s17
        s_mov_b32 s14, 16384
        s_mov_b32 s15, 0x20000
        """)
        self.stamp(15)
        self.rstamp(14)
        a(f"""
        s_getreg_b32 s74, hwreg(HW_REG_XCC_ID)
        s_and_b32 s74, s74, 15
        s_add_u32 s74, s74, 1
        s_lshl_b32 s75, s30, 6
        s_add_u32 s75, s75, {XID}
        s_cmp_lg_u32 s32, 0
        s_cbranch_scc1 L_noxid
        s_lshl_b32 s53, s31, 2
        s_add_u32 s53, s53, s75
        v_mov_b32 v{vT+8}, s74
        v_mov_b32 v{vT+9}, 0
        s_mov_b64 exec, 1
        buffer_store_dword v{vT+8}, v{vT+9}, s[4:7], s53 offen sc1
        s_mov_b64 exec, -1
L_noxid:
        """)
        a(f"""
        s_lshl_b32 s53, s31, 7
        s_add_u32 s53, s53, {CSP}
        s_cmp_ge_u32 s32, 3
        s_cbranch_scc1 L_cs_skip1
        """)
        for k in range(16):
            a(f"buffer_load_dword v{vW+k}, v{vT+6}, s[4:7], s53 offen")
            if k != 15: a("s_add_u32 s53, s53, 6144")
        a("L_cs_skip1:\ns_lshl_b32 s53, s31, 10")
        for h in range(2):
            for e in range(4):
                a(f"buffer_load_ushort v{vW+16+4*h+e}, v{vT+3}, s[12:15], s53 offen offset:{h*512+e*32}")
                vm.issue("phi")
        vm.q[-1] = "philast"
        self.dma_w("s62", 12, 0)
        vm.q[-1] = "wlast"
        self.xloads()
        a(f"s_sub_u32 s53, s44, 0x200000\nbuffer_load_dwordx4 v[{vRes}:{vRes+3}], v{vL16}, s[4:7], s53 offen")
        vm.issue("res")
        a(f"""
        v_lshlrev_b32 v{vRowB}, 4, v{vT+1}      ; (4g)*4
        s_cmp_ge_u32 s32, 4
        s_cbranch_scc1 L_noarm2
        v_mov_b32 v{vAcc}, -1
        v_mov_b32 v{vAcc+1}, -1
        v_mov_b32 v{vAcc+2}, -1
        v_mov_b32 v{vAcc+3}, -1
        s_lshl_b32 s53, s32, 14
        s_lshl_b32 s54, s30, 10
        s_add_u32 s53, s53, s54
        s_add_u32 s53, s53, s51
        s_add_u32 s53, s53, 0x100000
        buffer_store_dwordx4 v[{vAcc}:{vAcc+3}], v{vL16}, s[4:7], s53 offen sc1
        s_lshl_b32 s53, s32, 6
        s_lshl_b32 s54, s30, 8
        s_add_u32 s53, s53, s54
        s_add_u32 s53, s53, s50
        s_add_u32 s53, s53, 0x10000
        s_mov_b32 s54, 0x00010001
        s_mov_b32 s55, 0x00010001
        s_mov_b64 exec, s[54:55]
        buffer_store_dwordx4 v[{vAcc}:{vAcc+3}], v{vRowB}, s[4:7], s53 offen sc1
        s_mov_b64 exec, -1
L_noarm2:
        v_add_u32 v{vLdsB}, 49152, v{vL16}
        v_add_u32 v{vLdsC}, {LDS_WO}, v{vL16}
        v_add_u32 v{vXch}, {XCH}, v{vL16}
        v_mov_b32 v{vZero}, 0
        v_mov_b32 v{vOne}, 1
        v_mov_b32 v{vOnef}, 1.0
        v_mov_b32 v{vOnes}, 0x3f803f80
        v_mov_b32 v{vOnes+1}, 0x3f803f80
        v_mov_b32 v{vOnes+2}, 0x3f803f80
        v_mov_b32 v{vOnes+3}, 0x3f803f80
        v_xor_b32 v{vX32}, 32, v{vLane}
        v_lshlrev_b32 v{vX32}, 2, v{vX32}
        v_xor_b32 v{vX48}, 48, v{vLane}
        v_lshlrev_b32 v{vX48}, 2, v{vX48}
        v_lshlrev_b32 v{vRowB}, 4, v{vT+1}      ; (4g)*4
        v_lshlrev_b32 v{vT+3}, 2, v{vT+1}
        v_sub_u32 v{vT+3}, v{vT+2}, v{vT+3}     ; j-4g
        v_mov_b32 v{vT+4}, 0x3f80
        v_mov_b32 v{vT+5}, 0x3f800000
        v_cmp_eq_u32 vcc, 0, v{vT+3}
        v_cndmask_b32 v{vId}, 0, v{vT+4}, vcc
        v_cmp_eq_u32 vcc, 1, v{vT+3}
        v_cndmask_b32 v{vId}, v{vId}, v{vT+5}, vcc
        v_cmp_eq_u32 vcc, 2, v{vT+3}
        v_cndmask_b32 v{vId+1}, 0, v{vT+4}, vcc
        v_cmp_eq_u32 vcc, 3, v{vT+3}
        v_cndmask_b32 v{vId+1}, v{vId+1}, v{vT+5}, vcc
        v_mov_b32 v{vT+4}, 0xf149f2ca
        s_cmp_lt_u32 s33, 2
        s_cselect_b32 s53, -100, -9
        """)
        for r in range(4):
            a(f"""
            v_subrev_u32 v{vT+5}, {r}, v{vT+3}
            v_cmp_gt_u32 vcc, 8, v{vT+5}
            v_cndmask_b32 v{vBias+r}, v{vT+4}, 0, vcc
            v_cmp_ge_i32 vcc, s53, v{vT+5}
            v_cndmask_b32 v{vBias+4+r}, v{vT+4}, 0, vcc
            """)
        vm.wait("philast")
        for i in range(4): a(f"v_lshl_or_b32 v{vPhi+i}, v{vW+17+2*i}, 16, v{vW+16+2*i}")
        a("s_cmp_ge_u32 s32, 3\ns_cbranch_scc1 L_cs_skip2")
        for st in (8, 4, 2, 1):
            for k in range(st): a(f"v_add_f32 v{vW+k}, v{vW+k}, v{vW+k+st}")
        a(f"""
        v_lshlrev_b32 v{vT+5}, 2, v0
        v_add_u32 v{vT+5}, {XCH + 28672}, v{vT+5}
        ds_write_b32 v{vT+5}, v{vW}
        s_waitcnt lgkmcnt(0)
L_cs_skip2:
        """)
        vm.wait("wlast")
        a(f"""
        s_barrier
        v_add_u32 v{vT+5}, {XCH + 28672}, v{vRowB}    ; g*16
        v_lshlrev_b32 v{vT+6}, 2, v{vT+2}
        v_add_u32 v{vT+6}, {XCH + 28672}, v{vT+6}     ; i*4
        """)
        for m, base in ((0, vCsA), (1, vCsB)):
            for nt in range(4):
                a(f"ds_read_b128 v[{base+4*nt}:{base+4*nt+3}], v{vT+5} offset:{m*384+nt*64}")
            for nt in range(4, 6):
                a(f"ds_read_b32 v{base+16+nt-4}, v{vT+6} offset:{m*384+nt*64}")
        a("s_branch L_A_entry")
        a.fence()
        a("L_layer:")
        self.layer_offsets()
        vm.reset()
        a("s_barrier")
        self.stamp(1)
        self.xloads()
        q0 = list(vm.q)
        a("""
        s_and_b32 s53, s39, 1
        s_cmp_eq_u32 s53, 1
        s_cbranch_scc1 L_B
L_A_entry:
        """)
        self.phaseA()
        a("s_branch L_WO")
        a.fence()
        a("L_B:")
        vm.q = list(q0)
        self.phaseB()
        a.fence()
        a("L_WO:")
        vm.reset()
        self.phaseWo()
        a("L_km_end:\ns_endpgm")
        self.flush_outl()
        a("s_endpgm\nL_code_end:")

    def early_prefetch(self):
        self.dma_w("s66", 4, LDS_WO)
        self.touch("s67", 12)

    def xid_issue(self):
        self.a(f"""
        s_mov_b64 exec, 0xffff
        buffer_load_dword v{vPoll}, v{vL4}, s[4:7], s75 offen sc1
        s_mov_b64 exec, -1
        """)
        self.vm.issue("xid")
    def decide(self):
        a = self.a
        a(f"""
        s_cmp_lg_u32 s39, 0
        s_cbranch_scc1 L_nodec
        s_mov_b32 s56, 0
        s_mov_b64 exec, 0xffff
L_xid:
        v_cmp_eq_u32 vcc, 0, v{vPoll}
        s_cbranch_vccz L_xid_done
        s_add_u32 s56, s56, 1
        s_cmp_gt_u32 s56, 0x40000
        s_cbranch_scc1 L_xid_done
        buffer_load_dword v{vPoll}, v{vL4}, s[4:7], s75 offen sc1
        s_waitcnt vmcnt(0)
        s_branch L_xid
L_xid_done:
        v_cmp_ne_u32 vcc, s74, v{vPoll}
        s_mov_b64 exec, -1
        s_cmp_eq_u64 vcc, 0
        s_cselect_b32 s73, {0 if self.force_slow else 1}, 0
L_nodec:
        """)
    def arm(self):
        a = self.a; A = vW
        a(f"""
        s_cmp_lg_u32 s39, 0
        s_cbranch_scc1 L_noarm
        v_mov_b32 v{A}, -1
        v_mov_b32 v{A+1}, -1
        v_mov_b32 v{A+2}, -1
        v_mov_b32 v{A+3}, -1
        """)
        L = []
        for base, offs in (("s42", (0x200000, 0x400000, 0x600000)), ("s44", (0x200000, 0x400000))):
            for o in offs:
                L += [f"s_add_u32 s53, {base}, {o}", f"buffer_store_dwordx4 v[{A}:{A+3}], v{vL16}, s[4:7], s53 offen @"]
        L += ["s_mov_b64 exec, 0xffff"]
        for o in (0x40000, 0x80000):
            L += [f"s_add_u32 s53, s45, {o}", f"buffer_store_dwordx2 v[{A}:{A+1}], v{vL16}, s[4:7], s53 offen @"]
        L += ["s_mov_b64 exec, -1"]
        self.dstore(L)
        a("L_noarm:")

    def phaseA(self):
        a = self.a; vm = self.vm
        self.stamp(2)
        K0, K1, V0, V1, Q0, Q1 = [vAcc + 4*i for i in range(6)]
        self.streamloop([(2, K0, True), (3, K1, True), (4, V0, False), (5, V1, False)], "s40", "x", self.wq_addr,
                        {1: self.st_loads, 2: lambda: self.dma_w("s66", 4, LDS_WO), 3: lambda: self.touch("s67", 12)})
        self.stamp(3)
        vm.wait("st1")
        self.check(vT+24, 8, lambda: self.st_loads(False))
        self.stats(vT+24, vM, vR, vT)
        self.stats_v(vM, vR)
        PK = [vT+0, vT+4]
        VP = vT + 16
        self.featmap([K0, K1], [vCsA+8, vCsA+12], PK, vW,
                     extra=interleave(self.scaleN(V0, vCsA+16, VP), self.scaleN(V1, vCsA+17, VP+2)))
        for i in range(4):
            d = vW + 4*i
            a(f"v_mfma_f32_16x16x16_bf16 v[{d}:{d+3}], v[{vT+2*i}:{vT+2*i+1}], v[{vId}:{vId+1}], 0")
        a(f"s_mul_i32 s53, s32, 3072\nv_add_u32 v{vTmp}, s53, v{vXch}")
        a(f"ds_write_b128 v{vTmp}, v[{VP}:{VP+3}] offset:2048")
        for i in range(4):
            d = vW + 4*i
            a(f"v_cvt_pk_bf16_f32 v{vT+8+2*i}, v{d}, v{d+1}")
            a(f"v_cvt_pk_bf16_f32 v{vT+9+2*i}, v{d+2}, v{d+3}")
        a(f"""
        ds_write_b128 v{vTmp}, v[{vT+8}:{vT+11}]
        ds_write_b128 v{vTmp}, v[{vT+12}:{vT+15}] offset:1024
        s_waitcnt lgkmcnt(0)
        s_barrier
        s_cmp_ge_u32 s32, 4
        s_cbranch_scc1 L_A_noatom
        s_lshr_b32 s53, s32, 1
        s_and_b32 s54, s32, 1
        s_lshl_b32 s55, s53, 10
        s_lshl_b32 s57, s54, 3
        s_add_u32 s55, s55, s57
        v_add_u32 v{vT}, s55, v{vXch}
        s_lshl_b32 s55, s53, 3
        s_add_u32 s55, s55, 2048
        v_add_u32 v{vT+1}, s55, v{vXch}          ; v addr
        """)
        for u in range(8):
            a(f"ds_read_b64 v[{vW+2*u}:{vW+2*u+1}], v{vT} offset:{u*3072}")
            a(f"ds_read_b64 v[{vW+16+2*u}:{vW+17+2*u}], v{vT+1} offset:{u*3072}")
        a(f"""
        s_lshl_b32 s57, s32, 14
        s_lshl_b32 s55, s30, 10
        s_add_u32 s57, s57, s55
        s_add_u32 s57, s57, s51
        s_lshl_b32 s58, s32, 6
        s_lshl_b32 s55, s30, 8
        s_add_u32 s58, s58, s55
        s_add_u32 s58, s58, s50
        """)
        KA = vW + 32; ZA = vW + 36
        for p in range(4):
            a(f"s_waitcnt lgkmcnt({12-4*p})")
            c = f"v[{KA}:{KA+3}]" if p else "0"; cz = f"v[{ZA}:{ZA+3}]" if p else "0"
            a(f"v_mfma_f32_16x16x32_bf16 v[{KA}:{KA+3}], v[{vW+4*p}:{vW+4*p+3}], v[{vW+16+4*p}:{vW+19+4*p}], {c}")
            a(f"v_mfma_f32_16x16x32_bf16 v[{ZA}:{ZA+3}], v[{vW+4*p}:{vW+4*p+3}], v[{vOnes}:{vOnes+3}], {cz}")
        a(f"""
        buffer_store_dwordx4 v[{KA}:{KA+3}], v{vL16}, s[4:7], s57 offen sc1
        s_mov_b32 s54, 0x00010001
        s_mov_b32 s55, 0x00010001
        s_mov_b64 exec, s[54:55]
        buffer_store_dwordx4 v[{ZA}:{ZA+3}], v{vRowB}, s[4:7], s58 offen sc1
        s_mov_b64 exec, -1
        """)
        a.fence()
        a("L_A_noatom:")
        self.stamp(4)
        self.xid_issue()
        self.mainloop([(0, Q0, True), (1, Q1, True)], 16, lambda ks: vX+4*ks, self.wq_addr)
        PQ = [vT+0, vT+4]
        self.featmap([Q0, Q1], [vCsA+0, vCsA+4], PQ, vW)
        self.stamp(5)
        a("s_lshl_b32 s57, s32, 13\ns_add_u32 s57, s57, s51")
        def kvl():
            a("s_add_u32 s58, s57, 4096")
            for p in range(8):
                a(f"buffer_load_dwordx4 v[{vX+4*p}:{vX+4*p+3}], v{vL16}, s[4:7], {'s57' if p < 4 else 's58'} offen offset:{(p&3)*1024} sc1")
        def zl():
            for i in range(4):
                a(f"buffer_load_dwordx4 v[{vX+32+4*i}:{vX+35+4*i}], v{vL16}, s[4:7], s50 offen offset:{i*1024} sc1")
        kvl()
        a("s_cmp_lg_u32 s32, 7\ns_cbranch_scc1 L_A_noz1")
        zl()
        a("L_A_noz1:\ns_barrier")
        vm.wait_all()
        self.decide()
        self.check(vX, 32, kvl)
        for st_ in (4, 2, 1):
            for p in range(st_):
                for r in range(4): a(f"v_add_f32 v{vX+4*p+r}, v{vX+4*p+r}, v{vX+4*(p+st_)+r}")
        a(f"s_lshl_b32 s53, s32, 10\nv_add_u32 v{vTmp}, s53, v{vXch}\nds_write_b128 v{vTmp}, v[{vX}:{vX+3}]")
        a("s_cmp_lg_u32 s32, 7\ns_cbranch_scc1 L_A_noz2")
        Z = vX + 32
        self.check(Z, 16, zl)
        for r in range(4): a(f"v_add_f32 v{Z+r}, v{Z+r}, v{Z+4+r}\nv_add_f32 v{Z+8+r}, v{Z+8+r}, v{Z+12+r}")
        for r in range(4): a(f"v_add_f32 v{Z+r}, v{Z+r}, v{Z+8+r}")
        for r in range(4): a(f"v_mfma_f32_16x16x4_f32 v[{Z+16+4*r}:{Z+19+4*r}], v{vOnef}, v{Z+r}, 0")
        a(f"""
        v_bfe_u32 v{Z+4}, v{vLane}, 3, 1
        v_lshlrev_b32 v{Z+4}, 6, v{Z+4}
        v_and_b32 v{Z+5}, 3, v{vLane}
        v_lshl_add_u32 v{Z+4}, v{Z+5}, 4, v{Z+4}
        v_bfe_u32 v{Z+5}, v{vLane}, 2, 1
        v_lshl_add_u32 v{Z+4}, v{Z+5}, 3, v{Z+4}
        v_add_u32 v{Z+4}, {XCH + 8192}, v{Z+4}
        v_cvt_pk_bf16_f32 v{Z+6}, v{Z+16}, v{Z+20}
        v_cvt_pk_bf16_f32 v{Z+7}, v{Z+24}, v{Z+28}
        s_mov_b64 exec, 0xffff
        ds_write_b64 v{Z+4}, v[{Z+6}:{Z+7}]
        s_mov_b64 exec, -1
L_A_noz2:
        s_waitcnt lgkmcnt(0)
        s_barrier
        """)
        self.stamp(6)
        for i in range(8): a(f"ds_read_b128 v[{vW+4*i}:{vW+4*i+3}], v{vXch} offset:{i*1024}")
        a(f"v_add_u32 v{vTmp}, {XCH + 8192}, v{vRowB}")
        for h in range(2): a(f"ds_read_b128 v[{vW+36+8*h}:{vW+39+8*h}], v{vTmp} offset:{h*64}")
        a("s_waitcnt lgkmcnt(2)")
        for b in range(4):
            for r in range(4): a(f"v_add_f32 v{vW+8*b+r}, v{vW+8*b+r}, v{vW+8*b+4+r}")
        for b in range(4):
            o = vW + 32 + 8*(b >> 1) + 2*(b & 1)
            a(f"v_cvt_pk_bf16_f32 v{o}, v{vW+8*b}, v{vW+8*b+1}\nv_cvt_pk_bf16_f32 v{o+1}, v{vW+8*b+2}, v{vW+8*b+3}")
        a("s_waitcnt lgkmcnt(0)")
        for h in range(2):
            o = vW + 32 + 8*h; d = vW + 8*h
            a(f"v_mfma_f32_16x16x32_bf16 v[{d}:{d+3}], v[{o}:{o+3}], v[{PQ[h]}:{PQ[h]+3}], 0")
            a(f"v_mfma_f32_16x16x32_bf16 v[{d+4}:{d+7}], v[{o+4}:{o+7}], v[{PQ[h]}:{PQ[h]+3}], 0")
        st = []
        for h in range(2):
            d = vW + 8*h; t = vW + 16 + 4*h
            s = [f"v_cvt_pk_bf16_f32 v{d+4}, v{d+4}, v{d+4}", f"v_lshlrev_b32 v{d+4}, 16, v{d+4}",
                 f"v_add_f32 v{d+4}, 0x358637bd, v{d+4}", f"v_cvt_pk_bf16_f32 v{d+4}, v{d+4}, v{d+4}",
                 f"v_lshlrev_b32 v{d+4}, 16, v{d+4}", f"v_rcp_f32 v{d+4}, v{d+4}"]
            s += self.round4(d, t)
            for r in range(4): s.append(f"v_mul_f32 v{d+r}, v{d+r}, v{d+4}")
            s += [f"v_cvt_pk_bf16_f32 v{vT+8+2*h}, v{d}, v{d+1}", f"v_cvt_pk_bf16_f32 v{vT+9+2*h}, v{d+2}, v{d+3}"]
            st.append(s)
        a("\n".join(interleave(*st)))
        self.dstore([f"buffer_store_dwordx4 v[{vT+8}:{vT+11}], v{vL16}, s[4:7], s42 offen @"])
        self.dma_w("s67", 12, 0)
        self.arm()

    def phaseB(self):
        a = self.a; vm = self.vm
        HX = XCH + 16384
        hA, hB, hC, hM, hR = vT+4, vT+5, vTmp, vT+6, vT+7
        def halo_x():
            for i in range(4):
                a(f"buffer_load_dwordx4 v[{vT+8+4*i}:{vT+11+4*i}], v{vT+1}, s[4:7], s54 offen offset:{i*1024} sc1")
        def halo_s():
            a(f"buffer_load_dwordx4 v[{vMv}:{vMv+3}], v{vT+2}, s[4:7], s55 offen sc1")
            a(f"buffer_load_dwordx4 v[{vMv+4}:{vMv+7}], v{vT+2}, s[4:7], s55 offen offset:256 sc1")
        a(f"""
        s_cmp_lt_u32 s32, 4
        s_cselect_b32 s69, s30, 0
        s_cmp_eq_u32 s69, 0
        s_cbranch_scc1 L_B_nohalo1
        v_bfe_u32 v{vT}, v{vLane}, 3, 1
        v_lshlrev_b32 v{vT+1}, 14, v{vT}
        v_or_b32 v{vT+2}, 128, v{vL16}
        v_add_u32 v{vT+1}, v{vT+1}, v{vT+2}
        s_lshr_b32 s57, s39, 1
        s_lshl_b32 s57, s57, 4
        s_add_u32 s57, s57, s30
        s_sub_u32 s57, s57, 1
        s_lshl_b32 s54, s57, 15
        s_add_u32 s54, s54, {HXF}
        s_lshl_b32 s55, s32, 12
        s_add_u32 s54, s54, s55
        v_lshlrev_b32 v{vT+2}, 11, v{vT}
        v_or_b32 v{vT+3}, 128, v{vSt}
        v_add_u32 v{vT+2}, v{vT+2}, v{vT+3}
        s_lshl_b32 s55, s57, 12
        s_add_u32 s55, s55, {HST}
L_B_nohalo1:
        s_cmp_ge_u32 s32, 2
        s_cbranch_scc1 L_B_nozero
        v_mov_b32 v{vAcc}, 0
        v_mov_b32 v{vAcc+1}, 0
        v_mov_b32 v{vAcc+2}, 0
        v_mov_b32 v{vAcc+3}, 0
        s_lshl_b32 s53, s32, 11
        v_add_u32 v{vT+4}, s53, v{vXch}
        ds_write_b128 v{vT+4}, v[{vAcc}:{vAcc+3}]
        ds_write_b128 v{vT+4}, v[{vAcc}:{vAcc+3}] offset:1024
        s_waitcnt lgkmcnt(0)
L_B_nozero:
        """)
        self.stamp(2)
        Q0, Q1, K0, K1, V0, V1 = [vAcc + 4*i for i in range(6)]
        def f2():
            self.dma_w("s66", 4, LDS_WO)
        def f3():
            a("s_cmp_eq_u32 s69, 0\ns_cbranch_scc1 L_B_nh4")
            halo_x(); halo_s()
            a("L_B_nh4:")
            self.touch("s67", 12)
        self.streamloop([(0, Q0, True), (1, Q1, True), (2, K0, True), (3, K1, True), (4, V0, False), (5, V1, False)], "s40", "x", self.wq_addr,
                        {1: self.st_loads, 2: f2, 3: f3})
        self.stamp(3)
        a("s_cmp_eq_u32 s69, 0\ns_cbranch_scc1 L_B_nh3\ns_waitcnt vmcnt(2)")
        self.check(vT+8, 16, halo_x)
        self.check(vMv, 8, halo_s)
        a(f"s_lshl_b32 s53, s32, 12\ns_add_u32 s53, s53, {HX}\nv_add_u32 v{vT+3}, s53, v{vL16}")
        for i in range(4): a(f"ds_write_b128 v{vT+3}, v[{vT+8+4*i}:{vT+11+4*i}] offset:{i*1024}")
        a("s_waitcnt lgkmcnt(0)\nL_B_nh3:\ns_barrier")
        a(f"""
        s_cmp_eq_u32 s69, 0
        s_cbranch_scc1 L_B_nohalo2
        v_add_u32 v{hC}, {HX}, v{vL16}
        s_add_u32 s53, s32, 2
        s_lshl_b32 s53, s53, 10
        """)
        for ks in range(16): a(f"ds_read_b128 v[{vX+4*ks}:{vX+4*ks+3}], v{hC} offset:{ks*1024}")
        self.stats(vMv, hM, hR, vT+8)
        self.stats_v(hM, hR)
        a(f"v_add_u32 v{hA}, s53, v{vL16}\nv_add_u32 v{hB}, s53, v{vLdsB}\ns_waitcnt lgkmcnt(0)")
        def haddr(ks, nt):
            off = ks*6*1024
            return (hA, off) if off < 49152 else (hB, off - 49152)
        HA = vT + 8
        a("s_cmp_ge_u32 s32, 2\ns_cbranch_scc1 L_B_halov")
        self.mainloop([(0, HA, True)], 16, lambda ks: vX+4*ks, haddr)
        a("s_cmp_eq_u32 s32, 0\ns_cselect_b64 vcc, -1, 0")
        for r in range(4):
            a(f"v_cndmask_b32 v{vT+12+r}, v{vCsB+12+r}, v{vCsB+8+r}, vcc")
        a("\n".join(self.scaleT(HA, vT+12, vT+16, hM, hR)))
        a(f"""
        v_bfe_u32 v{vT}, v{vLane}, 3, 1
        v_lshlrev_b32 v{vT}, 11, v{vT}
        v_or_b32 v{vT+1}, 128, v{vXch}
        v_add_u32 v{vT}, v{vT}, v{vT+1}
        s_lshl_b32 s53, s32, 3
        v_add_u32 v{vT}, s53, v{vT}
        ds_write_b64 v{vT}, v[{vT+16}:{vT+17}]
        s_branch L_B_nohalo2
        """)
        a.fence()
        a("L_B_halov:")
        self.mainloop([(0, HA, False)], 16, lambda ks: vX+4*ks, haddr)
        a(f"s_cmp_eq_u32 s32, 2\ns_cselect_b64 vcc, -1, 0\nv_cndmask_b32 v{vT+12}, v{vCsB+17}, v{vCsB+16}, vcc")
        a("\n".join(self.scaleN(HA, vT+12, vT+16)))
        a(f"""
        v_lshrrev_b32 v{vT}, 5, v{vLane}
        v_lshlrev_b32 v{vT}, 11, v{vT}
        v_or_b32 v{vT+1}, 512, v{vXch}
        v_add_u32 v{vT}, v{vT}, v{vT+1}
        s_lshl_b32 s53, s32, 3
        s_add_u32 s53, s53, {1024 - 16}
        v_add_u32 v{vT}, s53, v{vT}
        ds_write_b64 v{vT}, v[{vT+16}:{vT+17}]
        """)
        a.fence()
        a("L_B_nohalo2:")
        self.stamp(4)
        vm.wait("st1")
        self.check(vT+24, 8, lambda: self.st_loads(False))
        self.stats(vT+24, vM, vR, vT)
        self.stats_v(vM, vR)
        QP = vW; KP = vW + 4; VPk = vW + 8
        a("\n".join(interleave(self.scaleT(K0, vCsB+8, KP), self.scaleT(K1, vCsB+12, KP+2),
                               self.scaleT(Q0, vCsB+0, QP), self.scaleT(Q1, vCsB+4, QP+2))))
        a("s_waitcnt lgkmcnt(0)")
        a("\n".join(interleave(self.scaleN(V0, vCsB+16, VPk), self.scaleN(V1, vCsB+17, VPk+2))))
        a(f"""
        s_lshl_b32 s53, s32, 11
        v_add_u32 v{vT}, s53, v{vXch}
        s_cmp_ge_u32 s32, 6
        s_cbranch_scc1 L_B_nowr
        ds_write_b128 v{vT}, v[{KP}:{KP+3}] offset:4096
        ds_write_b128 v{vT}, v[{VPk}:{VPk+3}] offset:5120
L_B_nowr:
        s_waitcnt vmcnt(2) lgkmcnt(0)
        s_barrier
        ds_read_b128 v[{vW+12}:{vW+15}], v{vT}
        ds_read_b128 v[{vW+16}:{vW+19}], v{vT} offset:1024
        """)
        self.stamp(5)
        KPp = vW + 12; VPp = vW + 16
        S = [vW + 20, vW + 28]
        for h in range(2):
            a(f"v_mfma_f32_16x16x16_bf16 v[{S[h]}:{S[h]+3}], v[{KP+2*h}:{KP+2*h+1}], v[{QP+2*h}:{QP+2*h+1}], 0")
        a("s_waitcnt lgkmcnt(0)")
        for h in range(2):
            a(f"v_mfma_f32_16x16x16_bf16 v[{S[h]+4}:{S[h]+7}], v[{KPp+2*h}:{KPp+2*h+1}], v[{QP+2*h}:{QP+2*h+1}], 0")
        AV = [vT+0, vT+4]
        for h in range(2):
            a(f"v_mov_b32 v{AV[h]}, v{VPp+2*h}\nv_mov_b32 v{AV[h]+1}, v{VPp+2*h+1}\nv_mov_b32 v{AV[h]+2}, v{VPk+2*h}\nv_mov_b32 v{AV[h]+3}, v{VPk+2*h+1}")
        st = []
        for h in range(2):
            s_ = S[h]; t = vT + 8 + 8*h
            s = self.round4(s_, t) + self.round4(s_+4, t+2)
            for r in range(8): s.append(f"v_add_f32 v{s_+r}, v{s_+r}, v{vBias+r}")
            s += [f"v_max_f32 v{t}, v{s_}, v{s_+1}", f"v_max_f32 v{t+1}, v{s_+2}, v{s_+3}",
                  f"v_max_f32 v{t+2}, v{s_+4}, v{s_+5}", f"v_max_f32 v{t+3}, v{s_+6}, v{s_+7}",
                  f"v_max_f32 v{t}, v{t}, v{t+1}", f"v_max_f32 v{t+2}, v{t+2}, v{t+3}", f"v_max_f32 v{t}, v{t}, v{t+2}"]
            s += self.xlane(t, t+1)
            st.append(s)
        a("\n".join(interleave(*st)))
        a("s_waitcnt lgkmcnt(0)")
        st = []
        for h in range(2):
            s_ = S[h]; t = vT + 8 + 8*h
            s = [f"v_max_f32 v{t}, v{t}, v{t+1}", f"v_max_f32 v{t+2}, v{t+2}, v{t+3}", f"v_max_f32 v{t}, v{t}, v{t+2}",
                 f"v_mul_f32 v{t}, s61, v{t}"]
            for r in range(8): s.append(f"v_fma_f32 v{s_+r}, v{s_+r}, s61, -v{t}")
            for r in range(8): s.append(f"v_exp_f32 v{s_+r}, v{s_+r}")
            s += [f"v_add_f32 v{t}, v{s_}, v{s_+1}", f"v_add_f32 v{t+1}, v{s_+2}, v{s_+3}",
                  f"v_add_f32 v{t+2}, v{s_+4}, v{s_+5}", f"v_add_f32 v{t+3}, v{s_+6}, v{s_+7}",
                  f"v_add_f32 v{t}, v{t}, v{t+1}", f"v_add_f32 v{t+2}, v{t+2}, v{t+3}", f"v_add_f32 v{t}, v{t}, v{t+2}",
                  f"v_mfma_f32_16x16x4_f32 v[{t+4}:{t+7}], v{vOnef}, v{t}, 0"]
            st.append(s)
        a("\n".join(interleave(*st)))
        st = []
        for h in range(2):
            s_ = S[h]; t = vT + 8 + 8*h
            s = [f"v_rcp_f32 v{t+4}, v{t+4}"]
            for r in range(8): s.append(f"v_mul_f32 v{s_+r}, v{s_+r}, v{t+4}")
            s += [f"v_cvt_pk_bf16_f32 v{t}, v{s_+4}, v{s_+5}", f"v_cvt_pk_bf16_f32 v{t+1}, v{s_+6}, v{s_+7}",
                  f"v_cvt_pk_bf16_f32 v{t+2}, v{s_}, v{s_+1}", f"v_cvt_pk_bf16_f32 v{t+3}, v{s_+2}, v{s_+3}",
                  f"v_mfma_f32_16x16x32_bf16 v[{s_}:{s_+3}], v[{AV[h]}:{AV[h]+3}], v[{t}:{t+3}], 0"]
            st.append(s)
        a("\n".join(interleave(*st)))
        for h in range(2):
            a(f"v_cvt_pk_bf16_f32 v{vW+2*h}, v{S[h]}, v{S[h]+1}\nv_cvt_pk_bf16_f32 v{vW+2*h+1}, v{S[h]+2}, v{S[h]+3}")
        self.dstore([f"buffer_store_dwordx4 v[{vW}:{vW+3}], v{vL16}, s[4:7], s42 offen @"])
        a("s_cmp_eq_u32 s39, 3\ns_cbranch_scc1 L_B_nopf")
        self.dma_w("s67", 12, 0)
        a("L_B_nopf:")

    def phaseWo(self):
        a = self.a; vm = self.vm
        self.stamp(7)
        self.issue_group("s43", 0, "o"); self.issue_group("s43", 1, "o")
        T = [vAcc, vAcc+4]
        for p in range(4):
            a(f"v_lshlrev_b32 v{vT+2*p}, 16, v{vRes+p}\nv_and_b32 v{vT+1+2*p}, 0xffff0000, v{vRes+p}")
        self.streamloop([(i, T[i], True) for i in range(2)], "s43", "o", lambda ks, nt: (vLdsC, (ks*2+nt)*1024),
                        {0: lambda: self.stamp(8), 3: lambda: self.touch("s68", 4)})
        self.stamp(9)
        a("\n".join(interleave(self.round4(vAcc, vW), self.round4(vAcc+4, vW+2))))
        for r in range(8): a(f"v_add_f32 v{vAcc+r}, v{vAcc+r}, v{vT+r}")
        for p in range(4): a(f"v_cvt_pk_bf16_f32 v{vRes+p}, v{vAcc+2*p}, v{vAcc+2*p+1}")
        a("""
        s_cmp_eq_u32 s39, 3
        s_cbranch_scc1 L_final
        """)
        self.dstore([f"buffer_store_dwordx4 v[{vRes}:{vRes+3}], v{vL16}, s[4:7], s44 offen @"])
        a(f"v_dot2_f32_bf16 v{vW}, v{vRes}, v{vOnes}, 0\nv_dot2_f32_bf16 v{vW+1}, v{vRes}, v{vRes}, 0")
        for p in range(1, 4):
            a(f"v_dot2_f32_bf16 v{vW}, v{vRes+p}, v{vOnes}, v{vW}\nv_dot2_f32_bf16 v{vW+1}, v{vRes+p}, v{vRes+p}, v{vW+1}")
        a(f"""
        v_mfma_f32_16x16x4_f32 v[{vW+4}:{vW+7}], v{vOnef}, v{vW}, 0
        v_mfma_f32_16x16x4_f32 v[{vW+8}:{vW+11}], v{vOnef}, v{vW+1}, 0
        v_mov_b32 v{vW+5}, v{vW+8}
        s_mov_b64 exec, 0xffff
        """)
        self.dstore([f"buffer_store_dwordx2 v[{vW+4}:{vW+5}], v{vL16}, s[4:7], s45 offen @"])
        a(f"""
        s_and_b32 s53, s39, 1
        s_cmp_eq_u32 s53, 1
        s_cbranch_scc1 L_W_nohc
        s_cmp_lt_u32 s32, 6
        s_cbranch_scc1 L_W_nohc
        s_lshr_b32 s53, s39, 1
        s_lshl_b32 s53, s53, 4
        s_add_u32 s53, s53, s30
        s_lshl_b32 s53, s53, 1
        s_add_u32 s53, s53, s32
        s_sub_u32 s53, s53, 6
        s_lshl_b32 s54, s53, 11
        s_add_u32 s54, s54, s64
        s_add_u32 s54, s54, {HST - 0x40000}
        buffer_store_dwordx2 v[{vW+4}:{vW+5}], v{vL16}, s[4:7], s54 offen sc1
        s_mov_b64 exec, -1
        s_lshl_b32 s53, s53, 14
        s_lshl_b32 s54, s31, 10
        s_add_u32 s53, s53, s54
        s_add_u32 s53, s53, {HXF}
        buffer_store_dwordx4 v[{vRes}:{vRes+3}], v{vL16}, s[4:7], s53 offen sc1
L_W_nohc:
        s_mov_b64 exec, -1
        """)
        self.stamp(10)
        self.stamp(11)
        if self.stop is not None:
            a(f"s_cmp_eq_u32 s39, {self.stop}\ns_cbranch_scc1 L_km_end")
        a("""
        s_add_u32 s39, s39, 1
        s_branch L_layer
        """)
        a.fence()
        a(f"""
L_final:
        v_and_b32 v{vT}, 15, v{vLane}
        v_lshlrev_b32 v{vT}, 11, v{vT}
        v_lshrrev_b32 v{vT+1}, 1, v{vRowB}
        v_add_u32 v{vT}, v{vT}, v{vT+1}
        s_lshr_b32 s53, s33, 1
        s_lshl_b32 s53, s53, 5
        s_and_b32 s54, s33, 1
        s_add_u32 s53, s53, s54
        s_lshl_b32 s53, s53, 10
        s_lshl_b32 s54, s31, 6
        s_add_u32 s53, s53, s54
        buffer_store_dwordx2 v[{vRes}:{vRes+1}], v{vT}, s[8:11], s53 offen
        buffer_store_dwordx2 v[{vRes+2}:{vRes+3}], v{vT}, s[8:11], s53 offen offset:32
        """)
        self.stamp(10)
        self.stamp_dump()

def build(path, stop=None, mode=None):
    from gen_k0 import gen_k0
    a = Asm()
    a.raw("; @launch kernel=prep_kernel grid=(256,1,1) block=(256,1,1) lds=0")
    a.raw("; @launch kernel=main_kernel grid=(256,1,1) block=(512,1,1) lds=163840")
    a.raw('.amdgcn_target "amdgcn-amd-amdhsa--gfx950"\n.text')
    gen_k0(a)
    a.hist = []
    km = KM(a, stop); km.prof = (mode == "prof"); km.force_slow = (mode == "slow"); km.gen("main_kernel")
    a.raw('.section .rodata,"a"')
    a.raw(kernel_desc("prep_kernel", 112))
    a.raw(kernel_desc("main_kernel", 256))
    open(path, "w").write(a.text())
    return a

if __name__ == "__main__":
    stop = int(sys.argv[2]) if len(sys.argv) > 2 and sys.argv[2] != "-" else None
    a = build(sys.argv[1] if len(sys.argv) > 1 else "km5.s", stop, sys.argv[3] if len(sys.argv) > 3 else None)
    print("nops inserted", a.nnop, "lines", len(a.lines))
```

```python
from asmlib import *
from layout import *

def gen_k0(a, name="prep_kernel"):
    a.raw(f".globl {name}\n.p2align 8\n.type {name},@function\n{name}:")
    a(f"""
    s_cmp_ge_u32 s2, 256
    s_cbranch_scc1 L_k0_end
    s_load_dwordx4 s[16:19], s[0:1], 0      ; x, wqkvA
    s_load_dwordx2 s[20:21], s[0:1], 24     ; woA
    s_load_dwordx4 s[24:27], s[0:1], 40
    s_load_dwordx2 s[28:29], s[0:1], 72     ; ws
    v_lshrrev_b32 v1, 6, v0
    v_and_b32 v2, 63, v0                    ; lane
    v_readfirstlane_b32 s30, v1             ; wave
    v_lshlrev_b32 v3, 4, v2                 ; lane*16
    v_lshrrev_b32 v4, 4, v2                 ; kg
    v_and_b32 v5, 15, v2                    ; o / i
    v_mov_b32 v6, 1.0
    v_mov_b32 v7, 0x3f803f80
    s_getpc_b64 s[46:47]
L_k0_pc:
    s_add_u32 s48, s46, main_kernel-L_k0_pc
    s_addc_u32 s49, s47, 0
    s_mov_b32 s50, L_code_end-main_kernel
    s_mov_b32 s51, 0x20000
    v_lshlrev_b32 v110, 7, v0
    buffer_load_dword v111, v110, s[48:51], 0 offen
    s_waitcnt lgkmcnt(0)
    s_mov_b32 s4, s28
    s_mov_b32 s5, s29
    s_mov_b32 s6, {WS_SIZE}
    s_mov_b32 s7, 0x20000
    s_cmp_ge_u32 s30, 2
    s_cbranch_scc1 L_k0_x
    """)
    a(f"""
    s_lshl_b32 s31, s2, 1
    s_add_u32 s31, s31, s30                 ; task
    s_lshr_b32 s32, s31, 5                  ; ks
    s_and_b32 s33, s31, 31                  ; slot
    s_mov_b32 s11, 0x20000
    s_cmp_ge_u32 s33, 24
    s_cbranch_scc1 L_k0_wo
    ; ---- wqkv ----
    s_cmp_ge_u32 s33, 12
    s_cselect_b32 s8, s24, s18
    s_cselect_b32 s9, s25, s19
    s_cselect_b32 s34, 12, 0
    s_cselect_b32 s35, {WQ_B}, {WQ_A}
    s_cselect_b32 s44, 98304, 0
    s_sub_u32 s33, s33, s34                 ; nb 0..11
    s_add_u32 s44, s44, {CSP}
    s_mov_b32 s10, 0x180000
    s_mov_b32 s36, 3072                     ; pitch
    s_and_b32 s37, s33, 3
    s_mul_i32 s37, s37, {4*98304}
    s_add_u32 s35, s35, s37
    s_mul_i32 s37, s32, 6144
    s_add_u32 s35, s35, s37
    s_add_u32 s44, s44, s37
    s_lshr_b32 s37, s33, 2
    s_lshl_b32 s37, s37, 11
    s_add_u32 s35, s35, s37
    s_lshl_b32 s37, s33, 9
    s_add_u32 s44, s44, s37
    v_lshrrev_b32 v8, 2, v5
    v_mul_u32_u24 v8, 98304, v8
    v_bfe_u32 v9, v5, 1, 1
    v_lshlrev_b32 v9, 10, v9
    v_add_u32 v8, v8, v9
    s_mov_b32 s45, 1
    s_branch L_k0_wcommon
L_k0_wo:
    s_cmp_ge_u32 s33, 28
    s_cselect_b32 s8, s26, s20
    s_cselect_b32 s9, s27, s21
    s_cselect_b32 s34, 28, 24
    s_cselect_b32 s35, {WO_B-WO_A}, 0
    s_sub_u32 s33, s33, s34                 ; nb 0..3
    s_add_u32 s35, s35, {WO_A}
    s_mov_b32 s10, 0x80000
    s_mov_b32 s36, 1024
    s_lshl_b32 s37, s33, 17
    s_add_u32 s35, s35, s37
    s_lshl_b32 s37, s32, 11
    s_add_u32 s35, s35, s37
    v_lshrrev_b32 v8, 2, v5
    v_lshlrev_b32 v8, 15, v8
    v_bfe_u32 v9, v5, 1, 1
    v_lshlrev_b32 v9, 10, v9
    v_add_u32 v8, v8, v9
    s_mov_b32 s45, 0
L_k0_wcommon:
    v_lshlrev_b32 v9, 8, v4
    v_add_u32 v8, v8, v9
    v_and_b32 v9, 1, v5
    v_lshlrev_b32 v9, 7, v9
    v_add_u32 v8, v8, v9
    s_lshl_b32 s37, s36, 2
    v_mul_lo_u32 v9, s37, v4
    v_lshlrev_b32 v10, 4, v5
    v_add_u32 v9, v9, v10
    s_lshl_b32 s37, s36, 5
    s_mul_i32 s38, s32, s37
    s_lshl_b32 s37, s33, 8
    s_add_u32 s38, s38, s37
    s_lshl_b32 s39, s36, 4                  ; 16*pitch
    """)
    for e in range(8):
        if e == 4:
            a("s_add_u32 s40, s38, s39")
        elif e == 0:
            a("s_mov_b32 s40, s38")
        else:
            a("s_add_u32 s40, s40, s36")
        a(f"buffer_load_dwordx4 v[{16+4*e}:{19+4*e}], v9, s[8:11], s40 offen")
    a(f"""
    v_mov_b32 v11, 0x05040100
    v_mov_b32 v12, 0x07060302
    v_mov_b32 v48, -1
    v_mov_b32 v49, -1
    v_mov_b32 v50, -1
    v_mov_b32 v51, -1
    s_cmp_eq_u32 s30, 0
    s_cbranch_scc0 L_k0_arm1
    s_lshl_b32 s41, s2, 12
    s_add_u32 s41, s41, {HXF}
    buffer_store_dwordx4 v[48:51], v3, s[4:7], s41 offen
    buffer_store_dwordx4 v[48:51], v3, s[4:7], s41 offen offset:1024
    buffer_store_dwordx4 v[48:51], v3, s[4:7], s41 offen offset:2048
    buffer_store_dwordx4 v[48:51], v3, s[4:7], s41 offen offset:3072
    s_branch L_k0_arm2
L_k0_arm1:
    s_lshl_b32 s41, s2, 12
    s_add_u32 s41, s41, {KVP}
    buffer_store_dwordx4 v[48:51], v3, s[4:7], s41 offen
    buffer_store_dwordx4 v[48:51], v3, s[4:7], s41 offen offset:1024
    buffer_store_dwordx4 v[48:51], v3, s[4:7], s41 offen offset:2048
    buffer_store_dwordx4 v[48:51], v3, s[4:7], s41 offen offset:3072
    s_lshl_b32 s41, s2, 9
    s_add_u32 s41, s41, {HST}
    s_mov_b64 exec, 0xffffffff
    buffer_store_dwordx4 v[48:51], v3, s[4:7], s41 offen
    s_lshl_b32 s41, s2, 8
    s_add_u32 s41, s41, {ZP}
    s_mov_b64 exec, 0xffff
    buffer_store_dwordx4 v[48:51], v3, s[4:7], s41 offen
    s_mov_b64 exec, -1
L_k0_arm2:
    s_waitcnt vmcnt(0)
    """)
    for j in range(8):
        for p in range(4):
            a(f"v_perm_b32 v{48+4*j+p}, v{16+4*(2*p+1)+(j>>1)}, v{16+4*(2*p)+(j>>1)}, v{11+(j&1)}")
        a(f"buffer_store_dwordx4 v[{48+4*j}:{51+4*j}], v8, s[4:7], s35 offen offset:{j*16}")
    a("""
    s_cmp_eq_u32 s45, 0
    s_cbranch_scc1 L_k0_end
    """)
    for j in range(8):
        a(f"v_dot2_f32_bf16 v{16+j}, v{48+4*j}, v7, 0")
    for p in range(1, 4):
        for j in range(8):
            a(f"v_dot2_f32_bf16 v{16+j}, v{48+4*j+p}, v7, v{16+j}")
    for j in range(8):
        a(f"v_mfma_f32_16x16x4_f32 v[{80+4*j}:{83+4*j}], v6, v{16+j}, 0")
    for j in range(8):
        a(f"v_mov_b32 v{24+j}, v{80+4*j}")
    a("""
    v_lshlrev_b32 v9, 5, v5
    s_mov_b64 exec, 0xffff
    buffer_store_dwordx4 v[24:27], v9, s[4:7], s44 offen
    buffer_store_dwordx4 v[28:31], v9, s[4:7], s44 offen offset:16
    s_endpgm
    """)
    a.fence()
    a(f"""
L_k0_x:
    s_mov_b32 s8, s16
    s_mov_b32 s9, s17
    s_mov_b32 s10, 0x200000
    s_mov_b32 s11, 0x20000
    s_and_b32 s31, s2, 7                    ; xcd
    s_lshr_b32 s32, s2, 3                   ; j
    s_lshl_b32 s32, s32, 1
    s_add_u32 s32, s32, s30
    s_sub_u32 s32, s32, 2                   ; u 0..63
    s_lshl_b32 s33, s31, 4
    s_lshr_b32 s34, s32, 2
    s_add_u32 s33, s33, s34                 ; t
    s_and_b32 s34, s32, 3
    s_lshr_b32 s35, s33, 1
    s_lshl_b32 s35, s35, 5
    s_and_b32 s36, s33, 1
    s_add_u32 s35, s35, s36
    s_lshl_b32 s35, s35, 10
    s_lshl_b32 s36, s34, 8
    s_add_u32 s35, s35, s36
    v_lshlrev_b32 v8, 11, v5
    v_lshlrev_b32 v9, 3, v4
    v_add_u32 v8, v8, v9
    """)
    for q in range(4):
        a(f"buffer_load_dwordx2 v[{16+4*q}:{17+4*q}], v8, s[8:11], s35 offen offset:{q*64}")
        a(f"buffer_load_dwordx2 v[{18+4*q}:{19+4*q}], v8, s[8:11], s35 offen offset:{q*64+32}")
    a(f"""
    v_mov_b32 v40, 0
    v_mov_b32 v41, 0
    v_mov_b32 v42, 0
    v_mov_b32 v43, 0
    s_lshl_b32 s36, s2, 10
    s_add_u32 s36, s36, {ZB}
    s_cmp_eq_u32 s30, 2
    s_cbranch_scc0 L_k0_nozero
    buffer_store_dwordx4 v[40:43], v3, s[4:7], s36 offen
L_k0_nozero:
    s_lshl_b32 s36, s33, 14
    s_lshl_b32 s37, s34, 12
    s_add_u32 s36, s36, s37
    s_add_u32 s36, s36, {XF}
    s_lshl_b32 s37, s33, 11
    s_lshl_b32 s38, s34, 9
    s_add_u32 s37, s37, s38
    s_add_u32 s37, s37, {ST}
    v_mov_b32 v44, -1
    v_mov_b32 v45, -1
    v_mov_b32 v46, -1
    v_mov_b32 v47, -1
    s_add_u32 s38, s36, 0x200000
    s_add_u32 s39, s36, {OF - XF}
    s_add_u32 s40, s37, 0x40000
    """)
    for q in range(4):
        a(f"buffer_store_dwordx4 v[44:47], v3, s[4:7], s38 offen offset:{q*1024}")
        a(f"buffer_store_dwordx4 v[44:47], v3, s[4:7], s39 offen offset:{q*1024}")
    a("""
    s_mov_b64 exec, 0xffffffff
    buffer_store_dwordx4 v[44:47], v3, s[4:7], s40 offen
    s_mov_b64 exec, -1
    s_waitcnt vmcnt(9)
    """)
    for q in range(4):
        a(f"buffer_store_dwordx4 v[{16+4*q}:{19+4*q}], v3, s[4:7], s36 offen offset:{q*1024}")
    for q in range(4):
        a(f"v_dot2_f32_bf16 v{48+2*q}, v{16+4*q}, v7, 0")
        a(f"v_dot2_f32_bf16 v{49+2*q}, v{16+4*q}, v{16+4*q}, 0")
    for p in range(1, 4):
        for q in range(4):
            a(f"v_dot2_f32_bf16 v{48+2*q}, v{16+4*q+p}, v7, v{48+2*q}")
            a(f"v_dot2_f32_bf16 v{49+2*q}, v{16+4*q+p}, v{16+4*q+p}, v{49+2*q}")
    for i in range(8):
        a(f"v_mfma_f32_16x16x4_f32 v[{80+4*i}:{83+4*i}], v6, v{48+i}, 0")
    for i in range(8):
        a(f"v_mov_b32 v{56+i}, v{80+4*i}")
    a("""
    s_mov_b64 exec, 0xffff
    buffer_store_dwordx4 v[56:59], v3, s[4:7], s37 offen
    buffer_store_dwordx4 v[60:63], v3, s[4:7], s37 offen offset:256
L_k0_end:
    s_endpgm
    """)

if __name__ == "__main__":
    a = Asm()
    a.raw("; @launch kernel=prep_kernel grid=(256,1,1) block=(256,1,1) lds=0")
    a.raw('.amdgcn_target "amdgcn-amd-amdhsa--gfx950"\n.text')
    gen_k0(a)
    a.raw('.section .rodata,"a"')
    a.raw(kernel_desc("prep_kernel", 112))
    open("k0.s", "w").write(a.text())
```

```python
from asmlib import *
from layout import *
import sys, os
from gen_km import VM, interleave, LOG2E, LOG2E_Q

LDS_WO = 98304
XCH = 131072

vL16, vLdsB, vLdsC, vZero, vOne, vOnef, vLane = 1, 2, 3, 4, 5, 6, 7
vId = 8
vPhi = 10
vL4 = 14
vTch = 15
vCsA = 16
vCsB = 34
vRes = 52
vBias = 56
vX = 64
vAcc = 128
vW = 152
vT = 200
vStamp = 232
vDummy = 233
vXch = 234
vL1k = 235
vMv = 236; vRv = 240
vX32, vX48, vRowB, vSt = 244, 245, 246, 247
vOnes = 248
vM, vR = 252, 253
vPoll = 254
vTmp = 255
vHalo = vT + 26
NR = 9
vBK = vW + 36

class KM:
    def __init__(self, a, stop=None):
        self.a = a; self.vm = VM(a); self.uid = 0; self.stop = stop; self.prof = False; self.outl = []; self.force_slow = False
    def lab(self, p):
        self.uid += 1; return f"L_{p}_{self.uid}"
    def stamp(self, k):
        if not self.prof: return
        if getattr(self, "gst", 0) and getattr(self, "inwo", 0) and k >= 8: return
        self.a(f"s_memtime s[70:71]\ns_waitcnt lgkmcnt(0)\ns_lshl_b32 s72, s39, 4\ns_add_u32 m0, s72, {k}\ns_nop 1\nv_writelane_b32 v{vStamp}, s70, m0")
    def cstamp(self, k):
        if not self.prof: return
        self.a(f"s_lshl_b32 s72, s39, 4\ns_add_u32 m0, s72, {k}\ns_nop 1\nv_writelane_b32 v{vStamp}, s90, m0\ns_mov_b32 s90, 0")
    def rstamp(self, k):
        if not self.prof: return
        self.a(f"s_memrealtime s[70:71]\ns_waitcnt lgkmcnt(0)\nv_writelane_b32 v{vStamp}, s70, {k}")
    def stamp_dump(self):
        if not self.prof: return
        self.rstamp(62)
        self.a(f"s_lshl_b32 s57, s2, 3\ns_add_u32 s57, s57, s32\ns_lshl_b32 s57, s57, 8\ns_add_u32 s57, s57, 0x1800000\nbuffer_store_dword v{vStamp}, v{vL4}, s[4:7], s57 offen")
    def poll1(self, sreg, target):
        a = self.a; L = self.lab("poll"); D = self.lab("pd")
        a(f"""
        s_mov_b32 s56, 0
{L}:
        s_add_u32 s56, s56, 1
        s_cmp_gt_u32 s56, 0x40000
        s_cbranch_scc1 {D}
        buffer_load_dword v{vPoll}, v{vZero}, s[4:7], {sreg} offen sc1
        s_waitcnt vmcnt(0)
        v_readfirstlane_b32 s53, v{vPoll}
        s_cmp_ge_u32 s53, {target}
        s_cbranch_scc1 {D}
        s_sleep 2
        s_branch {L}
{D}:
        """)
    def sync(self, sig, waits, others=None):
        a = self.a; S = self.lab("sy"); O = self.lab("so")
        a(f"""
        s_barrier
        s_cmp_lg_u32 s32, 0
        s_cbranch_scc1 {O}
        s_mov_b64 exec, 1
        buffer_atomic_add v{vOne}, v{vZero}, s[4:7], {sig} offen sc1
        """)
        for w in waits:
            if isinstance(w, tuple):
                K = self.lab("sk")
                a(f"s_cmp_eq_u32 {w[1]}, 0\ns_cbranch_scc1 {K}")
                self.poll1(w[0], 16); a(f"{K}:")
            else:
                self.poll1(w, 16)
        a(f"""
        s_mov_b64 exec, -1
        s_branch {S}
{O}:
        """)
        if others: others(S)
        a(f"""
{S}:
        s_barrier
        """)
    def dma_w(self, sbase, nper, ldsbase, mod=""):
        a = self.a
        a(f"s_mul_i32 s53, s32, {nper*1024}")
        a(f"s_add_u32 s52, {sbase}, s53")
        a(f"s_add_u32 s53, s53, {ldsbase}")
        for g in range(nper // 4):
            a(f"s_mov_b32 m0, s53")
            for i in range(4):
                a(f"buffer_load_dwordx4 v{vL16}, s[4:7], s52 offen offset:{i*1024} {mod} lds")
                self.vm.issue("dma")
            if g != nper // 4 - 1:
                a("s_add_u32 s52, s52, 4096\ns_add_u32 s53, s53, 4096")
    def touch(self, sbase, nper):
        a = self.a
        a(f"s_mul_i32 s53, s32, {nper*1024}\ns_add_u32 s52, {sbase}, s53")
        if nper == 12:
            a(f"buffer_load_dword v{vDummy}, v{vTch}, s[4:7], s52 offen"); self.vm.issue("t")
            a(f"s_add_u32 s52, s52, 4096\nbuffer_load_dword v{vDummy}, v{vTch}, s[4:7], s52 offen"); self.vm.issue("t")
        else:
            a(f"s_mov_b64 exec, 0xffffffff\nbuffer_load_dword v{vDummy}, v{vTch}, s[4:7], s52 offen\ns_mov_b64 exec, -1"); self.vm.issue("t")
    def mainloop(self, tiles, nks, xreg, addr_of, xtag=None):
        a = self.a
        seq = [(ks, tl) for ks in range(nks) for tl in tiles]
        D = 8
        issued = 0
        def rd(i):
            ks, (nt, acc, tr) = seq[i]
            vb, off = addr_of(ks, nt)
            r = vW + 4*(i % NR)
            a(f"ds_read_b128 v[{r}:{r+3}], v{vb} offset:{off}")
        for i in range(len(seq)):
            while issued < min(len(seq), i + D):
                rd(issued); issued += 1
            ks, (nt, acc, tr) = seq[i]
            if xtag is not None and (i % len(tiles)) == 0: self.vm.wait((xtag, ks))
            a(f"s_waitcnt lgkmcnt({issued - i - 1})")
            r = vW + 4*(i % NR); x = xreg(ks)
            c = f"v[{acc}:{acc+3}]" if ks > 0 else "0"
            if tr: a(f"v_mfma_f32_16x16x32_bf16 v[{acc}:{acc+3}], v[{r}:{r+3}], v[{x}:{x+3}], {c}")
            else:  a(f"v_mfma_f32_16x16x32_bf16 v[{acc}:{acc+3}], v[{x}:{x+3}], v[{r}:{r+3}], {c}")
    def hint_wait(self, sreg, mask="0xffff"):
        a = self.a; L = self.lab("hw"); D = self.lab("hd")
        a(f"""
        s_mov_b32 s56, 0
        s_mov_b64 exec, {mask}
{L}:
        buffer_load_dword v{vPoll}, v{vL4}, s[4:7], {sreg} offen sc1
        s_add_u32 s56, s56, 1
        s_cmp_gt_u32 s56, 0x40000
        s_cbranch_scc1 {D}
        s_waitcnt vmcnt(0)
        v_cmp_ne_u32 vcc, 1, v{vPoll}
        s_cbranch_vccz {D}
        s_sleep 1
        s_branch {L}
{D}:
        s_mov_b64 exec, -1
        """)
        self.vm.reset()
    def hint_set(self, sreg):
        self.a(f"""
        s_lshl_b32 s53, s31, 2
        s_add_u32 s53, s53, {sreg}
        s_mov_b64 exec, 1
        buffer_store_dword v{vOne}, v{vZero}, s[4:7], s53 offen sc1
        s_mov_b64 exec, -1
        """)
    def dstore(self, lines):
        a = self.a; S = self.lab("ds"); D = self.lab("dd")
        a(f"s_cmp_eq_u32 s73, 0\ns_cbranch_scc1 {S}")
        a("\n".join(l.replace(" @", "") for l in lines))
        a(f"s_branch {D}\n{S}:")
        a("\n".join(l.replace(" @", " sc1") for l in lines))
        a(f"{D}:")
    def issue_group(self, sbase, g, tag):
        a = self.a
        if g: a(f"s_add_u32 s58, {sbase}, {g*4096}")
        sb = "s58" if g else sbase
        for i in range(4):
            ks = 4*g + i
            a(f"buffer_load_dwordx4 v[{vX+4*ks}:{vX+4*ks+3}], v{vL16}, s[4:7], {sb} offen offset:{i*1024} sc1")
            if tag: self.vm.issue((tag, ks))
    def check(self, base, n, reissue, hint=None):
        a = self.a; C = self.lab("chk"); R = self.lab("rt"); D = self.lab("cd")
        a(f"s_mov_b32 s56, 0\n{C}:")
        a(f"v_max3_u32 v{vTmp}, v{base}, v{base+1}, v{base+2}")
        i = 3
        while i < n:
            if i + 1 < n: a(f"v_max3_u32 v{vTmp}, v{vTmp}, v{base+i}, v{base+i+1}"); i += 2
            else: a(f"v_max_u32 v{vTmp}, v{vTmp}, v{base+i}"); i += 1
        a(f"v_cmp_eq_u32 vcc, -1, v{vTmp}\ns_cbranch_vccnz {R}\n{D}:")
        self.outl.append((R, C, D, reissue, hint))
    def flush_outl(self):
        a = self.a
        for (R, C, D, reissue, hint) in self.outl:
            a.fence()
            a(f"{R}:\ns_add_u32 s90, s90, 1\ns_add_u32 s56, s56, 1\ns_cmp_gt_u32 s56, 0x40000\ns_cbranch_scc1 {D}\ns_sleep 1")
            if hint is not None:
                sbase, g = hint
                a(f"""
                s_mov_b64 exec, 0xffff
                buffer_load_dword v{vPoll}, v{vL1k}, s[4:7], {sbase} offen offset:1020 sc1
                s_waitcnt vmcnt(0)
                v_cmp_eq_u32 vcc, -1, v{vPoll}
                s_mov_b64 exec, -1
                s_cbranch_vccnz {R}
                """)
            reissue()
            a(f"s_waitcnt vmcnt(0)\ns_branch {C}")
        self.outl = []
    def streamloop(self, tiles, sbase, tag, addr_of, fillers={}):
        a = self.a
        seq = [(ks, tl) for ks in range(16) for tl in tiles]
        D = 8
        issued = 0
        def rd(i):
            ks, (nt, acc, tr) = seq[i]
            vb, off = addr_of(ks, nt)
            r = vW + 4*(i % NR)
            a(f"ds_read_b128 v[{r}:{r+3}], v{vb} offset:{off}")
        for i in range(len(seq)):
            while issued < min(len(seq), i + D):
                rd(issued); issued += 1
            ks, (nt, acc, tr) = seq[i]
            if i % (4*len(tiles)) == 0:
                g = ks // 4
                self.vm.wait((tag, ks+3))
                def reis(g=g):
                    self.issue_group(sbase, g, None)
                    if g < 3: self.issue_group(sbase, g+1, None)
                self.check(vX+16*g, 16, reis, (sbase, g))
                if getattr(self, "gst", 0) and tag == "x": self.stamp(8+g)
                if g + 2 <= 3: self.issue_group(sbase, g+2, tag)
                if g in fillers: fillers[g]()
            a(f"s_waitcnt lgkmcnt({issued - i - 1})")
            r = vW + 4*(i % NR); x = vX + 4*ks
            c = f"v[{acc}:{acc+3}]" if ks > 0 else "0"
            if tr: a(f"v_mfma_f32_16x16x32_bf16 v[{acc}:{acc+3}], v[{r}:{r+3}], v[{x}:{x+3}], {c}")
            else:  a(f"v_mfma_f32_16x16x32_bf16 v[{acc}:{acc+3}], v[{x}:{x+3}], v[{r}:{r+3}], {c}")
    def st_loads(self, tag=True):
        a = self.a
        a(f"buffer_load_dwordx4 v[{vT+24}:{vT+27}], v{vSt}, s[4:7], s41 offen sc1")
        a(f"buffer_load_dwordx4 v[{vT+28}:{vT+31}], v{vSt}, s[4:7], s41 offen offset:256 sc1")
        if tag: self.vm.issue("st0"); self.vm.issue("st1")
    def wo_early(self):
        if "w" in self.opt: self.dma_w("s66", 4, LDS_WO)
    def wo_late(self):
        if "w" not in self.opt: self.dma_w("s66", 4, LDS_WO)
    def touch_early(self):
        if "t" in self.opt: self.touch("s67", 12)
    def touch_late(self):
        if "t" not in self.opt: self.touch("s67", 12)
    def stats_inloop(self):
        self.check(vT+24, 8, lambda: self.st_loads(False))
        self.stats(vT+24, vM, vR, vT+16)
        self.stats_v(vM, vR)
    def wq_addr(self, ks, nt):
        off = (ks*6 + nt)*1024
        return (vL16, off) if off < 49152 else (vLdsB, off - 49152)
    def stats(self, ld, vm_, vr_, t):
        self.a(f"""
        v_add_f32 v{ld}, v{ld}, v{ld+2}
        v_add_f32 v{ld+1}, v{ld+1}, v{ld+3}
        v_add_f32 v{ld+4}, v{ld+4}, v{ld+6}
        v_add_f32 v{ld+5}, v{ld+5}, v{ld+7}
        v_add_f32 v{ld}, v{ld}, v{ld+4}
        v_add_f32 v{ld+1}, v{ld+1}, v{ld+5}
        v_mfma_f32_16x16x4_f32 v[{t}:{t+3}], v{vOnef}, v{ld}, 0
        v_mfma_f32_16x16x4_f32 v[{t+4}:{t+7}], v{vOnef}, v{ld+1}, 0
        v_mul_f32 v{t}, 0x3b000000, v{t}
        v_mul_f32 v{t+4}, 0x3b000000, v{t+4}
        v_fma_f32 v{t+4}, -v{t}, v{t}, v{t+4}
        v_max_f32 v{t+4}, 0, v{t+4}
        v_cvt_pk_bf16_f32 v{t+1}, v{t}, v{t+4}
        v_lshlrev_b32 v{vm_}, 16, v{t+1}
        v_and_b32 v{t+4}, 0xffff0000, v{t+1}
        v_add_f32 v{t+4}, 0x3727c5ac, v{t+4}
        v_cvt_pk_bf16_f32 v{t+4}, v{t+4}, v{t+4}
        v_lshlrev_b32 v{t+4}, 16, v{t+4}
        v_sqrt_f32 v{t+4}, v{t+4}
        v_cvt_pk_bf16_f32 v{t+4}, v{t+4}, v{t+4}
        v_lshlrev_b32 v{t+4}, 16, v{t+4}
        v_rcp_f32 v{vr_}, v{t+4}
        """)
    def stats_v(self, vm_, vr_):
        a = self.a
        for r in range(4):
            a(f"ds_bpermute_b32 v{vMv+r}, v{vRowB}, v{vm_} offset:{4*r}")
            a(f"ds_bpermute_b32 v{vRv+r}, v{vRowB}, v{vr_} offset:{4*r}")
    def scaleT(self, acc, cs, out, vm_=vM, vr_=vR):
        s = []
        for r in range(4): s.append(f"v_fma_f32 v{acc+r}, -v{vm_}, v{cs+r}, v{acc+r}")
        for r in range(4): s.append(f"v_mul_f32 v{acc+r}, v{acc+r}, v{vr_}")
        s.append(f"v_cvt_pk_bf16_f32 v{out}, v{acc}, v{acc+1}")
        s.append(f"v_cvt_pk_bf16_f32 v{out+1}, v{acc+2}, v{acc+3}")
        return s
    def scaleN(self, acc, cs, out):
        s = []
        for r in range(4): s.append(f"v_fma_f32 v{acc+r}, -v{vMv+r}, v{cs}, v{acc+r}")
        for r in range(4): s.append(f"v_mul_f32 v{acc+r}, v{acc+r}, v{vRv+r}")
        s.append(f"v_cvt_pk_bf16_f32 v{out}, v{acc}, v{acc+1}")
        s.append(f"v_cvt_pk_bf16_f32 v{out+1}, v{acc+2}, v{acc+3}")
        return s
    def round4(self, p, t):
        return [f"v_cvt_pk_bf16_f32 v{t}, v{p}, v{p+1}", f"v_cvt_pk_bf16_f32 v{t+1}, v{p+2}, v{p+3}",
                f"v_lshlrev_b32 v{p}, 16, v{t}", f"v_and_b32 v{p+1}, 0xffff0000, v{t}",
                f"v_lshlrev_b32 v{p+2}, 16, v{t+1}", f"v_and_b32 v{p+3}, 0xffff0000, v{t+1}"]
    def xlane(self, src, d):
        return [f"ds_swizzle_b32 v{d}, v{src} offset:0x401f",
                f"ds_bpermute_b32 v{d+1}, v{vX32}, v{src}",
                f"ds_bpermute_b32 v{d+2}, v{vX48}, v{src}"]
    def featmap_spread(self, accs, css, outs, tb, spread, at=None):
        real = self.a
        buf = []
        class Cap:
            def __call__(s_, text):
                for ln in text.strip().split("\n"):
                    if ln.strip(): buf.append(ln.strip())
        self.a = Cap()
        self.featmap(accs, css, outs, tb)
        self.a = real
        if at is not None:
            pos = int(len(buf) * at[0])
            buf = buf[:pos] + at[1] + buf[pos:]
        step = max(1, len(buf) // (len(spread) + 1))
        out = []; k = 0
        for i, ln in enumerate(buf):
            out.append(ln)
            if (i + 1) % step == 0 and k < len(spread):
                out.append(spread[k]); k += 1
        out += spread[k:]
        real("\n".join(out))
    def featmap(self, accs, css, outs, tb, extra=None):
        a = self.a
        T = [tb, tb + 24]
        a("\n".join(interleave(*[self.scaleT(accs[h], css[h], T[h]+4) for h in range(2)])))
        for h in range(2):
            a(f"v_mfma_f32_16x16x16_bf16 v[{T[h]}:{T[h]+3}], v[{vPhi+2*h}:{vPhi+2*h+1}], v[{T[h]+4}:{T[h]+5}], 0")
        if extra: a("s_waitcnt lgkmcnt(0)\n" + "\n".join(extra))
        st = []
        for h in range(2):
            t = T[h]
            s = self.round4(t, t+4)
            s += [f"v_max_f32 v{t+6}, v{t}, v{t+1}", f"v_min_f32 v{t+7}, v{t}, v{t+1}",
                  f"v_max_f32 v{t+8}, v{t+2}, v{t+3}", f"v_min_f32 v{t+9}, v{t+2}, v{t+3}",
                  f"v_max_f32 v{t+6}, v{t+6}, v{t+8}", f"v_min_f32 v{t+7}, v{t+7}, v{t+9}"]
            s += self.xlane(t+6, t+8) + self.xlane(t+7, t+11)
            st.append(s)
        a("\n".join(interleave(*st)))
        a("s_waitcnt lgkmcnt(0)")
        st = []
        for h in range(2):
            t = T[h]
            s = [f"v_max_f32 v{t+6}, v{t+6}, v{t+8}", f"v_min_f32 v{t+7}, v{t+7}, v{t+11}",
                 f"v_max_f32 v{t+9}, v{t+9}, v{t+10}", f"v_min_f32 v{t+12}, v{t+12}, v{t+13}",
                 f"v_max_f32 v{t+6}, v{t+6}, v{t+9}", f"v_min_f32 v{t+7}, v{t+7}, v{t+12}",
                 f"v_mul_f32 v{t+6}, s60, v{t+6}", f"v_mul_f32 v{t+7}, s60, v{t+7}"]
            for r in range(4):
                s.append(f"v_fma_f32 v{t+14+r}, v{t+r}, s60, -v{t+6}")
                s.append(f"v_fma_f32 v{t+18+r}, -v{t+r}, s60, v{t+7}")
            for r in range(8): s.append(f"v_exp_f32 v{t+14+r}, v{t+14+r}")
            s += [f"v_add_f32 v{t+4}, v{t+14}, v{t+15}", f"v_add_f32 v{t+5}, v{t+18}, v{t+19}",
                  f"v_add_f32 v{t+6}, v{t+16}, v{t+17}", f"v_add_f32 v{t+7}, v{t+20}, v{t+21}",
                  f"v_add_f32 v{t+4}, v{t+4}, v{t+6}", f"v_add_f32 v{t+5}, v{t+5}, v{t+7}",
                  f"v_mfma_f32_16x16x4_f32 v[{t}:{t+3}], v{vOnef}, v{t+4}, 0",
                  f"v_mfma_f32_16x16x4_f32 v[{t+8}:{t+11}], v{vOnef}, v{t+5}, 0"]
            st.append(s)
        a("\n".join(interleave(*st)))
        st = []
        for h in range(2):
            t = T[h]; o = outs[h]
            s = [f"v_rcp_f32 v{t}, v{t}", f"v_rcp_f32 v{t+8}, v{t+8}"]
            for r in range(4):
                s.append(f"v_mul_f32 v{t+14+r}, v{t+14+r}, v{t}")
                s.append(f"v_mul_f32 v{t+18+r}, v{t+18+r}, v{t+8}")
            for r in range(4):
                s.append(f"v_cvt_pk_bf16_f32 v{o+r}, v{t+14+2*r}, v{t+15+2*r}")
            st.append(s)
        a("\n".join(interleave(*st)))

    def layer_offsets(self):
        self.a(f"""
        s_lshl_b32 s53, s39, 21                 ; l*2MB
        s_lshl_b32 s54, s33, 14
        s_add_u32 s53, s53, s54
        s_add_u32 s40, s53, {XF}                ; sXin
        s_add_u32 s43, s53, {OF}                ; sOin
        s_lshl_b32 s55, s31, 10
        s_add_u32 s42, s43, s55                 ; sOout
        s_add_u32 s44, s40, s55
        s_add_u32 s44, s44, 0x200000            ; sXout
        s_lshl_b32 s53, s39, 18
        s_lshl_b32 s54, s33, 11
        s_add_u32 s41, s53, s54
        s_add_u32 s41, s41, {ST}                ; sSTin
        s_add_u32 s45, s41, s64                 ; sSTout
        s_lshl_b32 s53, s39, 7
        s_add_u32 s54, s53, s33
        s_lshl_b32 s54, s54, 6
        s_add_u32 s47, s54, {HNT}               ; hint O (l, t)
        s_add_u32 s46, s54, {HNT + 0x8000}      ; hint X (l, t)
        s_add_u32 s49, s46, {128*64}            ; hint X (l+1, t)
        s_lshr_b32 s53, s39, 1
        s_lshl_b32 s54, s53, 4
        s_add_u32 s54, s54, s31
        s_lshl_b32 s50, s54, 12
        s_add_u32 s50, s50, {ZP}
        s_lshl_b32 s51, s54, 16
        s_add_u32 s51, s51, {KVP}
        s_and_b32 s53, s39, 1
        s_cmp_eq_u32 s53, 0
        s_cselect_b32 s66, 0, {WO_B-WO_A}
        s_cselect_b32 s68, {WO_B-WO_A}, 0
        s_cselect_b32 s67, {WQ_B}, 0
        s_cselect_b32 s65, s30, 0
        s_add_u32 s66, s66, s63
        s_add_u32 s68, s68, s63
        s_add_u32 s67, s67, s62
        """)
    def xloads(self):
        self.issue_group("s40", 0, "x"); self.issue_group("s40", 1, "x")

    def gen(self, name):
        a = self.a; vm = self.vm
        a.raw(f".globl {name}\n.p2align 8\n.type {name},@function\n{name}:")
        a(f"""
        s_cmp_ge_u32 s2, 256
        s_cbranch_scc1 L_km_end
        s_load_dwordx2 s[16:17], s[0:1], 16     ; w_phi
        s_load_dwordx2 s[18:19], s[0:1], 56     ; out
        s_load_dwordx2 s[20:21], s[0:1], 72     ; ws
        v_lshrrev_b32 v{vT}, 6, v0
        v_and_b32 v{vLane}, 63, v0
        v_readfirstlane_b32 s32, v{vT}          ; wave
        v_lshlrev_b32 v{vL16}, 4, v{vLane}
        v_lshlrev_b32 v{vL4}, 2, v{vLane}
        v_lshlrev_b32 v{vTch}, 7, v{vLane}
        v_lshlrev_b32 v{vL1k}, 10, v{vLane}
        v_lshrrev_b32 v{vT+1}, 4, v{vLane}      ; g
        v_and_b32 v{vT+2}, 15, v{vLane}         ; i
        v_lshlrev_b32 v{vSt}, 9, v{vT+1}
        v_lshlrev_b32 v{vT+3}, 4, v{vT+2}
        v_add_u32 v{vSt}, v{vSt}, v{vT+3}       ; g*512 + i*16
        s_and_b32 s30, s2, 7
        s_lshr_b32 s31, s2, 3
        s_lshl_b32 s30, s30, 1
        s_and_b32 s53, s31, 1
        s_add_u32 s30, s30, s53                 ; rb
        s_lshr_b32 s31, s31, 1                  ; ct
        s_lshl_b32 s33, s30, 3
        s_add_u32 s33, s33, s32                 ; t
        s_mov_b32 s39, 0
        s_mov_b32 s90, 0
        s_mov_b32 s60, {LOG2E}
        s_mov_b32 s61, {LOG2E_Q}
        s_mul_i32 s62, s31, 98304
        s_lshl_b32 s63, s31, 15
        s_add_u32 s63, s63, {WO_A}
        ; s64 = 0x40000 + (p>>2)*512 + ((p>>1)&1)*256 + (p&1)*8, p = ct
        s_lshr_b32 s64, s31, 1
        s_lshl_b32 s64, s64, 8
        s_and_b32 s53, s31, 1
        s_lshl_b32 s53, s53, 3
        s_add_u32 s64, s64, s53
        s_add_u32 s64, s64, 0x40000
        v_cmp_le_u32 vcc, 96, v0
        v_subrev_u32 v{vT+5}, 96, v0
        v_cndmask_b32 v{vT+5}, v0, v{vT+5}, vcc          ; c
        v_mov_b32 v{vT+6}, 98304
        v_cndmask_b32 v{vT+6}, 0, v{vT+6}, vcc
        v_lshrrev_b32 v{vT+7}, 5, v{vT+5}
        v_lshlrev_b32 v{vT+7}, 11, v{vT+7}
        v_add_u32 v{vT+6}, v{vT+6}, v{vT+7}
        v_and_b32 v{vT+7}, 31, v{vT+5}
        v_lshlrev_b32 v{vT+7}, 2, v{vT+7}
        v_add_u32 v{vT+6}, v{vT+6}, v{vT+7}
        v_lshlrev_b32 v{vT+3}, 7, v{vT+1}
        v_lshlrev_b32 v{vT+4}, 1, v{vT+2}
        v_add_u32 v{vT+3}, v{vT+3}, v{vT+4}
        """)
        self.layer_offsets()
        a(f"""
        s_waitcnt lgkmcnt(0)
        s_mov_b32 s4, s20
        s_mov_b32 s5, s21
        s_mov_b32 s6, {WS_SIZE}
        s_mov_b32 s7, 0x20000
        s_mov_b32 s8, s18
        s_mov_b32 s9, s19
        s_mov_b32 s10, 0x200000
        s_mov_b32 s11, 0x20000
        s_mov_b32 s12, s16
        s_mov_b32 s13, s17
        s_mov_b32 s14, 16384
        s_mov_b32 s15, 0x20000
        """)
        self.stamp(15)
        self.rstamp(14)
        a(f"""
        s_getreg_b32 s74, hwreg(HW_REG_XCC_ID)
        s_and_b32 s74, s74, 15
        s_add_u32 s74, s74, 1
        s_lshl_b32 s75, s30, 6
        s_add_u32 s75, s75, {XID}
        s_cmp_lg_u32 s32, 0
        s_cbranch_scc1 L_noxid
        s_lshl_b32 s53, s31, 2
        s_add_u32 s53, s53, s75
        v_mov_b32 v{vT+8}, s74
        v_mov_b32 v{vT+9}, 0
        s_mov_b64 exec, 1
        buffer_store_dword v{vT+8}, v{vT+9}, s[4:7], s53 offen sc1
        s_mov_b64 exec, -1
L_noxid:
        """)
        a(f"""
        s_lshl_b32 s53, s31, 7
        s_add_u32 s53, s53, {CSP}
        s_cmp_ge_u32 s32, 3
        s_cbranch_scc1 L_cs_skip1
        """)
        for k in range(16):
            a(f"buffer_load_dword v{vW+k}, v{vT+6}, s[4:7], s53 offen")
            if k != 15: a("s_add_u32 s53, s53, 6144")
        a("L_cs_skip1:\ns_lshl_b32 s53, s31, 10")
        for h in range(2):
            for e in range(4):
                a(f"buffer_load_ushort v{vW+16+4*h+e}, v{vT+3}, s[12:15], s53 offen offset:{h*512+e*32}")
                vm.issue("phi")
        vm.q[-1] = "philast"
        self.dma_w("s62", 12, 0)
        vm.q[-1] = "wlast"
        self.xloads()
        a(f"s_sub_u32 s53, s44, 0x200000\nbuffer_load_dwordx4 v[{vRes}:{vRes+3}], v{vL16}, s[4:7], s53 offen")
        vm.issue("res")
        a(f"""
        v_lshlrev_b32 v{vRowB}, 4, v{vT+1}      ; (4g)*4
        s_cmp_ge_u32 s32, 4
        s_cbranch_scc1 L_noarm2
        v_mov_b32 v{vAcc}, -1
        v_mov_b32 v{vAcc+1}, -1
        v_mov_b32 v{vAcc+2}, -1
        v_mov_b32 v{vAcc+3}, -1
        s_lshl_b32 s53, s32, 14
        s_lshl_b32 s54, s30, 10
        s_add_u32 s53, s53, s54
        s_add_u32 s53, s53, s51
        s_add_u32 s53, s53, 0x100000
        buffer_store_dwordx4 v[{vAcc}:{vAcc+3}], v{vL16}, s[4:7], s53 offen sc1
        s_lshl_b32 s53, s32, 6
        s_lshl_b32 s54, s30, 8
        s_add_u32 s53, s53, s54
        s_add_u32 s53, s53, s50
        s_add_u32 s53, s53, 0x10000
        s_mov_b32 s54, 0x00010001
        s_mov_b32 s55, 0x00010001
        s_mov_b64 exec, s[54:55]
        buffer_store_dwordx4 v[{vAcc}:{vAcc+3}], v{vRowB}, s[4:7], s53 offen sc1
        s_mov_b64 exec, -1
L_noarm2:
        v_add_u32 v{vLdsB}, 49152, v{vL16}
        v_add_u32 v{vLdsC}, {LDS_WO}, v{vL16}
        v_add_u32 v{vXch}, {XCH}, v{vL16}
        v_mov_b32 v{vZero}, 0
        v_mov_b32 v{vOne}, 1
        v_mov_b32 v{vOnef}, 1.0
        v_mov_b32 v{vOnes}, 0x3f803f80
        v_mov_b32 v{vOnes+1}, 0x3f803f80
        v_mov_b32 v{vOnes+2}, 0x3f803f80
        v_mov_b32 v{vOnes+3}, 0x3f803f80
        v_xor_b32 v{vX32}, 32, v{vLane}
        v_lshlrev_b32 v{vX32}, 2, v{vX32}
        v_xor_b32 v{vX48}, 48, v{vLane}
        v_lshlrev_b32 v{vX48}, 2, v{vX48}
        v_lshlrev_b32 v{vRowB}, 4, v{vT+1}      ; (4g)*4
        v_lshlrev_b32 v{vT+3}, 2, v{vT+1}
        v_sub_u32 v{vT+3}, v{vT+2}, v{vT+3}     ; j-4g
        v_mov_b32 v{vT+4}, 0x3f80
        v_mov_b32 v{vT+5}, 0x3f800000
        v_cmp_eq_u32 vcc, 0, v{vT+3}
        v_cndmask_b32 v{vId}, 0, v{vT+4}, vcc
        v_cmp_eq_u32 vcc, 1, v{vT+3}
        v_cndmask_b32 v{vId}, v{vId}, v{vT+5}, vcc
        v_cmp_eq_u32 vcc, 2, v{vT+3}
        v_cndmask_b32 v{vId+1}, 0, v{vT+4}, vcc
        v_cmp_eq_u32 vcc, 3, v{vT+3}
        v_cndmask_b32 v{vId+1}, v{vId+1}, v{vT+5}, vcc
        v_mov_b32 v{vT+4}, 0xf149f2ca
        s_cmp_lt_u32 s33, 2
        s_cselect_b32 s53, -100, -9
        """)
        for r in range(4):
            a(f"""
            v_subrev_u32 v{vT+5}, {r}, v{vT+3}
            v_cmp_gt_u32 vcc, 8, v{vT+5}
            v_cndmask_b32 v{vBias+r}, v{vT+4}, 0, vcc
            v_cmp_ge_i32 vcc, s53, v{vT+5}
            v_cndmask_b32 v{vBias+4+r}, v{vT+4}, 0, vcc
            """)
        vm.wait("philast")
        for i in range(4): a(f"v_lshl_or_b32 v{vPhi+i}, v{vW+17+2*i}, 16, v{vW+16+2*i}")
        a("s_cmp_ge_u32 s32, 3\ns_cbranch_scc1 L_cs_skip2")
        for st in (8, 4, 2, 1):
            for k in range(st): a(f"v_add_f32 v{vW+k}, v{vW+k}, v{vW+k+st}")
        a(f"""
        v_lshlrev_b32 v{vT+5}, 2, v0
        v_add_u32 v{vT+5}, {XCH + 28672}, v{vT+5}
        ds_write_b32 v{vT+5}, v{vW}
        s_waitcnt lgkmcnt(0)
L_cs_skip2:
        """)
        vm.wait("wlast")
        a(f"""
        s_barrier
        v_add_u32 v{vT+5}, {XCH + 28672}, v{vRowB}    ; g*16
        v_lshlrev_b32 v{vT+6}, 2, v{vT+2}
        v_add_u32 v{vT+6}, {XCH + 28672}, v{vT+6}     ; i*4
        """)
        for m, base in ((0, vCsA), (1, vCsB)):
            for nt in range(4):
                a(f"ds_read_b128 v[{base+4*nt}:{base+4*nt+3}], v{vT+5} offset:{m*384+nt*64}")
            for nt in range(4, 6):
                a(f"ds_read_b32 v{base+16+nt-4}, v{vT+6} offset:{m*384+nt*64}")
        a("s_branch L_A_entry")
        a.fence()
        a("L_layer:")
        self.layer_offsets()
        vm.reset()
        a("s_barrier")
        self.stamp(1)
        self.xloads()
        q0 = list(vm.q)
        a("""
        s_and_b32 s53, s39, 1
        s_cmp_eq_u32 s53, 1
        s_cbranch_scc1 L_B
L_A_entry:
        """)
        self.phaseA()
        a("s_branch L_WO")
        a.fence()
        a("L_B:")
        vm.q = list(q0)
        self.phaseB()
        a.fence()
        a("L_WO:")
        vm.reset()
        self.phaseWo()
        a("L_km_end:\ns_endpgm")
        self.flush_outl()
        a("s_endpgm\nL_code_end:")

    def early_prefetch(self):
        self.dma_w("s66", 4, LDS_WO)
        self.touch("s67", 12)

    def xid_issue(self):
        self.a(f"""
        s_mov_b64 exec, 0xffff
        buffer_load_dword v{vPoll}, v{vL4}, s[4:7], s75 offen sc1
        s_mov_b64 exec, -1
        """)
        self.vm.issue("xid")
    def decide(self):
        a = self.a
        a(f"""
        s_cmp_lg_u32 s39, 0
        s_cbranch_scc1 L_nodec
        s_mov_b32 s56, 0
        s_mov_b64 exec, 0xffff
L_xid:
        v_cmp_eq_u32 vcc, 0, v{vPoll}
        s_cbranch_vccz L_xid_done
        s_add_u32 s56, s56, 1
        s_cmp_gt_u32 s56, 0x40000
        s_cbranch_scc1 L_xid_done
        buffer_load_dword v{vPoll}, v{vL4}, s[4:7], s75 offen sc1
        s_waitcnt vmcnt(0)
        s_branch L_xid
L_xid_done:
        v_cmp_ne_u32 vcc, s74, v{vPoll}
        s_mov_b64 exec, -1
        s_cmp_eq_u64 vcc, 0
        s_cselect_b32 s73, {0 if self.force_slow else 1}, 0
L_nodec:
        """)
    def arm(self):
        a = self.a; A = vW
        a(f"""
        s_cmp_lg_u32 s39, 0
        s_cbranch_scc1 L_noarm
        v_mov_b32 v{A}, -1
        v_mov_b32 v{A+1}, -1
        v_mov_b32 v{A+2}, -1
        v_mov_b32 v{A+3}, -1
        """)
        L = []
        for base, offs in (("s42", (0x200000, 0x400000, 0x600000)), ("s44", (0x200000, 0x400000))):
            for o in offs:
                L += [f"s_add_u32 s53, {base}, {o}", f"buffer_store_dwordx4 v[{A}:{A+3}], v{vL16}, s[4:7], s53 offen @"]
        L += ["s_mov_b64 exec, 0xffff"]
        for o in (0x40000, 0x80000):
            L += [f"s_add_u32 s53, s45, {o}", f"buffer_store_dwordx2 v[{A}:{A+1}], v{vL16}, s[4:7], s53 offen @"]
        L += ["s_mov_b64 exec, -1"]
        self.dstore(L)
        a("L_noarm:")

    def phaseA(self):
        a = self.a; vm = self.vm
        self.stamp(2)
        K0, K1, V0, V1, Q0, Q1 = [vAcc + 4*i for i in range(6)]
        self.streamloop([(2, K0, True), (3, K1, True), (4, V0, False), (5, V1, False)], "s40", "x", self.wq_addr,
                        {0: self.st_loads, 2: self.wo_early, 3: lambda: (self.touch_early(), self.stats_inloop())})
        self.stamp(3); self.cstamp(12)
        self.wo_late(); self.touch_late()
        PK = [vT+0, vT+4]
        VP = vT + 16
        self.featmap([K0, K1], [vCsA+8, vCsA+12], PK, vW,
                     extra=interleave(self.scaleN(V0, vCsA+16, VP), self.scaleN(V1, vCsA+17, VP+2)))
        for i in range(4):
            d = vW + 4*i
            a(f"v_mfma_f32_16x16x16_bf16 v[{d}:{d+3}], v[{vT+2*i}:{vT+2*i+1}], v[{vId}:{vId+1}], 0")
        a(f"s_mul_i32 s53, s32, 3072\nv_add_u32 v{vTmp}, s53, v{vXch}")
        a(f"ds_write_b128 v{vTmp}, v[{VP}:{VP+3}] offset:2048")
        for i in range(4):
            d = vW + 4*i
            a(f"v_cvt_pk_bf16_f32 v{vT+8+2*i}, v{d}, v{d+1}")
            a(f"v_cvt_pk_bf16_f32 v{vT+9+2*i}, v{d+2}, v{d+3}")
        a(f"""
        ds_write_b128 v{vTmp}, v[{vT+8}:{vT+11}]
        ds_write_b128 v{vTmp}, v[{vT+12}:{vT+15}] offset:1024
        s_waitcnt lgkmcnt(0)
        s_barrier
        s_cmp_ge_u32 s32, 4
        s_cbranch_scc1 L_A_noatom
        s_lshr_b32 s53, s32, 1
        s_and_b32 s54, s32, 1
        s_lshl_b32 s55, s53, 10
        s_lshl_b32 s57, s54, 3
        s_add_u32 s55, s55, s57
        v_add_u32 v{vT}, s55, v{vXch}
        s_lshl_b32 s55, s53, 3
        s_add_u32 s55, s55, 2048
        v_add_u32 v{vT+1}, s55, v{vXch}          ; v addr
        """)
        for u in range(8):
            a(f"ds_read_b64 v[{vW+2*u}:{vW+2*u+1}], v{vT} offset:{u*3072}")
            a(f"ds_read_b64 v[{vW+16+2*u}:{vW+17+2*u}], v{vT+1} offset:{u*3072}")
        a(f"""
        s_lshl_b32 s57, s32, 14
        s_lshl_b32 s55, s30, 10
        s_add_u32 s57, s57, s55
        s_add_u32 s57, s57, s51
        s_lshl_b32 s58, s32, 6
        s_lshl_b32 s55, s30, 8
        s_add_u32 s58, s58, s55
        s_add_u32 s58, s58, s50
        """)
        KA = vW + 32; ZA = vW + 36
        for p in range(4):
            a(f"s_waitcnt lgkmcnt({12-4*p})")
            c = f"v[{KA}:{KA+3}]" if p else "0"; cz = f"v[{ZA}:{ZA+3}]" if p else "0"
            a(f"v_mfma_f32_16x16x32_bf16 v[{KA}:{KA+3}], v[{vW+4*p}:{vW+4*p+3}], v[{vW+16+4*p}:{vW+19+4*p}], {c}")
            a(f"v_mfma_f32_16x16x32_bf16 v[{ZA}:{ZA+3}], v[{vW+4*p}:{vW+4*p+3}], v[{vOnes}:{vOnes+3}], {cz}")
        a(f"""
        buffer_store_dwordx4 v[{KA}:{KA+3}], v{vL16}, s[4:7], s57 offen sc1
        s_mov_b32 s54, 0x00010001
        s_mov_b32 s55, 0x00010001
        s_mov_b64 exec, s[54:55]
        buffer_store_dwordx4 v[{ZA}:{ZA+3}], v{vRowB}, s[4:7], s58 offen sc1
        s_mov_b64 exec, -1
        """)
        a.fence()
        a("L_A_noatom:")
        self.stamp(4)
        self.xid_issue()
        self.mainloop([(0, Q0, True), (1, Q1, True)], 16, lambda ks: vX+4*ks, self.wq_addr)
        PQ = [vT+0, vT+4]
        a("s_barrier\ns_mul_i32 s53, s32, 12288\ns_add_u32 s52, s67, s53")
        sp = []
        for g in range(3):
            for i in range(4):
                pre = "s_mov_b32 m0, s53\n" if i == 0 else ""
                post = "\ns_add_u32 s52, s52, 4096\ns_add_u32 s53, s53, 4096" if i == 3 else ""
                sp.append(pre + f"buffer_load_dwordx4 v{vL16}, s[4:7], s52 offen offset:{i*1024} lds" + post)
        a("s_lshl_b32 s57, s32, 13\ns_add_u32 s57, s57, s51")
        early = os.environ.get("KVAT")
        at = None
        if early:
            L = ["s_add_u32 s58, s57, 4096"]
            for p in range(8):
                L.append(f"buffer_load_dwordx4 v[{vX+4*p}:{vX+4*p+3}], v{vL16}, s[4:7], {'s57' if p < 4 else 's58'} offen offset:{(p&3)*1024} sc1")
            L.append("s_cmp_lg_u32 s32, 7\ns_cbranch_scc1 L_A_noz0")
            for i in range(4):
                L.append(f"buffer_load_dwordx4 v[{vX+32+4*i}:{vX+35+4*i}], v{vL16}, s[4:7], s50 offen offset:{i*1024} sc1")
            L.append("L_A_noz0:")
            at = (float(early), ["\n".join(L)])
        self.featmap_spread([Q0, Q1], [vCsA+0, vCsA+4], PQ, vW, [] if "d" in self.opt else sp, at)
        self.stamp(5)
        def kvl():
            a("s_add_u32 s58, s57, 4096")
            for p in range(8):
                a(f"buffer_load_dwordx4 v[{vX+4*p}:{vX+4*p+3}], v{vL16}, s[4:7], {'s57' if p < 4 else 's58'} offen offset:{(p&3)*1024} sc1")
        def zl():
            for i in range(4):
                a(f"buffer_load_dwordx4 v[{vX+32+4*i}:{vX+35+4*i}], v{vL16}, s[4:7], s50 offen offset:{i*1024} sc1")
        if not early:
            kvl()
            a("s_cmp_lg_u32 s32, 7\ns_cbranch_scc1 L_A_noz1")
            zl()
            a("L_A_noz1:")
        vm.wait_all()
        self.decide()
        self.check(vX, 32, kvl)
        for st_ in (4, 2, 1):
            for p in range(st_):
                for r in range(4): a(f"v_add_f32 v{vX+4*p+r}, v{vX+4*p+r}, v{vX+4*(p+st_)+r}")
        a(f"s_lshl_b32 s53, s32, 10\nv_add_u32 v{vTmp}, s53, v{vXch}\nds_write_b128 v{vTmp}, v[{vX}:{vX+3}]")
        a("s_cmp_lg_u32 s32, 7\ns_cbranch_scc1 L_A_noz2")
        Z = vX + 32
        self.check(Z, 16, zl)
        for r in range(4): a(f"v_add_f32 v{Z+r}, v{Z+r}, v{Z+4+r}\nv_add_f32 v{Z+8+r}, v{Z+8+r}, v{Z+12+r}")
        for r in range(4): a(f"v_add_f32 v{Z+r}, v{Z+r}, v{Z+8+r}")
        for r in range(4): a(f"v_mfma_f32_16x16x4_f32 v[{Z+16+4*r}:{Z+19+4*r}], v{vOnef}, v{Z+r}, 0")
        a(f"""
        v_bfe_u32 v{Z+4}, v{vLane}, 3, 1
        v_lshlrev_b32 v{Z+4}, 6, v{Z+4}
        v_and_b32 v{Z+5}, 3, v{vLane}
        v_lshl_add_u32 v{Z+4}, v{Z+5}, 4, v{Z+4}
        v_bfe_u32 v{Z+5}, v{vLane}, 2, 1
        v_lshl_add_u32 v{Z+4}, v{Z+5}, 3, v{Z+4}
        v_add_u32 v{Z+4}, {XCH + 8192}, v{Z+4}
        v_cvt_pk_bf16_f32 v{Z+6}, v{Z+16}, v{Z+20}
        v_cvt_pk_bf16_f32 v{Z+7}, v{Z+24}, v{Z+28}
        s_mov_b64 exec, 0xffff
        ds_write_b64 v{Z+4}, v[{Z+6}:{Z+7}]
        s_mov_b64 exec, -1
L_A_noz2:
        s_waitcnt lgkmcnt(0)
        s_barrier
        """)
        self.stamp(6)
        for i in range(8): a(f"ds_read_b128 v[{vW+4*i}:{vW+4*i+3}], v{vXch} offset:{i*1024}")
        a(f"v_add_u32 v{vTmp}, {XCH + 8192}, v{vRowB}")
        for h in range(2): a(f"ds_read_b128 v[{vW+36+8*h}:{vW+39+8*h}], v{vTmp} offset:{h*64}")
        a("s_waitcnt lgkmcnt(2)")
        for b in range(4):
            for r in range(4): a(f"v_add_f32 v{vW+8*b+r}, v{vW+8*b+r}, v{vW+8*b+4+r}")
        for b in range(4):
            o = vW + 32 + 8*(b >> 1) + 2*(b & 1)
            a(f"v_cvt_pk_bf16_f32 v{o}, v{vW+8*b}, v{vW+8*b+1}\nv_cvt_pk_bf16_f32 v{o+1}, v{vW+8*b+2}, v{vW+8*b+3}")
        a("s_waitcnt lgkmcnt(0)")
        for h in range(2):
            o = vW + 32 + 8*h; d = vW + 8*h
            a(f"v_mfma_f32_16x16x32_bf16 v[{d}:{d+3}], v[{o}:{o+3}], v[{PQ[h]}:{PQ[h]+3}], 0")
            a(f"v_mfma_f32_16x16x32_bf16 v[{d+4}:{d+7}], v[{o+4}:{o+7}], v[{PQ[h]}:{PQ[h]+3}], 0")
        st = []
        for h in range(2):
            d = vW + 8*h; t = vW + 16 + 4*h
            s = [f"v_cvt_pk_bf16_f32 v{d+4}, v{d+4}, v{d+4}", f"v_lshlrev_b32 v{d+4}, 16, v{d+4}",
                 f"v_add_f32 v{d+4}, 0x358637bd, v{d+4}", f"v_cvt_pk_bf16_f32 v{d+4}, v{d+4}, v{d+4}",
                 f"v_lshlrev_b32 v{d+4}, 16, v{d+4}", f"v_rcp_f32 v{d+4}, v{d+4}"]
            s += self.round4(d, t)
            for r in range(4): s.append(f"v_mul_f32 v{d+r}, v{d+r}, v{d+4}")
            s += [f"v_cvt_pk_bf16_f32 v{vT+8+2*h}, v{d}, v{d+1}", f"v_cvt_pk_bf16_f32 v{vT+9+2*h}, v{d+2}, v{d+3}"]
            st.append(s)
        a("\n".join(interleave(*st)))
        self.dstore([f"buffer_store_dwordx4 v[{vT+8}:{vT+11}], v{vL16}, s[4:7], s42 offen @"])
        if "d" in self.opt: self.dma_w("s67", 12, 0)
        self.arm()

    def phaseB(self):
        a = self.a; vm = self.vm
        HP = XCH + 16384
        hM, hR = vT+6, vT+7
        HF = vW + 24
        def halo_x():
            for i in range(4):
                a(f"buffer_load_dwordx4 v[{vT+8+4*i}:{vT+11+4*i}], v{vT+1}, s[4:7], s54 offen offset:{i*1024} sc1")
        def halo_s():
            a(f"buffer_load_dwordx4 v[{vT+24}:{vT+27}], v{vT+2}, s[4:7], s55 offen sc1")
            a(f"buffer_load_dwordx4 v[{vT+28}:{vT+31}], v{vT+2}, s[4:7], s55 offen offset:256 sc1")
        a(f"""
        s_cmp_lt_u32 s32, 6
        s_cbranch_scc1 L_B_nohc
        s_lshr_b32 s53, s39, 1
        s_lshl_b32 s53, s53, 4
        s_add_u32 s53, s53, s30
        s_lshl_b32 s53, s53, 1
        s_add_u32 s53, s53, s32
        s_sub_u32 s53, s53, 6
        s_lshl_b32 s54, s53, 11
        s_add_u32 s54, s54, s64
        s_add_u32 s54, s54, {HST - 0x40000}
        s_lshl_b32 s53, s53, 14
        s_lshl_b32 s55, s31, 10
        s_add_u32 s53, s53, s55
        s_add_u32 s53, s53, {HXF}
        buffer_store_dwordx4 v[{vRes}:{vRes+3}], v{vL16}, s[4:7], s53 offen sc1
        s_mov_b64 exec, 0xffff
        buffer_store_dwordx2 v[4:5], v{vL16}, s[4:7], s54 offen sc1
        s_mov_b64 exec, -1
        s_branch L_B_hc2
L_B_nohc:
        s_mov_b64 exec, 1
        buffer_load_dword v{vDummy}, v{vL16}, s[4:7], s41 offen
        buffer_load_dword v{vDummy}, v{vL16}, s[4:7], s41 offen
        s_mov_b64 exec, -1
L_B_hc2:
        s_cmp_lt_u32 s32, 4
        s_cselect_b32 s69, s30, 0
        v_bfe_u32 v{vT}, v{vLane}, 3, 1
        v_lshlrev_b32 v{vT+1}, 14, v{vT}
        v_or_b32 v{vT+2}, 128, v{vL16}
        v_add_u32 v{vT+1}, v{vT+1}, v{vT+2}
        s_lshr_b32 s57, s39, 1
        s_lshl_b32 s57, s57, 4
        s_add_u32 s57, s57, s30
        s_sub_u32 s57, s57, 1
        s_lshl_b32 s54, s57, 15
        s_add_u32 s54, s54, {HXF}
        s_lshl_b32 s55, s32, 12
        s_add_u32 s54, s54, s55
        v_or_b32 v{vT+2}, 128, v{vSt}
        s_lshl_b32 s55, s57, 12
        s_lshl_b32 s57, s32, 11
        s_add_u32 s55, s55, s57
        s_add_u32 s55, s55, {HST}
        """)
        vm.issue("hc"); vm.issue("hc")
        self.stamp(2)
        K0, K1, V0, V1, Q0, Q1 = [vAcc + 4*i for i in range(6)]
        def f3():
            self.check(vT+24, 8, lambda: self.st_loads(False))
            self.stats(vT+24, vM, vR, vT+8)
            self.stats_v(vM, vR)
        self.streamloop([(2, K0, True), (3, K1, True), (4, V0, False), (5, V1, False)], "s40", "x", self.wq_addr,
                        {0: self.st_loads, 2: self.wo_early, 3: lambda: (self.touch_early(), f3())})
        self.stamp(3); self.cstamp(12)
        a("s_cmp_eq_u32 s69, 0\ns_cbranch_scc1 L_B_nh4")
        halo_x()
        a("s_cmp_ge_u32 s32, 2\ns_cbranch_scc1 L_B_nh4")
        halo_s()
        a("L_B_nh4:")
        self.wo_late(); self.touch_late()
        nyoung = (0 if "w" in self.opt else 4) + (0 if "t" in self.opt else 2)
        KP = vT + 0 + 0;
        KP = vBK; VPk = vBK + 4; QP = vBK + 8
        a("\n".join(interleave(self.scaleT(K0, vCsB+8, KP), self.scaleT(K1, vCsB+12, KP+2),
                               self.scaleN(V0, vCsB+16, VPk), self.scaleN(V1, vCsB+17, VPk+2))))
        a(f"""
        s_lshl_b32 s53, s32, 11
        v_add_u32 v{vT}, s53, v{vXch}
        s_cmp_ge_u32 s32, 6
        s_cbranch_scc1 L_B_nowr
        ds_write_b128 v{vT}, v[{KP}:{KP+3}] offset:4096
        ds_write_b128 v{vT}, v[{VPk}:{VPk+3}] offset:5120
L_B_nowr:
        """)
        self.mainloop([(0, Q0, True), (1, Q1, True)], 16, lambda ks: vX+4*ks, self.wq_addr)
        a(f"""
        s_cmp_eq_u32 s69, 0
        s_cbranch_scc1 L_B_nh3
        s_mul_i32 s53, s32, 24576
        v_add_u32 v{vT+3}, s53, v{vL16}
        s_waitcnt vmcnt({nyoung})
        """)
        self.check(vT+8, 16, halo_x)
        self.mainloop([(2, K0, True), (3, K1, True), (4, V0, False), (5, V1, False)], 4, lambda ks: vT+8+4*ks, lambda ks, nt: (vT+3, (ks*6+nt)*1024))
        a(f"s_lshl_b32 s53, s32, 12\ns_add_u32 s53, s53, {HP-XCH}\nv_add_u32 v{vT+3}, s53, v{vXch}")
        for i in range(4): a(f"ds_write_b128 v{vT+3}, v[{K0+4*i}:{K0+4*i+3}] offset:{i*1024}")
        a("s_cmp_ge_u32 s32, 2\ns_cbranch_scc1 L_B_nh3")
        self.check(vT+24, 8, halo_s)
        self.stats(vT+24, hM, hR, vT+8)
        self.stats_v(hM, hR)
        a.fence()
        a("L_B_nh3:")
        self.stamp(4)
        a("\n".join(interleave(self.scaleT(Q0, vCsB+0, QP), self.scaleT(Q1, vCsB+4, QP+2))))
        S = [vW + 20, vW + 28]
        for h in range(2):
            a(f"v_mfma_f32_16x16x16_bf16 v[{S[h]}:{S[h]+3}], v[{KP+2*h}:{KP+2*h+1}], v[{QP+2*h}:{QP+2*h+1}], 0")
        KPp = vW + 12; VPp = vW + 16
        a(f"""
        s_waitcnt vmcnt(2) lgkmcnt(0)
        s_barrier
        s_cmp_lt_u32 s32, 2
        s_cbranch_scc1 L_B_rd01
        ds_read_b128 v[{KPp}:{KPp+3}], v{vT}
        ds_read_b128 v[{VPp}:{VPp+3}], v{vT} offset:1024
        s_waitcnt lgkmcnt(0)
        s_branch L_B_rdd
L_B_rd01:
        """)
        for r in range(8): a(f"v_mov_b32 v{KPp+r}, 0")
        a(f"""
        s_cmp_eq_u32 s30, 0
        s_cbranch_scc1 L_B_rdd
        v_and_b32 v{vT+1}, 0x370, v{vL16}
        s_lshl_b32 s53, s32, 7
        s_add_u32 s53, s53, {HP}
        v_add_u32 v{vT+1}, s53, v{vT+1}
        v_and_b32 v{vT+2}, 0x1f0, v{vL16}
        s_lshl_b32 s53, s32, 9
        s_add_u32 s53, s53, {HP}
        v_add_u32 v{vT+2}, s53, v{vT+2}
        """)
        for tl in range(4):
            for j in range(4):
                a(f"ds_read_b128 v[{vX+16*tl+4*j}:{vX+16*tl+4*j+3}], v{vT+1 if tl < 2 else vT+2} offset:{j*4096+tl*1024}")
        for tl in range(4):
            a(f"s_waitcnt lgkmcnt({12-4*tl})")
            b = vX + 16*tl
            for r in range(4): a(f"v_add_f32 v{b+r}, v{b+r}, v{b+4+r}\nv_add_f32 v{b+8+r}, v{b+8+r}, v{b+12+r}")
            for r in range(4): a(f"v_add_f32 v{b+r}, v{b+r}, v{b+8+r}")
        a("\n".join(interleave(self.scaleT(vX, vCsB+8, KPp, hM, hR), self.scaleT(vX+16, vCsB+12, KPp+2, hM, hR),
                               self.scaleN(vX+32, vCsB+16, VPp), self.scaleN(vX+48, vCsB+17, VPp+2))))
        a.fence()
        a("L_B_rdd:")
        self.stamp(5)
        for h in range(2):
            a(f"v_mfma_f32_16x16x16_bf16 v[{S[h]+4}:{S[h]+7}], v[{KPp+2*h}:{KPp+2*h+1}], v[{QP+2*h}:{QP+2*h+1}], 0")
        AV = [vT+0, vT+4]
        for h in range(2):
            a(f"v_mov_b32 v{AV[h]}, v{VPp+2*h}\nv_mov_b32 v{AV[h]+1}, v{VPp+2*h+1}\nv_mov_b32 v{AV[h]+2}, v{VPk+2*h}\nv_mov_b32 v{AV[h]+3}, v{VPk+2*h+1}")
        st = []
        for h in range(2):
            s_ = S[h]; t = vT + 8 + 8*h
            s = self.round4(s_, t) + self.round4(s_+4, t+2)
            for r in range(8): s.append(f"v_add_f32 v{s_+r}, v{s_+r}, v{vBias+r}")
            s += [f"v_max_f32 v{t}, v{s_}, v{s_+1}", f"v_max_f32 v{t+1}, v{s_+2}, v{s_+3}",
                  f"v_max_f32 v{t+2}, v{s_+4}, v{s_+5}", f"v_max_f32 v{t+3}, v{s_+6}, v{s_+7}",
                  f"v_max_f32 v{t}, v{t}, v{t+1}", f"v_max_f32 v{t+2}, v{t+2}, v{t+3}", f"v_max_f32 v{t}, v{t}, v{t+2}"]
            s += self.xlane(t, t+1)
            st.append(s)
        a("\n".join(interleave(*st)))
        a("s_waitcnt lgkmcnt(0)")
        st = []
        for h in range(2):
            s_ = S[h]; t = vT + 8 + 8*h
            s = [f"v_max_f32 v{t}, v{t}, v{t+1}", f"v_max_f32 v{t+2}, v{t+2}, v{t+3}", f"v_max_f32 v{t}, v{t}, v{t+2}",
                 f"v_mul_f32 v{t}, s61, v{t}"]
            for r in range(8): s.append(f"v_fma_f32 v{s_+r}, v{s_+r}, s61, -v{t}")
            for r in range(8): s.append(f"v_exp_f32 v{s_+r}, v{s_+r}")
            s += [f"v_add_f32 v{t}, v{s_}, v{s_+1}", f"v_add_f32 v{t+1}, v{s_+2}, v{s_+3}",
                  f"v_add_f32 v{t+2}, v{s_+4}, v{s_+5}", f"v_add_f32 v{t+3}, v{s_+6}, v{s_+7}",
                  f"v_add_f32 v{t}, v{t}, v{t+1}", f"v_add_f32 v{t+2}, v{t+2}, v{t+3}", f"v_add_f32 v{t}, v{t}, v{t+2}",
                  f"v_mfma_f32_16x16x4_f32 v[{t+4}:{t+7}], v{vOnef}, v{t}, 0"]
            st.append(s)
        a("\n".join(interleave(*st)))
        st = []
        for h in range(2):
            s_ = S[h]; t = vT + 8 + 8*h
            s = [f"v_rcp_f32 v{t+4}, v{t+4}"]
            for r in range(8): s.append(f"v_mul_f32 v{s_+r}, v{s_+r}, v{t+4}")
            s += [f"v_cvt_pk_bf16_f32 v{t}, v{s_+4}, v{s_+5}", f"v_cvt_pk_bf16_f32 v{t+1}, v{s_+6}, v{s_+7}",
                  f"v_cvt_pk_bf16_f32 v{t+2}, v{s_}, v{s_+1}", f"v_cvt_pk_bf16_f32 v{t+3}, v{s_+2}, v{s_+3}",
                  f"v_mfma_f32_16x16x32_bf16 v[{s_}:{s_+3}], v[{AV[h]}:{AV[h]+3}], v[{t}:{t+3}], 0"]
            st.append(s)
        a("\n".join(interleave(*st)))
        for h in range(2):
            a(f"v_cvt_pk_bf16_f32 v{vW+2*h}, v{S[h]}, v{S[h]+1}\nv_cvt_pk_bf16_f32 v{vW+2*h+1}, v{S[h]+2}, v{S[h]+3}")
        self.dstore([f"buffer_store_dwordx4 v[{vW}:{vW+3}], v{vL16}, s[4:7], s42 offen @"])
        a("s_cmp_eq_u32 s39, 3\ns_cbranch_scc1 L_B_nopf")
        self.dma_w("s67", 12, 0)
        a("L_B_nopf:")

    def phaseWo(self):
        a = self.a; vm = self.vm
        self.inwo = 1
        self.stamp(7); self.cstamp(13)
        self.issue_group("s43", 0, "o"); self.issue_group("s43", 1, "o")
        T = [vAcc, vAcc+4]
        for p in range(4):
            a(f"v_lshlrev_b32 v{vT+2*p}, 16, v{vRes+p}\nv_and_b32 v{vT+1+2*p}, 0xffff0000, v{vRes+p}")
        self.streamloop([(i, T[i], True) for i in range(2)], "s43", "o", lambda ks, nt: (vLdsC, (ks*2+nt)*1024),
                        {0: lambda: self.stamp(8), 3: lambda: (self.touch("s68", 4) if "w" in self.opt else None)})
        self.stamp(9); self.cstamp(0)
        a("\n".join(interleave(self.round4(vAcc, vW), self.round4(vAcc+4, vW+2))))
        for r in range(8): a(f"v_add_f32 v{vAcc+r}, v{vAcc+r}, v{vT+r}")
        for p in range(4): a(f"v_cvt_pk_bf16_f32 v{vRes+p}, v{vAcc+2*p}, v{vAcc+2*p+1}")
        a("""
        s_cmp_eq_u32 s39, 3
        s_cbranch_scc1 L_final
        """)
        self.dstore([f"buffer_store_dwordx4 v[{vRes}:{vRes+3}], v{vL16}, s[4:7], s44 offen @"])
        a(f"v_dot2_f32_bf16 v{vW}, v{vRes}, v{vOnes}, 0\nv_dot2_f32_bf16 v{vW+1}, v{vRes}, v{vRes}, 0")
        for p in range(1, 4):
            a(f"v_dot2_f32_bf16 v{vW}, v{vRes+p}, v{vOnes}, v{vW}\nv_dot2_f32_bf16 v{vW+1}, v{vRes+p}, v{vRes+p}, v{vW+1}")
        a(f"""
        v_mfma_f32_16x16x4_f32 v[{vW+4}:{vW+7}], v{vOnef}, v{vW}, 0
        v_mfma_f32_16x16x4_f32 v[{vW+8}:{vW+11}], v{vOnef}, v{vW+1}, 0
        v_mov_b32 v{vW+5}, v{vW+8}
        s_mov_b64 exec, 0xffff
        """)
        self.dstore([f"buffer_store_dwordx2 v[{vW+4}:{vW+5}], v{vL16}, s[4:7], s45 offen @"])
        a(f"""
        s_mov_b64 exec, -1
        v_mov_b32 v4, v{vW+4}
        v_mov_b32 v5, v{vW+5}
        """)
        self.stamp(10)
        self.stamp(11)
        if self.stop is not None:
            a(f"s_cmp_eq_u32 s39, {self.stop}\ns_cbranch_scc1 L_km_end")
        a("""
        s_add_u32 s39, s39, 1
        s_branch L_layer
        """)
        a.fence()
        a(f"""
L_final:
        v_and_b32 v{vT}, 15, v{vLane}
        v_lshlrev_b32 v{vT}, 11, v{vT}
        v_lshrrev_b32 v{vT+1}, 1, v{vRowB}
        v_add_u32 v{vT}, v{vT}, v{vT+1}
        s_lshr_b32 s53, s33, 1
        s_lshl_b32 s53, s53, 5
        s_and_b32 s54, s33, 1
        s_add_u32 s53, s53, s54
        s_lshl_b32 s53, s53, 10
        s_lshl_b32 s54, s31, 6
        s_add_u32 s53, s53, s54
        buffer_store_dwordx2 v[{vRes}:{vRes+1}], v{vT}, s[8:11], s53 offen
        buffer_store_dwordx2 v[{vRes+2}:{vRes+3}], v{vT}, s[8:11], s53 offen offset:32
        """)
        self.stamp(10)
        self.stamp_dump()

def build(path, stop=None, mode=None):
    from gen_k0 import gen_k0
    a = Asm()
    a.raw("; @launch kernel=prep_kernel grid=(256,1,1) block=(256,1,1) lds=0")
    a.raw("; @launch kernel=main_kernel grid=(256,1,1) block=(512,1,1) lds=163840")
    a.raw('.amdgcn_target "amdgcn-amd-amdhsa--gfx950"\n.text')
    gen_k0(a)
    a.hist = []
    km = KM(a, stop); km.prof = (mode in ("prof", "gprof")); km.gst = (mode == "gprof"); km.opt = os.environ.get("OPT", ""); km.wo_mod = os.environ.get("WO_MOD", ""); km.force_slow = (mode == "slow"); km.gen("main_kernel")
    a.raw('.section .rodata,"a"')
    a.raw(kernel_desc("prep_kernel", 112))
    a.raw(kernel_desc("main_kernel", 256))
    open(path, "w").write(a.text())
    return a

if __name__ == "__main__":
    stop = int(sys.argv[2]) if len(sys.argv) > 2 and sys.argv[2] != "-" else None
    a = build(sys.argv[1] if len(sys.argv) > 1 else "km7.s", stop, sys.argv[3] if len(sys.argv) > 3 else None)
    print("nops inserted", a.nnop, "lines", len(a.lines))
```

```python
from asmlib import *
from layout import *
import sys, os
from gen_km import VM, interleave, LOG2E, LOG2E_Q

LDS_WO = 98304
XCH = 131072

vL16, vLdsB, vLdsC, vZero, vOne, vOnef, vLane = 1, 2, 3, 4, 5, 6, 7
vId = 8
vPhi = 10
vL4 = 14
vTch = 15
vCsA = 16
vCsB = 34
vRes = 52
vBias = 56
vX = 64
vAcc = 128
vW = 152
vT = 200
vStamp = 232
vDummy = 233
vXch = 234
vL1k = 235
vMv = 236; vRv = 240
vX32, vX48, vRowB, vSt = 244, 245, 246, 247
vOnes = 248
vM, vR = 252, 253
vPoll = 254
vTmp = 255
vHalo = vT + 26
NR = 9
vBK = vW + 36

class KM:
    def __init__(self, a, stop=None):
        self.a = a; self.vm = VM(a); self.uid = 0; self.stop = stop; self.prof = False; self.outl = []; self.force_slow = False
    def lab(self, p):
        self.uid += 1; return f"L_{p}_{self.uid}"
    def stamp(self, k):
        if not self.prof: return
        if getattr(self, "gst", 0) and getattr(self, "inwo", 0) and k >= 8: return
        self.a(f"s_memtime s[70:71]\ns_waitcnt lgkmcnt(0)\ns_lshl_b32 s72, s39, 4\ns_add_u32 m0, s72, {k}\ns_nop 1\nv_writelane_b32 v{vStamp}, s70, m0")
    def cstamp(self, k):
        if not self.prof: return
        self.a(f"s_lshl_b32 s72, s39, 4\ns_add_u32 m0, s72, {k}\ns_nop 1\nv_writelane_b32 v{vStamp}, s90, m0\ns_mov_b32 s90, 0")
    def rstamp(self, k):
        if not self.prof: return
        self.a(f"s_memrealtime s[70:71]\ns_waitcnt lgkmcnt(0)\nv_writelane_b32 v{vStamp}, s70, {k}")
    def stamp_dump(self):
        if not self.prof: return
        self.rstamp(62)
        self.a(f"s_lshl_b32 s57, s2, 3\ns_add_u32 s57, s57, s32\ns_lshl_b32 s57, s57, 8\ns_add_u32 s57, s57, 0x1800000\nbuffer_store_dword v{vStamp}, v{vL4}, s[4:7], s57 offen")
    def poll1(self, sreg, target):
        a = self.a; L = self.lab("poll"); D = self.lab("pd")
        a(f"""
        s_mov_b32 s56, 0
{L}:
        s_add_u32 s56, s56, 1
        s_cmp_gt_u32 s56, 0x40000
        s_cbranch_scc1 {D}
        buffer_load_dword v{vPoll}, v{vZero}, s[4:7], {sreg} offen sc1
        s_waitcnt vmcnt(0)
        v_readfirstlane_b32 s53, v{vPoll}
        s_cmp_ge_u32 s53, {target}
        s_cbranch_scc1 {D}
        s_sleep 2
        s_branch {L}
{D}:
        """)
    def sync(self, sig, waits, others=None):
        a = self.a; S = self.lab("sy"); O = self.lab("so")
        a(f"""
        s_barrier
        s_cmp_lg_u32 s32, 0
        s_cbranch_scc1 {O}
        s_mov_b64 exec, 1
        buffer_atomic_add v{vOne}, v{vZero}, s[4:7], {sig} offen sc1
        """)
        for w in waits:
            if isinstance(w, tuple):
                K = self.lab("sk")
                a(f"s_cmp_eq_u32 {w[1]}, 0\ns_cbranch_scc1 {K}")
                self.poll1(w[0], 16); a(f"{K}:")
            else:
                self.poll1(w, 16)
        a(f"""
        s_mov_b64 exec, -1
        s_branch {S}
{O}:
        """)
        if others: others(S)
        a(f"""
{S}:
        s_barrier
        """)
    def dma_w(self, sbase, nper, ldsbase, mod=""):
        a = self.a
        if "X" in self.opt and sbase == "s67":
            K = self.lab("xs"); a(f"s_cmp_lg_u32 s39, 0\ns_cbranch_scc1 {K}")
            sv = list(self.vm.q); o = self.opt; self.opt = ""
            self.dma_w(sbase, nper, ldsbase, mod); self.opt = o; self.vm.q = sv
            a(f"{K}:"); return
        a(f"s_mul_i32 s53, s32, {nper*1024}")
        a(f"s_add_u32 s52, {sbase}, s53")
        a(f"s_add_u32 s53, s53, {ldsbase}")
        for g in range(nper // 4):
            a(f"s_mov_b32 m0, s53")
            for i in range(4):
                a(f"buffer_load_dwordx4 v{vL16}, s[4:7], s52 offen offset:{i*1024} {mod} lds")
                self.vm.issue("dma")
            if g != nper // 4 - 1:
                a("s_add_u32 s52, s52, 4096\ns_add_u32 s53, s53, 4096")
    def touch(self, sbase, nper):
        a = self.a
        if "X" in self.opt and sbase == "s67":
            K = self.lab("xs"); a(f"s_cmp_lg_u32 s39, 0\ns_cselect_b32 s52, s41, s67"); sbase = "s52"
        a(f"s_mul_i32 s53, s32, {nper*1024}\ns_add_u32 s52, {sbase}, s53")
        if nper == 12:
            a(f"buffer_load_dword v{vDummy}, v{vTch}, s[4:7], s52 offen"); self.vm.issue("t")
            a(f"s_add_u32 s52, s52, 4096\nbuffer_load_dword v{vDummy}, v{vTch}, s[4:7], s52 offen"); self.vm.issue("t")
        else:
            a(f"s_mov_b64 exec, 0xffffffff\nbuffer_load_dword v{vDummy}, v{vTch}, s[4:7], s52 offen\ns_mov_b64 exec, -1"); self.vm.issue("t")
    def mainloop(self, tiles, nks, xreg, addr_of, xtag=None):
        a = self.a
        seq = [(ks, tl) for ks in range(nks) for tl in tiles]
        D = 8
        issued = 0
        def rd(i):
            ks, (nt, acc, tr) = seq[i]
            vb, off = addr_of(ks, nt)
            r = vW + 4*(i % NR)
            a(f"ds_read_b128 v[{r}:{r+3}], v{vb} offset:{off}")
        for i in range(len(seq)):
            while issued < min(len(seq), i + D):
                rd(issued); issued += 1
            ks, (nt, acc, tr) = seq[i]
            if xtag is not None and (i % len(tiles)) == 0: self.vm.wait((xtag, ks))
            a(f"s_waitcnt lgkmcnt({issued - i - 1})")
            r = vW + 4*(i % NR); x = xreg(ks)
            c = f"v[{acc}:{acc+3}]" if ks > 0 else "0"
            if tr: a(f"v_mfma_f32_16x16x32_bf16 v[{acc}:{acc+3}], v[{r}:{r+3}], v[{x}:{x+3}], {c}")
            else:  a(f"v_mfma_f32_16x16x32_bf16 v[{acc}:{acc+3}], v[{x}:{x+3}], v[{r}:{r+3}], {c}")
    def hint_wait(self, sreg, mask="0xffff"):
        a = self.a; L = self.lab("hw"); D = self.lab("hd")
        a(f"""
        s_mov_b32 s56, 0
        s_mov_b64 exec, {mask}
{L}:
        buffer_load_dword v{vPoll}, v{vL4}, s[4:7], {sreg} offen sc1
        s_add_u32 s56, s56, 1
        s_cmp_gt_u32 s56, 0x40000
        s_cbranch_scc1 {D}
        s_waitcnt vmcnt(0)
        v_cmp_ne_u32 vcc, 1, v{vPoll}
        s_cbranch_vccz {D}
        s_sleep 1
        s_branch {L}
{D}:
        s_mov_b64 exec, -1
        """)
        self.vm.reset()
    def hint_set(self, sreg):
        self.a(f"""
        s_lshl_b32 s53, s31, 2
        s_add_u32 s53, s53, {sreg}
        s_mov_b64 exec, 1
        buffer_store_dword v{vOne}, v{vZero}, s[4:7], s53 offen sc1
        s_mov_b64 exec, -1
        """)
    def dstore(self, lines):
        a = self.a; S = self.lab("ds"); D = self.lab("dd")
        a(f"s_cmp_eq_u32 s73, 0\ns_cbranch_scc1 {S}")
        a("\n".join(l.replace(" @", "") for l in lines))
        a(f"s_branch {D}\n{S}:")
        a("\n".join(l.replace(" @", " sc1") for l in lines))
        a(f"{D}:")
    def issue_group(self, sbase, g, tag):
        a = self.a
        if g: a(f"s_add_u32 s58, {sbase}, {g*4096}")
        sb = "s58" if g else sbase
        half = (("1" in self.opt and sbase == "s43") or ("2" in self.opt and sbase == "s40")) and g >= 2
        if half: a("s_mov_b64 exec, 1")
        for i in range(4):
            ks = 4*g + i
            a(f"buffer_load_dwordx4 v[{vX+4*ks}:{vX+4*ks+3}], v{vL16}, s[4:7], {sb} offen offset:{i*1024} sc1")
            if tag: self.vm.issue((tag, ks))
        if half: a("s_mov_b64 exec, -1")
    def check(self, base, n, reissue, hint=None):
        a = self.a; C = self.lab("chk"); R = self.lab("rt"); D = self.lab("cd")
        a(f"s_mov_b32 s56, 0\n{C}:")
        a(f"v_max3_u32 v{vTmp}, v{base}, v{base+1}, v{base+2}")
        i = 3
        while i < n:
            if i + 1 < n: a(f"v_max3_u32 v{vTmp}, v{vTmp}, v{base+i}, v{base+i+1}"); i += 2
            else: a(f"v_max_u32 v{vTmp}, v{vTmp}, v{base+i}"); i += 1
        a(f"v_cmp_eq_u32 vcc, -1, v{vTmp}\ns_cbranch_vccnz {R}\n{D}:")
        self.outl.append((R, C, D, reissue, hint))
    def flush_outl(self):
        a = self.a
        for (R, C, D, reissue, hint) in self.outl:
            a.fence()
            a(f"{R}:\ns_add_u32 s90, s90, 1\ns_add_u32 s56, s56, 1\ns_cmp_gt_u32 s56, 0x40000\ns_cbranch_scc1 {D}\ns_sleep 1")
            if hint is not None:
                sbase, g = hint
                a(f"""
                s_mov_b64 exec, 0xffff
                buffer_load_dword v{vPoll}, v{vL1k}, s[4:7], {sbase} offen offset:1020 sc1
                s_waitcnt vmcnt(0)
                v_cmp_eq_u32 vcc, -1, v{vPoll}
                s_mov_b64 exec, -1
                s_cbranch_vccnz {R}
                """)
            reissue()
            a(f"s_waitcnt vmcnt(0)\ns_branch {C}")
        self.outl = []
    def streamloop(self, tiles, sbase, tag, addr_of, fillers={}):
        a = self.a
        seq = [(ks, tl) for ks in range(16) for tl in tiles]
        D = 8
        issued = 0
        def rd(i):
            ks, (nt, acc, tr) = seq[i]
            vb, off = addr_of(ks, nt)
            r = vW + 4*(i % NR)
            a(f"ds_read_b128 v[{r}:{r+3}], v{vb} offset:{off}")
        for i in range(len(seq)):
            while issued < min(len(seq), i + D):
                rd(issued); issued += 1
            ks, (nt, acc, tr) = seq[i]
            if i % (4*len(tiles)) == 0:
                g = ks // 4
                self.vm.wait((tag, ks+3))
                def reis(g=g):
                    self.issue_group(sbase, g, None)
                    if g < 3: self.issue_group(sbase, g+1, None)
                self.check(vX+16*g, 16, reis, (sbase, g))
                if getattr(self, "gst", 0) and tag == "x": self.stamp(8+g)
                if g + 2 <= 3: self.issue_group(sbase, g+2, tag)
                if g in fillers: fillers[g]()
            a(f"s_waitcnt lgkmcnt({issued - i - 1})")
            r = vW + 4*(i % NR); x = vX + 4*ks
            c = f"v[{acc}:{acc+3}]" if ks > 0 else "0"
            if tr: a(f"v_mfma_f32_16x16x32_bf16 v[{acc}:{acc+3}], v[{r}:{r+3}], v[{x}:{x+3}], {c}")
            else:  a(f"v_mfma_f32_16x16x32_bf16 v[{acc}:{acc+3}], v[{x}:{x+3}], v[{r}:{r+3}], {c}")
    def st_loads(self, tag=True):
        a = self.a
        a(f"buffer_load_dwordx4 v[{vT+24}:{vT+27}], v{vSt}, s[4:7], s41 offen sc1")
        a(f"buffer_load_dwordx4 v[{vT+28}:{vT+31}], v{vSt}, s[4:7], s41 offen offset:256 sc1")
        if tag: self.vm.issue("st0"); self.vm.issue("st1")
    def wo_early(self):
        if "w" in self.opt: self.dma_w("s66", 4, LDS_WO)
    def wo_late(self):
        if "w" not in self.opt: self.dma_w("s66", 4, LDS_WO)
    def touch_early(self):
        if "t" in self.opt: self.touch("s67", 12)
    def touch_late(self):
        if "t" not in self.opt: self.touch("s67", 12)
    def stats_inloop(self):
        self.check(vT+24, 8, lambda: self.st_loads(False))
        self.stats(vT+24, vM, vR, vT+16)
        self.stats_v(vM, vR)
    def wq_addr(self, ks, nt):
        off = (ks*6 + nt)*1024
        return (vL16, off) if off < 49152 else (vLdsB, off - 49152)
    def stats(self, ld, vm_, vr_, t):
        self.a(f"""
        v_add_f32 v{ld}, v{ld}, v{ld+2}
        v_add_f32 v{ld+1}, v{ld+1}, v{ld+3}
        v_add_f32 v{ld+4}, v{ld+4}, v{ld+6}
        v_add_f32 v{ld+5}, v{ld+5}, v{ld+7}
        v_add_f32 v{ld}, v{ld}, v{ld+4}
        v_add_f32 v{ld+1}, v{ld+1}, v{ld+5}
        v_mfma_f32_16x16x4_f32 v[{t}:{t+3}], v{vOnef}, v{ld}, 0
        v_mfma_f32_16x16x4_f32 v[{t+4}:{t+7}], v{vOnef}, v{ld+1}, 0
        v_mul_f32 v{t}, 0x3b000000, v{t}
        v_mul_f32 v{t+4}, 0x3b000000, v{t+4}
        v_fma_f32 v{t+4}, -v{t}, v{t}, v{t+4}
        v_max_f32 v{t+4}, 0, v{t+4}
        v_cvt_pk_bf16_f32 v{t+1}, v{t}, v{t+4}
        v_lshlrev_b32 v{vm_}, 16, v{t+1}
        v_and_b32 v{t+4}, 0xffff0000, v{t+1}
        v_add_f32 v{t+4}, 0x3727c5ac, v{t+4}
        v_cvt_pk_bf16_f32 v{t+4}, v{t+4}, v{t+4}
        v_lshlrev_b32 v{t+4}, 16, v{t+4}
        v_sqrt_f32 v{t+4}, v{t+4}
        v_cvt_pk_bf16_f32 v{t+4}, v{t+4}, v{t+4}
        v_lshlrev_b32 v{t+4}, 16, v{t+4}
        v_rcp_f32 v{vr_}, v{t+4}
        """)
    def stats_v(self, vm_, vr_):
        a = self.a
        for r in range(4):
            a(f"ds_bpermute_b32 v{vMv+r}, v{vRowB}, v{vm_} offset:{4*r}")
            a(f"ds_bpermute_b32 v{vRv+r}, v{vRowB}, v{vr_} offset:{4*r}")
    def scaleT(self, acc, cs, out, vm_=vM, vr_=vR):
        s = []
        for r in range(4): s.append(f"v_fma_f32 v{acc+r}, -v{vm_}, v{cs+r}, v{acc+r}")
        for r in range(4): s.append(f"v_mul_f32 v{acc+r}, v{acc+r}, v{vr_}")
        s.append(f"v_cvt_pk_bf16_f32 v{out}, v{acc}, v{acc+1}")
        s.append(f"v_cvt_pk_bf16_f32 v{out+1}, v{acc+2}, v{acc+3}")
        return s
    def scaleN(self, acc, cs, out):
        s = []
        for r in range(4): s.append(f"v_fma_f32 v{acc+r}, -v{vMv+r}, v{cs}, v{acc+r}")
        for r in range(4): s.append(f"v_mul_f32 v{acc+r}, v{acc+r}, v{vRv+r}")
        s.append(f"v_cvt_pk_bf16_f32 v{out}, v{acc}, v{acc+1}")
        s.append(f"v_cvt_pk_bf16_f32 v{out+1}, v{acc+2}, v{acc+3}")
        return s
    def round4(self, p, t):
        return [f"v_cvt_pk_bf16_f32 v{t}, v{p}, v{p+1}", f"v_cvt_pk_bf16_f32 v{t+1}, v{p+2}, v{p+3}",
                f"v_lshlrev_b32 v{p}, 16, v{t}", f"v_and_b32 v{p+1}, 0xffff0000, v{t}",
                f"v_lshlrev_b32 v{p+2}, 16, v{t+1}", f"v_and_b32 v{p+3}, 0xffff0000, v{t+1}"]
    def xlane(self, src, d):
        return [f"ds_swizzle_b32 v{d}, v{src} offset:0x401f",
                f"ds_bpermute_b32 v{d+1}, v{vX32}, v{src}",
                f"ds_bpermute_b32 v{d+2}, v{vX48}, v{src}"]
    def featmap_spread(self, accs, css, outs, tb, spread, at=None):
        real = self.a
        buf = []
        class Cap:
            def __call__(s_, text):
                for ln in text.strip().split("\n"):
                    if ln.strip(): buf.append(ln.strip())
        self.a = Cap()
        self.featmap(accs, css, outs, tb)
        self.a = real
        if at is not None:
            pos = int(len(buf) * at[0])
            buf = buf[:pos] + at[1] + buf[pos:]
        step = max(1, len(buf) // (len(spread) + 1))
        out = []; k = 0
        for i, ln in enumerate(buf):
            out.append(ln)
            if (i + 1) % step == 0 and k < len(spread):
                out.append(spread[k]); k += 1
        out += spread[k:]
        real("\n".join(out))
    def featmap(self, accs, css, outs, tb, extra=None):
        a = self.a
        T = [tb, tb + 24]
        a("\n".join(interleave(*[self.scaleT(accs[h], css[h], T[h]+4) for h in range(2)])))
        for h in range(2):
            a(f"v_mfma_f32_16x16x16_bf16 v[{T[h]}:{T[h]+3}], v[{vPhi+2*h}:{vPhi+2*h+1}], v[{T[h]+4}:{T[h]+5}], 0")
        if extra: a("s_waitcnt lgkmcnt(0)\n" + "\n".join(extra))
        st = []
        for h in range(2):
            t = T[h]
            s = self.round4(t, t+4)
            s += [f"v_max_f32 v{t+6}, v{t}, v{t+1}", f"v_min_f32 v{t+7}, v{t}, v{t+1}",
                  f"v_max_f32 v{t+8}, v{t+2}, v{t+3}", f"v_min_f32 v{t+9}, v{t+2}, v{t+3}",
                  f"v_max_f32 v{t+6}, v{t+6}, v{t+8}", f"v_min_f32 v{t+7}, v{t+7}, v{t+9}"]
            s += self.xlane(t+6, t+8) + self.xlane(t+7, t+11)
            st.append(s)
        a("\n".join(interleave(*st)))
        a("s_waitcnt lgkmcnt(0)")
        st = []
        for h in range(2):
            t = T[h]
            s = [f"v_max_f32 v{t+6}, v{t+6}, v{t+8}", f"v_min_f32 v{t+7}, v{t+7}, v{t+11}",
                 f"v_max_f32 v{t+9}, v{t+9}, v{t+10}", f"v_min_f32 v{t+12}, v{t+12}, v{t+13}",
                 f"v_max_f32 v{t+6}, v{t+6}, v{t+9}", f"v_min_f32 v{t+7}, v{t+7}, v{t+12}",
                 f"v_mul_f32 v{t+6}, s60, v{t+6}", f"v_mul_f32 v{t+7}, s60, v{t+7}"]
            for r in range(4):
                s.append(f"v_fma_f32 v{t+14+r}, v{t+r}, s60, -v{t+6}")
                s.append(f"v_fma_f32 v{t+18+r}, -v{t+r}, s60, v{t+7}")
            for r in range(8): s.append(f"v_exp_f32 v{t+14+r}, v{t+14+r}" if "3" not in self.opt else f"v_mov_b32 v{t+14+r}, 1.0")
            s += [f"v_add_f32 v{t+4}, v{t+14}, v{t+15}", f"v_add_f32 v{t+5}, v{t+18}, v{t+19}",
                  f"v_add_f32 v{t+6}, v{t+16}, v{t+17}", f"v_add_f32 v{t+7}, v{t+20}, v{t+21}",
                  f"v_add_f32 v{t+4}, v{t+4}, v{t+6}", f"v_add_f32 v{t+5}, v{t+5}, v{t+7}",
                  f"v_mfma_f32_16x16x4_f32 v[{t}:{t+3}], v{vOnef}, v{t+4}, 0",
                  f"v_mfma_f32_16x16x4_f32 v[{t+8}:{t+11}], v{vOnef}, v{t+5}, 0"]
            st.append(s)
        a("\n".join(interleave(*st)))
        st = []
        for h in range(2):
            t = T[h]; o = outs[h]
            s = [f"v_rcp_f32 v{t}, v{t}", f"v_rcp_f32 v{t+8}, v{t+8}"]
            for r in range(4):
                s.append(f"v_mul_f32 v{t+14+r}, v{t+14+r}, v{t}")
                s.append(f"v_mul_f32 v{t+18+r}, v{t+18+r}, v{t+8}")
            for r in range(4):
                s.append(f"v_cvt_pk_bf16_f32 v{o+r}, v{t+14+2*r}, v{t+15+2*r}")
            st.append(s)
        a("\n".join(interleave(*st)))

    def layer_offsets(self):
        self.a(f"""
        s_lshl_b32 s53, s39, 21                 ; l*2MB
        s_lshl_b32 s54, s33, 14
        s_add_u32 s53, s53, s54
        s_add_u32 s40, s53, {XF}                ; sXin
        s_add_u32 s43, s53, {OF}                ; sOin
        s_lshl_b32 s55, s31, 10
        s_add_u32 s42, s43, s55                 ; sOout
        s_add_u32 s44, s40, s55
        s_add_u32 s44, s44, 0x200000            ; sXout
        s_lshl_b32 s53, s39, 18
        s_lshl_b32 s54, s33, 11
        s_add_u32 s41, s53, s54
        s_add_u32 s41, s41, {ST}                ; sSTin
        s_add_u32 s45, s41, s64                 ; sSTout
        s_lshl_b32 s53, s39, 7
        s_add_u32 s54, s53, s33
        s_lshl_b32 s54, s54, 6
        s_add_u32 s47, s54, {HNT}               ; hint O (l, t)
        s_add_u32 s46, s54, {HNT + 0x8000}      ; hint X (l, t)
        s_add_u32 s49, s46, {128*64}            ; hint X (l+1, t)
        s_lshr_b32 s53, s39, 1
        s_lshl_b32 s54, s53, 4
        s_add_u32 s54, s54, s31
        s_lshl_b32 s50, s54, 12
        s_add_u32 s50, s50, {ZP}
        s_lshl_b32 s51, s54, 16
        s_add_u32 s51, s51, {KVP}
        ; s66 = Wo(l) tile, s67 = Wq(l+1) tile, s68 = Wo(l+1) tile, s65 = need halo wait for next layer (l even && rb>0)
        s_and_b32 s53, s39, 1
        s_cmp_eq_u32 s53, 0
        s_cselect_b32 s66, 0, {WO_B-WO_A}
        s_cselect_b32 s68, {WO_B-WO_A}, 0
        s_cselect_b32 s67, {WQ_B}, 0
        s_cselect_b32 s65, s30, 0
        s_add_u32 s66, s66, s63
        s_add_u32 s68, s68, s63
        s_add_u32 s67, s67, s62
        """)
    def xloads(self):
        self.issue_group("s40", 0, "x"); self.issue_group("s40", 1, "x")

    def gen(self, name):
        a = self.a; vm = self.vm
        a.raw(f".globl {name}\n.p2align 8\n.type {name},@function\n{name}:")
        a(f"""
        s_cmp_ge_u32 s2, 256
        s_cbranch_scc1 L_km_end
        s_load_dwordx2 s[16:17], s[0:1], 16     ; w_phi
        s_load_dwordx2 s[18:19], s[0:1], 56     ; out
        s_load_dwordx2 s[20:21], s[0:1], 72     ; ws
        v_lshrrev_b32 v{vT}, 6, v0
        v_and_b32 v{vLane}, 63, v0
        v_readfirstlane_b32 s32, v{vT}          ; wave
        v_lshlrev_b32 v{vL16}, 4, v{vLane}
        v_lshlrev_b32 v{vL4}, 2, v{vLane}
        v_lshlrev_b32 v{vTch}, 7, v{vLane}
        v_lshlrev_b32 v{vL1k}, 10, v{vLane}
        v_lshrrev_b32 v{vT+1}, 4, v{vLane}      ; g
        v_and_b32 v{vT+2}, 15, v{vLane}         ; i
        v_lshlrev_b32 v{vSt}, 9, v{vT+1}
        v_lshlrev_b32 v{vT+3}, 4, v{vT+2}
        v_add_u32 v{vSt}, v{vSt}, v{vT+3}       ; g*512 + i*16
        s_and_b32 s30, s2, 7
        s_lshr_b32 s31, s2, 3
        s_lshl_b32 s30, s30, 1
        s_and_b32 s53, s31, 1
        s_add_u32 s30, s30, s53                 ; rb
        s_lshr_b32 s31, s31, 1                  ; ct
        s_lshl_b32 s33, s30, 3
        s_add_u32 s33, s33, s32                 ; t
        s_mov_b32 s39, 0
        s_mov_b32 s90, 0
        s_mov_b32 s60, {LOG2E}
        s_mov_b32 s61, {LOG2E_Q}
        s_mul_i32 s62, s31, 98304
        s_lshl_b32 s63, s31, 15
        s_add_u32 s63, s63, {WO_A}
        ; s64 = 0x40000 + (p>>2)*512 + ((p>>1)&1)*256 + (p&1)*8, p = ct
        s_lshr_b32 s64, s31, 1
        s_lshl_b32 s64, s64, 8
        s_and_b32 s53, s31, 1
        s_lshl_b32 s53, s53, 3
        s_add_u32 s64, s64, s53
        s_add_u32 s64, s64, 0x40000
        v_cmp_le_u32 vcc, 96, v0
        v_subrev_u32 v{vT+5}, 96, v0
        v_cndmask_b32 v{vT+5}, v0, v{vT+5}, vcc          ; c
        v_mov_b32 v{vT+6}, 98304
        v_cndmask_b32 v{vT+6}, 0, v{vT+6}, vcc
        v_lshrrev_b32 v{vT+7}, 5, v{vT+5}
        v_lshlrev_b32 v{vT+7}, 11, v{vT+7}
        v_add_u32 v{vT+6}, v{vT+6}, v{vT+7}
        v_and_b32 v{vT+7}, 31, v{vT+5}
        v_lshlrev_b32 v{vT+7}, 2, v{vT+7}
        v_add_u32 v{vT+6}, v{vT+6}, v{vT+7}
        v_lshlrev_b32 v{vT+3}, 7, v{vT+1}
        v_lshlrev_b32 v{vT+4}, 1, v{vT+2}
        v_add_u32 v{vT+3}, v{vT+3}, v{vT+4}
        """)
        self.layer_offsets()
        a(f"""
        s_waitcnt lgkmcnt(0)
        s_mov_b32 s4, s20
        s_mov_b32 s5, s21
        s_mov_b32 s6, {WS_SIZE}
        s_mov_b32 s7, 0x20000
        s_mov_b32 s8, s18
        s_mov_b32 s9, s19
        s_mov_b32 s10, 0x200000
        s_mov_b32 s11, 0x20000
        s_mov_b32 s12, s16
        s_mov_b32 s13, s17
        s_mov_b32 s14, 16384
        s_mov_b32 s15, 0x20000
        """)
        self.stamp(15)
        self.rstamp(14)
        a(f"""
        s_getreg_b32 s74, hwreg(HW_REG_XCC_ID)
        s_and_b32 s74, s74, 15
        s_add_u32 s74, s74, 1
        s_lshl_b32 s75, s30, 6
        s_add_u32 s75, s75, {XID}
        s_cmp_lg_u32 s32, 0
        s_cbranch_scc1 L_noxid
        s_lshl_b32 s53, s31, 2
        s_add_u32 s53, s53, s75
        v_mov_b32 v{vT+8}, s74
        v_mov_b32 v{vT+9}, 0
        s_mov_b64 exec, 1
        buffer_store_dword v{vT+8}, v{vT+9}, s[4:7], s53 offen sc1
        s_mov_b64 exec, -1
L_noxid:
        """)
        a(f"""
        s_lshl_b32 s53, s31, 7
        s_add_u32 s53, s53, {CSP}
        s_cmp_ge_u32 s32, 3
        s_cbranch_scc1 L_cs_skip1
        """)
        for k in range(16):
            a(f"buffer_load_dword v{vW+k}, v{vT+6}, s[4:7], s53 offen")
            if k != 15: a("s_add_u32 s53, s53, 6144")
        a("L_cs_skip1:\ns_lshl_b32 s53, s31, 10")
        for h in range(2):
            for e in range(4):
                a(f"buffer_load_ushort v{vW+16+4*h+e}, v{vT+3}, s[12:15], s53 offen offset:{h*512+e*32}")
                vm.issue("phi")
        vm.q[-1] = "philast"
        self.dma_w("s62", 12, 0)
        vm.q[-1] = "wlast"
        self.xloads()
        a(f"s_sub_u32 s53, s44, 0x200000\nbuffer_load_dwordx4 v[{vRes}:{vRes+3}], v{vL16}, s[4:7], s53 offen")
        vm.issue("res")
        a(f"""
        v_lshlrev_b32 v{vRowB}, 4, v{vT+1}      ; (4g)*4
        s_cmp_ge_u32 s32, 4
        s_cbranch_scc1 L_noarm2
        v_mov_b32 v{vAcc}, -1
        v_mov_b32 v{vAcc+1}, -1
        v_mov_b32 v{vAcc+2}, -1
        v_mov_b32 v{vAcc+3}, -1
        s_lshl_b32 s53, s32, 14
        s_lshl_b32 s54, s30, 10
        s_add_u32 s53, s53, s54
        s_add_u32 s53, s53, s51
        s_add_u32 s53, s53, 0x100000
        buffer_store_dwordx4 v[{vAcc}:{vAcc+3}], v{vL16}, s[4:7], s53 offen sc1
        s_lshl_b32 s53, s32, 6
        s_lshl_b32 s54, s30, 8
        s_add_u32 s53, s53, s54
        s_add_u32 s53, s53, s50
        s_add_u32 s53, s53, 0x10000
        s_mov_b32 s54, 0x00010001
        s_mov_b32 s55, 0x00010001
        s_mov_b64 exec, s[54:55]
        buffer_store_dwordx4 v[{vAcc}:{vAcc+3}], v{vRowB}, s[4:7], s53 offen sc1
        s_mov_b64 exec, -1
L_noarm2:
        v_add_u32 v{vLdsB}, 49152, v{vL16}
        v_add_u32 v{vLdsC}, {LDS_WO}, v{vL16}
        v_add_u32 v{vXch}, {XCH}, v{vL16}
        v_mov_b32 v{vZero}, 0
        v_mov_b32 v{vOne}, 1
        v_mov_b32 v{vOnef}, 1.0
        v_mov_b32 v{vOnes}, 0x3f803f80
        v_mov_b32 v{vOnes+1}, 0x3f803f80
        v_mov_b32 v{vOnes+2}, 0x3f803f80
        v_mov_b32 v{vOnes+3}, 0x3f803f80
        v_xor_b32 v{vX32}, 32, v{vLane}
        v_lshlrev_b32 v{vX32}, 2, v{vX32}
        v_xor_b32 v{vX48}, 48, v{vLane}
        v_lshlrev_b32 v{vX48}, 2, v{vX48}
        v_lshlrev_b32 v{vRowB}, 4, v{vT+1}      ; (4g)*4
        v_lshlrev_b32 v{vT+3}, 2, v{vT+1}
        v_sub_u32 v{vT+3}, v{vT+2}, v{vT+3}     ; j-4g
        v_mov_b32 v{vT+4}, 0x3f80
        v_mov_b32 v{vT+5}, 0x3f800000
        v_cmp_eq_u32 vcc, 0, v{vT+3}
        v_cndmask_b32 v{vId}, 0, v{vT+4}, vcc
        v_cmp_eq_u32 vcc, 1, v{vT+3}
        v_cndmask_b32 v{vId}, v{vId}, v{vT+5}, vcc
        v_cmp_eq_u32 vcc, 2, v{vT+3}
        v_cndmask_b32 v{vId+1}, 0, v{vT+4}, vcc
        v_cmp_eq_u32 vcc, 3, v{vT+3}
        v_cndmask_b32 v{vId+1}, v{vId+1}, v{vT+5}, vcc
        v_mov_b32 v{vT+4}, 0xf149f2ca
        s_cmp_lt_u32 s33, 2
        s_cselect_b32 s53, -100, -9
        """)
        for r in range(4):
            a(f"""
            v_subrev_u32 v{vT+5}, {r}, v{vT+3}
            v_cmp_gt_u32 vcc, 8, v{vT+5}
            v_cndmask_b32 v{vBias+r}, v{vT+4}, 0, vcc
            v_cmp_ge_i32 vcc, s53, v{vT+5}
            v_cndmask_b32 v{vBias+4+r}, v{vT+4}, 0, vcc
            """)
        vm.wait("philast")
        for i in range(4): a(f"v_lshl_or_b32 v{vPhi+i}, v{vW+17+2*i}, 16, v{vW+16+2*i}")
        a("s_cmp_ge_u32 s32, 3\ns_cbranch_scc1 L_cs_skip2")
        for st in (8, 4, 2, 1):
            for k in range(st): a(f"v_add_f32 v{vW+k}, v{vW+k}, v{vW+k+st}")
        a(f"""
        v_lshlrev_b32 v{vT+5}, 2, v0
        v_add_u32 v{vT+5}, {XCH + 28672}, v{vT+5}
        ds_write_b32 v{vT+5}, v{vW}
        s_waitcnt lgkmcnt(0)
L_cs_skip2:
        """)
        vm.wait("wlast")
        a(f"""
        s_barrier
        v_add_u32 v{vT+5}, {XCH + 28672}, v{vRowB}    ; g*16
        v_lshlrev_b32 v{vT+6}, 2, v{vT+2}
        v_add_u32 v{vT+6}, {XCH + 28672}, v{vT+6}     ; i*4
        """)
        for m, base in ((0, vCsA), (1, vCsB)):
            for nt in range(4):
                a(f"ds_read_b128 v[{base+4*nt}:{base+4*nt+3}], v{vT+5} offset:{m*384+nt*64}")
            for nt in range(4, 6):
                a(f"ds_read_b32 v{base+16+nt-4}, v{vT+6} offset:{m*384+nt*64}")
        a("s_branch L_A_entry")
        a.fence()
        a("L_layer:")
        self.layer_offsets()
        vm.reset()
        a("s_barrier")
        self.stamp(1)
        self.xloads()
        q0 = list(vm.q)
        a("""
        s_and_b32 s53, s39, 1
        s_cmp_eq_u32 s53, 1
        s_cbranch_scc1 L_B
L_A_entry:
        """)
        self.phaseA()
        a("s_branch L_WO")
        a.fence()
        a("L_B:")
        vm.q = list(q0)
        self.phaseB()
        a.fence()
        a("L_WO:")
        vm.reset()
        self.phaseWo()
        a("L_km_end:\ns_endpgm")
        self.flush_outl()
        a("s_endpgm\nL_code_end:")

    def early_prefetch(self):
        self.dma_w("s66", 4, LDS_WO)
        self.touch("s67", 12)

    def xid_issue(self):
        self.a(f"""
        s_mov_b64 exec, 0xffff
        buffer_load_dword v{vPoll}, v{vL4}, s[4:7], s75 offen sc1
        s_mov_b64 exec, -1
        """)
        self.vm.issue("xid")
    def decide(self):
        a = self.a
        a(f"""
        s_cmp_lg_u32 s39, 0
        s_cbranch_scc1 L_nodec
        s_mov_b32 s56, 0
        s_mov_b64 exec, 0xffff
L_xid:
        v_cmp_eq_u32 vcc, 0, v{vPoll}
        s_cbranch_vccz L_xid_done
        s_add_u32 s56, s56, 1
        s_cmp_gt_u32 s56, 0x40000
        s_cbranch_scc1 L_xid_done
        buffer_load_dword v{vPoll}, v{vL4}, s[4:7], s75 offen sc1
        s_waitcnt vmcnt(0)
        s_branch L_xid
L_xid_done:
        v_cmp_ne_u32 vcc, s74, v{vPoll}
        s_mov_b64 exec, -1
        s_cmp_eq_u64 vcc, 0
        s_cselect_b32 s73, {0 if self.force_slow else 1}, 0
L_nodec:
        """)
    def arm(self):
        a = self.a; A = vW
        a(f"""
        s_cmp_lg_u32 s39, 0
        s_cbranch_scc1 L_noarm
        v_mov_b32 v{A}, -1
        v_mov_b32 v{A+1}, -1
        v_mov_b32 v{A+2}, -1
        v_mov_b32 v{A+3}, -1
        """)
        L = []
        for base, offs in (("s42", (0x200000, 0x400000, 0x600000)), ("s44", (0x200000, 0x400000))):
            for o in offs:
                L += [f"s_add_u32 s53, {base}, {o}", f"buffer_store_dwordx4 v[{A}:{A+3}], v{vL16}, s[4:7], s53 offen @"]
        L += ["s_mov_b64 exec, 0xffff"]
        for o in (0x40000, 0x80000):
            L += [f"s_add_u32 s53, s45, {o}", f"buffer_store_dwordx2 v[{A}:{A+1}], v{vL16}, s[4:7], s53 offen @"]
        L += ["s_mov_b64 exec, -1"]
        self.dstore(L)
        a("L_noarm:")

    def phaseA(self):
        a = self.a; vm = self.vm
        self.stamp(2)
        K0, K1, V0, V1, Q0, Q1 = [vAcc + 4*i for i in range(6)]
        self.streamloop([(2, K0, True), (3, K1, True), (4, V0, False), (5, V1, False)], "s40", "x", self.wq_addr,
                        {0: self.st_loads, 2: self.wo_early, 3: lambda: (self.touch_early(), self.stats_inloop())})
        self.stamp(3); self.cstamp(12)
        self.wo_late(); self.touch_late()
        PK = [vT+0, vT+4]
        VP = vT + 16
        self.featmap([K0, K1], [vCsA+8, vCsA+12], PK, vW,
                     extra=interleave(self.scaleN(V0, vCsA+16, VP), self.scaleN(V1, vCsA+17, VP+2)))
        for i in range(4):
            d = vW + 4*i
            a(f"v_mfma_f32_16x16x16_bf16 v[{d}:{d+3}], v[{vT+2*i}:{vT+2*i+1}], v[{vId}:{vId+1}], 0")
        a(f"s_mul_i32 s53, s32, 3072\nv_add_u32 v{vTmp}, s53, v{vXch}")
        a(f"ds_write_b128 v{vTmp}, v[{VP}:{VP+3}] offset:2048")
        for i in range(4):
            d = vW + 4*i
            a(f"v_cvt_pk_bf16_f32 v{vT+8+2*i}, v{d}, v{d+1}")
            a(f"v_cvt_pk_bf16_f32 v{vT+9+2*i}, v{d+2}, v{d+3}")
        a(f"""
        ds_write_b128 v{vTmp}, v[{vT+8}:{vT+11}]
        ds_write_b128 v{vTmp}, v[{vT+12}:{vT+15}] offset:1024
        s_waitcnt lgkmcnt(0)
        s_barrier
        s_cmp_ge_u32 s32, 4
        s_cbranch_scc1 L_A_noatom
        s_lshr_b32 s53, s32, 1
        s_and_b32 s54, s32, 1
        s_lshl_b32 s55, s53, 10
        s_lshl_b32 s57, s54, 3
        s_add_u32 s55, s55, s57
        v_add_u32 v{vT}, s55, v{vXch}
        s_lshl_b32 s55, s53, 3
        s_add_u32 s55, s55, 2048
        v_add_u32 v{vT+1}, s55, v{vXch}          ; v addr
        """)
        for u in range(8):
            a(f"ds_read_b64 v[{vW+2*u}:{vW+2*u+1}], v{vT} offset:{u*3072}")
            a(f"ds_read_b64 v[{vW+16+2*u}:{vW+17+2*u}], v{vT+1} offset:{u*3072}")
        a(f"""
        s_lshl_b32 s57, s32, 14
        s_lshl_b32 s55, s30, 10
        s_add_u32 s57, s57, s55
        s_add_u32 s57, s57, s51
        s_lshl_b32 s58, s32, 6
        s_lshl_b32 s55, s30, 8
        s_add_u32 s58, s58, s55
        s_add_u32 s58, s58, s50
        """)
        KA = vW + 32; ZA = vW + 36
        for p in range(4):
            a(f"s_waitcnt lgkmcnt({12-4*p})")
            c = f"v[{KA}:{KA+3}]" if p else "0"; cz = f"v[{ZA}:{ZA+3}]" if p else "0"
            a(f"v_mfma_f32_16x16x32_bf16 v[{KA}:{KA+3}], v[{vW+4*p}:{vW+4*p+3}], v[{vW+16+4*p}:{vW+19+4*p}], {c}")
            a(f"v_mfma_f32_16x16x32_bf16 v[{ZA}:{ZA+3}], v[{vW+4*p}:{vW+4*p+3}], v[{vOnes}:{vOnes+3}], {cz}")
        a(f"""
        buffer_store_dwordx4 v[{KA}:{KA+3}], v{vL16}, s[4:7], s57 offen sc1
        s_mov_b32 s54, 0x00010001
        s_mov_b32 s55, 0x00010001
        s_mov_b64 exec, s[54:55]
        buffer_store_dwordx4 v[{ZA}:{ZA+3}], v{vRowB}, s[4:7], s58 offen sc1
        s_mov_b64 exec, -1
        """)
        a.fence()
        a("L_A_noatom:")
        self.stamp(4)
        self.xid_issue()
        self.mainloop([(0, Q0, True), (1, Q1, True)], 16, lambda ks: vX+4*ks, self.wq_addr)
        PQ = [vT+0, vT+4]
        a("s_barrier\ns_mul_i32 s53, s32, 12288\ns_add_u32 s52, s67, s53")
        sp = []
        for g in range(3):
            for i in range(4):
                pre = "s_mov_b32 m0, s53\n" if i == 0 else ""
                post = "\ns_add_u32 s52, s52, 4096\ns_add_u32 s53, s53, 4096" if i == 3 else ""
                sp.append(pre + f"buffer_load_dwordx4 v{vL16}, s[4:7], s52 offen offset:{i*1024} lds" + post)
        a("s_lshl_b32 s57, s32, 13\ns_add_u32 s57, s57, s51")
        early = os.environ.get("KVAT")
        at = None
        if early:
            L = ["s_add_u32 s58, s57, 4096"]
            for p in range(8):
                L.append(f"buffer_load_dwordx4 v[{vX+4*p}:{vX+4*p+3}], v{vL16}, s[4:7], {'s57' if p < 4 else 's58'} offen offset:{(p&3)*1024} sc1")
            L.append("s_cmp_lg_u32 s32, 7\ns_cbranch_scc1 L_A_noz0")
            for i in range(4):
                L.append(f"buffer_load_dwordx4 v[{vX+32+4*i}:{vX+35+4*i}], v{vL16}, s[4:7], s50 offen offset:{i*1024} sc1")
            L.append("L_A_noz0:")
            at = (float(early), ["\n".join(L)])
        self.featmap_spread([Q0, Q1], [vCsA+0, vCsA+4], PQ, vW, [] if "d" in self.opt else sp, at)
        self.stamp(5)
        def kvl():
            a("s_add_u32 s58, s57, 4096")
            for p in range(8):
                a(f"buffer_load_dwordx4 v[{vX+4*p}:{vX+4*p+3}], v{vL16}, s[4:7], {'s57' if p < 4 else 's58'} offen offset:{(p&3)*1024} sc1")
        def zl():
            for i in range(4):
                a(f"buffer_load_dwordx4 v[{vX+32+4*i}:{vX+35+4*i}], v{vL16}, s[4:7], s50 offen offset:{i*1024} sc1")
        if not early:
            kvl()
            a("s_cmp_lg_u32 s32, 7\ns_cbranch_scc1 L_A_noz1")
            zl()
            a("L_A_noz1:")
        vm.wait_all()
        self.decide()
        self.check(vX, 32, kvl)
        for st_ in (4, 2, 1):
            for p in range(st_):
                for r in range(4): a(f"v_add_f32 v{vX+4*p+r}, v{vX+4*p+r}, v{vX+4*(p+st_)+r}")
        a(f"s_lshl_b32 s53, s32, 10\nv_add_u32 v{vTmp}, s53, v{vXch}\nds_write_b128 v{vTmp}, v[{vX}:{vX+3}]")
        a("s_cmp_lg_u32 s32, 7\ns_cbranch_scc1 L_A_noz2")
        Z = vX + 32
        self.check(Z, 16, zl)
        for r in range(4): a(f"v_add_f32 v{Z+r}, v{Z+r}, v{Z+4+r}\nv_add_f32 v{Z+8+r}, v{Z+8+r}, v{Z+12+r}")
        for r in range(4): a(f"v_add_f32 v{Z+r}, v{Z+r}, v{Z+8+r}")
        for r in range(4): a(f"v_mfma_f32_16x16x4_f32 v[{Z+16+4*r}:{Z+19+4*r}], v{vOnef}, v{Z+r}, 0")
        a(f"""
        v_bfe_u32 v{Z+4}, v{vLane}, 3, 1
        v_lshlrev_b32 v{Z+4}, 6, v{Z+4}
        v_and_b32 v{Z+5}, 3, v{vLane}
        v_lshl_add_u32 v{Z+4}, v{Z+5}, 4, v{Z+4}
        v_bfe_u32 v{Z+5}, v{vLane}, 2, 1
        v_lshl_add_u32 v{Z+4}, v{Z+5}, 3, v{Z+4}
        v_add_u32 v{Z+4}, {XCH + 8192}, v{Z+4}
        v_cvt_pk_bf16_f32 v{Z+6}, v{Z+16}, v{Z+20}
        v_cvt_pk_bf16_f32 v{Z+7}, v{Z+24}, v{Z+28}
        s_mov_b64 exec, 0xffff
        ds_write_b64 v{Z+4}, v[{Z+6}:{Z+7}]
        s_mov_b64 exec, -1
L_A_noz2:
        s_waitcnt lgkmcnt(0)
        s_barrier
        """)
        self.stamp(6)
        for i in range(8): a(f"ds_read_b128 v[{vW+4*i}:{vW+4*i+3}], v{vXch} offset:{i*1024}")
        a(f"v_add_u32 v{vTmp}, {XCH + 8192}, v{vRowB}")
        for h in range(2): a(f"ds_read_b128 v[{vW+36+8*h}:{vW+39+8*h}], v{vTmp} offset:{h*64}")
        a("s_waitcnt lgkmcnt(2)")
        for b in range(4):
            for r in range(4): a(f"v_add_f32 v{vW+8*b+r}, v{vW+8*b+r}, v{vW+8*b+4+r}")
        for b in range(4):
            o = vW + 32 + 8*(b >> 1) + 2*(b & 1)
            a(f"v_cvt_pk_bf16_f32 v{o}, v{vW+8*b}, v{vW+8*b+1}\nv_cvt_pk_bf16_f32 v{o+1}, v{vW+8*b+2}, v{vW+8*b+3}")
        a("s_waitcnt lgkmcnt(0)")
        for h in range(2):
            o = vW + 32 + 8*h; d = vW + 8*h
            a(f"v_mfma_f32_16x16x32_bf16 v[{d}:{d+3}], v[{o}:{o+3}], v[{PQ[h]}:{PQ[h]+3}], 0")
            a(f"v_mfma_f32_16x16x32_bf16 v[{d+4}:{d+7}], v[{o+4}:{o+7}], v[{PQ[h]}:{PQ[h]+3}], 0")
        st = []
        for h in range(2):
            d = vW + 8*h; t = vW + 16 + 4*h
            s = [f"v_cvt_pk_bf16_f32 v{d+4}, v{d+4}, v{d+4}", f"v_lshlrev_b32 v{d+4}, 16, v{d+4}",
                 f"v_add_f32 v{d+4}, 0x358637bd, v{d+4}", f"v_cvt_pk_bf16_f32 v{d+4}, v{d+4}, v{d+4}",
                 f"v_lshlrev_b32 v{d+4}, 16, v{d+4}", f"v_rcp_f32 v{d+4}, v{d+4}"]
            s += self.round4(d, t)
            for r in range(4): s.append(f"v_mul_f32 v{d+r}, v{d+r}, v{d+4}")
            s += [f"v_cvt_pk_bf16_f32 v{vT+8+2*h}, v{d}, v{d+1}", f"v_cvt_pk_bf16_f32 v{vT+9+2*h}, v{d+2}, v{d+3}"]
            st.append(s)
        a("\n".join(interleave(*st)))
        self.dstore([f"buffer_store_dwordx4 v[{vT+8}:{vT+11}], v{vL16}, s[4:7], s42 offen @"])
        if "d" in self.opt: self.dma_w("s67", 12, 0)
        self.arm()

    def phaseB(self):
        a = self.a; vm = self.vm
        HP = XCH + 16384
        hM, hR = vT+6, vT+7
        HF = vW + 24
        def halo_x():
            for i in range(4):
                a(f"buffer_load_dwordx4 v[{vT+8+4*i}:{vT+11+4*i}], v{vT+1}, s[4:7], s54 offen offset:{i*1024} sc1")
        def halo_s():
            a(f"buffer_load_dwordx4 v[{vT+24}:{vT+27}], v{vT+2}, s[4:7], s55 offen sc1")
            a(f"buffer_load_dwordx4 v[{vT+28}:{vT+31}], v{vT+2}, s[4:7], s55 offen offset:256 sc1")
        a(f"""
        s_cmp_lt_u32 s32, 6
        s_cbranch_scc1 L_B_nohc
        s_lshr_b32 s53, s39, 1
        s_lshl_b32 s53, s53, 4
        s_add_u32 s53, s53, s30
        s_lshl_b32 s53, s53, 1
        s_add_u32 s53, s53, s32
        s_sub_u32 s53, s53, 6
        s_lshl_b32 s54, s53, 11
        s_add_u32 s54, s54, s64
        s_add_u32 s54, s54, {HST - 0x40000}
        s_lshl_b32 s53, s53, 14
        s_lshl_b32 s55, s31, 10
        s_add_u32 s53, s53, s55
        s_add_u32 s53, s53, {HXF}
        buffer_store_dwordx4 v[{vRes}:{vRes+3}], v{vL16}, s[4:7], s53 offen sc1
        s_mov_b64 exec, 0xffff
        buffer_store_dwordx2 v[4:5], v{vL16}, s[4:7], s54 offen sc1
        s_mov_b64 exec, -1
        s_branch L_B_hc2
L_B_nohc:
        s_mov_b64 exec, 1
        buffer_load_dword v{vDummy}, v{vL16}, s[4:7], s41 offen
        buffer_load_dword v{vDummy}, v{vL16}, s[4:7], s41 offen
        s_mov_b64 exec, -1
L_B_hc2:
        s_cmp_lt_u32 s32, 4
        s_cselect_b32 s69, s30, 0
        v_bfe_u32 v{vT}, v{vLane}, 3, 1
        v_lshlrev_b32 v{vT+1}, 14, v{vT}
        v_or_b32 v{vT+2}, 128, v{vL16}
        v_add_u32 v{vT+1}, v{vT+1}, v{vT+2}
        s_lshr_b32 s57, s39, 1
        s_lshl_b32 s57, s57, 4
        s_add_u32 s57, s57, s30
        s_sub_u32 s57, s57, 1
        s_lshl_b32 s54, s57, 15
        s_add_u32 s54, s54, {HXF}
        s_lshl_b32 s55, s32, 12
        s_add_u32 s54, s54, s55
        v_or_b32 v{vT+2}, 128, v{vSt}
        s_lshl_b32 s55, s57, 12
        s_lshl_b32 s57, s32, 11
        s_add_u32 s55, s55, s57
        s_add_u32 s55, s55, {HST}
        """)
        vm.issue("hc"); vm.issue("hc")
        self.stamp(2)
        K0, K1, V0, V1, Q0, Q1 = [vAcc + 4*i for i in range(6)]
        def f3():
            self.check(vT+24, 8, lambda: self.st_loads(False))
            self.stats(vT+24, vM, vR, vT+8)
            self.stats_v(vM, vR)
        self.streamloop([(2, K0, True), (3, K1, True), (4, V0, False), (5, V1, False)], "s40", "x", self.wq_addr,
                        {0: self.st_loads, 2: self.wo_early, 3: lambda: (self.touch_early(), f3())})
        self.stamp(3); self.cstamp(12)
        a("s_cmp_eq_u32 s69, 0\ns_cbranch_scc1 L_B_nh4")
        halo_x()
        a("s_cmp_ge_u32 s32, 2\ns_cbranch_scc1 L_B_nh4")
        halo_s()
        a("L_B_nh4:")
        self.wo_late(); self.touch_late()
        nyoung = (0 if "w" in self.opt else 4) + (0 if "t" in self.opt else 2)
        KP = vT + 0 + 0;
        KP = vBK; VPk = vBK + 4; QP = vBK + 8
        a("\n".join(interleave(self.scaleT(K0, vCsB+8, KP), self.scaleT(K1, vCsB+12, KP+2),
                               self.scaleN(V0, vCsB+16, VPk), self.scaleN(V1, vCsB+17, VPk+2))))
        a(f"""
        s_lshl_b32 s53, s32, 11
        v_add_u32 v{vT}, s53, v{vXch}
        s_cmp_ge_u32 s32, 6
        s_cbranch_scc1 L_B_nowr
        ds_write_b128 v{vT}, v[{KP}:{KP+3}] offset:4096
        ds_write_b128 v{vT}, v[{VPk}:{VPk+3}] offset:5120
L_B_nowr:
        """)
        self.mainloop([(0, Q0, True), (1, Q1, True)], 16, lambda ks: vX+4*ks, self.wq_addr)
        a(f"""
        s_cmp_eq_u32 s69, 0
        s_cbranch_scc1 L_B_nh3
        s_mul_i32 s53, s32, 24576
        v_add_u32 v{vT+3}, s53, v{vL16}
        s_waitcnt vmcnt({nyoung})
        """)
        self.check(vT+8, 16, halo_x)
        self.mainloop([(2, K0, True), (3, K1, True), (4, V0, False), (5, V1, False)], 4, lambda ks: vT+8+4*ks, lambda ks, nt: (vT+3, (ks*6+nt)*1024))
        a(f"s_lshl_b32 s53, s32, 12\ns_add_u32 s53, s53, {HP-XCH}\nv_add_u32 v{vT+3}, s53, v{vXch}")
        for i in range(4): a(f"ds_write_b128 v{vT+3}, v[{K0+4*i}:{K0+4*i+3}] offset:{i*1024}")
        a("s_cmp_ge_u32 s32, 2\ns_cbranch_scc1 L_B_nh3")
        self.check(vT+24, 8, halo_s)
        self.stats(vT+24, hM, hR, vT+8)
        self.stats_v(hM, hR)
        a.fence()
        a("L_B_nh3:")
        self.stamp(4)
        a("\n".join(interleave(self.scaleT(Q0, vCsB+0, QP), self.scaleT(Q1, vCsB+4, QP+2))))
        S = [vW + 20, vW + 28]
        for h in range(2):
            a(f"v_mfma_f32_16x16x16_bf16 v[{S[h]}:{S[h]+3}], v[{KP+2*h}:{KP+2*h+1}], v[{QP+2*h}:{QP+2*h+1}], 0")
        KPp = vW + 12; VPp = vW + 16
        a(f"""
        s_waitcnt vmcnt(2) lgkmcnt(0)
        s_barrier
        s_cmp_lt_u32 s32, 2
        s_cbranch_scc1 L_B_rd01
        ds_read_b128 v[{KPp}:{KPp+3}], v{vT}
        ds_read_b128 v[{VPp}:{VPp+3}], v{vT} offset:1024
        s_waitcnt lgkmcnt(0)
        s_branch L_B_rdd
L_B_rd01:
        """)
        for r in range(8): a(f"v_mov_b32 v{KPp+r}, 0")
        a(f"""
        s_cmp_eq_u32 s30, 0
        s_cbranch_scc1 L_B_rdd
        v_and_b32 v{vT+1}, 0x370, v{vL16}
        s_lshl_b32 s53, s32, 7
        s_add_u32 s53, s53, {HP}
        v_add_u32 v{vT+1}, s53, v{vT+1}
        v_and_b32 v{vT+2}, 0x1f0, v{vL16}
        s_lshl_b32 s53, s32, 9
        s_add_u32 s53, s53, {HP}
        v_add_u32 v{vT+2}, s53, v{vT+2}
        """)
        for tl in range(4):
            for j in range(4):
                a(f"ds_read_b128 v[{vX+16*tl+4*j}:{vX+16*tl+4*j+3}], v{vT+1 if tl < 2 else vT+2} offset:{j*4096+tl*1024}")
        for tl in range(4):
            a(f"s_waitcnt lgkmcnt({12-4*tl})")
            b = vX + 16*tl
            for r in range(4): a(f"v_add_f32 v{b+r}, v{b+r}, v{b+4+r}\nv_add_f32 v{b+8+r}, v{b+8+r}, v{b+12+r}")
            for r in range(4): a(f"v_add_f32 v{b+r}, v{b+r}, v{b+8+r}")
        a("\n".join(interleave(self.scaleT(vX, vCsB+8, KPp, hM, hR), self.scaleT(vX+16, vCsB+12, KPp+2, hM, hR),
                               self.scaleN(vX+32, vCsB+16, VPp), self.scaleN(vX+48, vCsB+17, VPp+2))))
        a.fence()
        a("L_B_rdd:")
        self.stamp(5)
        for h in range(2):
            a(f"v_mfma_f32_16x16x16_bf16 v[{S[h]+4}:{S[h]+7}], v[{KPp+2*h}:{KPp+2*h+1}], v[{QP+2*h}:{QP+2*h+1}], 0")
        AV = [vT+0, vT+4]
        for h in range(2):
            a(f"v_mov_b32 v{AV[h]}, v{VPp+2*h}\nv_mov_b32 v{AV[h]+1}, v{VPp+2*h+1}\nv_mov_b32 v{AV[h]+2}, v{VPk+2*h}\nv_mov_b32 v{AV[h]+3}, v{VPk+2*h+1}")
        st = []
        for h in range(2):
            s_ = S[h]; t = vT + 8 + 8*h
            s = self.round4(s_, t) + self.round4(s_+4, t+2)
            for r in range(8): s.append(f"v_add_f32 v{s_+r}, v{s_+r}, v{vBias+r}")
            s += [f"v_max_f32 v{t}, v{s_}, v{s_+1}", f"v_max_f32 v{t+1}, v{s_+2}, v{s_+3}",
                  f"v_max_f32 v{t+2}, v{s_+4}, v{s_+5}", f"v_max_f32 v{t+3}, v{s_+6}, v{s_+7}",
                  f"v_max_f32 v{t}, v{t}, v{t+1}", f"v_max_f32 v{t+2}, v{t+2}, v{t+3}", f"v_max_f32 v{t}, v{t}, v{t+2}"]
            s += self.xlane(t, t+1)
            st.append(s)
        a("\n".join(interleave(*st)))
        a("s_waitcnt lgkmcnt(0)")
        st = []
        for h in range(2):
            s_ = S[h]; t = vT + 8 + 8*h
            s = [f"v_max_f32 v{t}, v{t}, v{t+1}", f"v_max_f32 v{t+2}, v{t+2}, v{t+3}", f"v_max_f32 v{t}, v{t}, v{t+2}",
                 f"v_mul_f32 v{t}, s61, v{t}"]
            for r in range(8): s.append(f"v_fma_f32 v{s_+r}, v{s_+r}, s61, -v{t}")
            for r in range(8): s.append(f"v_exp_f32 v{s_+r}, v{s_+r}")
            s += [f"v_add_f32 v{t}, v{s_}, v{s_+1}", f"v_add_f32 v{t+1}, v{s_+2}, v{s_+3}",
                  f"v_add_f32 v{t+2}, v{s_+4}, v{s_+5}", f"v_add_f32 v{t+3}, v{s_+6}, v{s_+7}",
                  f"v_add_f32 v{t}, v{t}, v{t+1}", f"v_add_f32 v{t+2}, v{t+2}, v{t+3}", f"v_add_f32 v{t}, v{t}, v{t+2}",
                  f"v_mfma_f32_16x16x4_f32 v[{t+4}:{t+7}], v{vOnef}, v{t}, 0"]
            st.append(s)
        a("\n".join(interleave(*st)))
        st = []
        for h in range(2):
            s_ = S[h]; t = vT + 8 + 8*h
            s = [f"v_rcp_f32 v{t+4}, v{t+4}"]
            for r in range(8): s.append(f"v_mul_f32 v{s_+r}, v{s_+r}, v{t+4}")
            s += [f"v_cvt_pk_bf16_f32 v{t}, v{s_+4}, v{s_+5}", f"v_cvt_pk_bf16_f32 v{t+1}, v{s_+6}, v{s_+7}",
                  f"v_cvt_pk_bf16_f32 v{t+2}, v{s_}, v{s_+1}", f"v_cvt_pk_bf16_f32 v{t+3}, v{s_+2}, v{s_+3}",
                  f"v_mfma_f32_16x16x32_bf16 v[{s_}:{s_+3}], v[{AV[h]}:{AV[h]+3}], v[{t}:{t+3}], 0"]
            st.append(s)
        a("\n".join(interleave(*st)))
        for h in range(2):
            a(f"v_cvt_pk_bf16_f32 v{vW+2*h}, v{S[h]}, v{S[h]+1}\nv_cvt_pk_bf16_f32 v{vW+2*h+1}, v{S[h]+2}, v{S[h]+3}")
        self.dstore([f"buffer_store_dwordx4 v[{vW}:{vW+3}], v{vL16}, s[4:7], s42 offen @"])
        a("s_cmp_eq_u32 s39, 3\ns_cbranch_scc1 L_B_nopf")
        self.dma_w("s67", 12, 0)
        a("L_B_nopf:")

    def phaseWo(self):
        a = self.a; vm = self.vm
        self.inwo = 1
        self.stamp(7); self.cstamp(13)
        self.issue_group("s43", 0, "o"); self.issue_group("s43", 1, "o")
        T = [vAcc, vAcc+4]
        for p in range(4):
            a(f"v_lshlrev_b32 v{vT+2*p}, 16, v{vRes+p}\nv_and_b32 v{vT+1+2*p}, 0xffff0000, v{vRes+p}")
        self.streamloop([(i, T[i], True) for i in range(2)], "s43", "o", lambda ks, nt: (vLdsC, (ks*2+nt)*1024),
                        {0: lambda: self.stamp(8), 3: lambda: (self.touch("s68", 4) if "w" in self.opt else None)})
        self.stamp(9); self.cstamp(0)
        a("\n".join(interleave(self.round4(vAcc, vW), self.round4(vAcc+4, vW+2))))
        for r in range(8): a(f"v_add_f32 v{vAcc+r}, v{vAcc+r}, v{vT+r}")
        for p in range(4): a(f"v_cvt_pk_bf16_f32 v{vRes+p}, v{vAcc+2*p}, v{vAcc+2*p+1}")
        a("""
        s_cmp_eq_u32 s39, 3
        s_cbranch_scc1 L_final
        """)
        self.dstore([f"buffer_store_dwordx4 v[{vRes}:{vRes+3}], v{vL16}, s[4:7], s44 offen @"])
        a(f"v_dot2_f32_bf16 v{vW}, v{vRes}, v{vOnes}, 0\nv_dot2_f32_bf16 v{vW+1}, v{vRes}, v{vRes}, 0")
        for p in range(1, 4):
            a(f"v_dot2_f32_bf16 v{vW}, v{vRes+p}, v{vOnes}, v{vW}\nv_dot2_f32_bf16 v{vW+1}, v{vRes+p}, v{vRes+p}, v{vW+1}")
        a(f"""
        v_mfma_f32_16x16x4_f32 v[{vW+4}:{vW+7}], v{vOnef}, v{vW}, 0
        v_mfma_f32_16x16x4_f32 v[{vW+8}:{vW+11}], v{vOnef}, v{vW+1}, 0
        v_mov_b32 v{vW+5}, v{vW+8}
        s_mov_b64 exec, 0xffff
        """)
        self.dstore([f"buffer_store_dwordx2 v[{vW+4}:{vW+5}], v{vL16}, s[4:7], s45 offen @"])
        a(f"""
        s_mov_b64 exec, -1
        v_mov_b32 v4, v{vW+4}
        v_mov_b32 v5, v{vW+5}
        """)
        self.stamp(10)
        self.stamp(11)
        if self.stop is not None:
            a(f"s_cmp_eq_u32 s39, {self.stop}\ns_cbranch_scc1 L_km_end")
        a("""
        s_add_u32 s39, s39, 1
        s_branch L_layer
        """)
        a.fence()
        a(f"""
L_final:
        v_and_b32 v{vT}, 15, v{vLane}
        v_lshlrev_b32 v{vT}, 11, v{vT}
        v_lshrrev_b32 v{vT+1}, 1, v{vRowB}
        v_add_u32 v{vT}, v{vT}, v{vT+1}
        s_lshr_b32 s53, s33, 1
        s_lshl_b32 s53, s53, 5
        s_and_b32 s54, s33, 1
        s_add_u32 s53, s53, s54
        s_lshl_b32 s53, s53, 10
        s_lshl_b32 s54, s31, 6
        s_add_u32 s53, s53, s54
        buffer_store_dwordx2 v[{vRes}:{vRes+1}], v{vT}, s[8:11], s53 offen
        buffer_store_dwordx2 v[{vRes+2}:{vRes+3}], v{vT}, s[8:11], s53 offen offset:32
        """)
        self.stamp(10)
        self.stamp_dump()

def build(path, stop=None, mode=None):
    from gen_k0 import gen_k0
    a = Asm()
    a.raw("; @launch kernel=prep_kernel grid=(256,1,1) block=(256,1,1) lds=0")
    a.raw("; @launch kernel=main_kernel grid=(256,1,1) block=(512,1,1) lds=163840")
    a.raw('.amdgcn_target "amdgcn-amd-amdhsa--gfx950"\n.text')
    gen_k0(a)
    a.hist = []
    km = KM(a, stop); km.prof = (mode in ("prof", "gprof")); km.gst = (mode == "gprof"); km.opt = os.environ.get("OPT", ""); km.wo_mod = os.environ.get("WO_MOD", ""); km.force_slow = (mode == "slow"); km.gen("main_kernel")
    a.raw('.section .rodata,"a"')
    a.raw(kernel_desc("prep_kernel", 112))
    a.raw(kernel_desc("main_kernel", 256))
    open(path, "w").write(a.text())
    return a

if __name__ == "__main__":
    stop = int(sys.argv[2]) if len(sys.argv) > 2 and sys.argv[2] != "-" else None
    a = build(sys.argv[1] if len(sys.argv) > 1 else "km7.s", stop, sys.argv[3] if len(sys.argv) > 3 else None)
    print("nops inserted", a.nnop, "lines", len(a.lines))
```

```python
from asmlib import *
from layout import *
import sys, os
from gen_km import VM, interleave, LOG2E, LOG2E_Q

LDS_WO = 98304
XCH = 131072

vL16, vLdsB, vLdsC, vZero, vOne, vOnef, vLane = 1, 2, 3, 4, 5, 6, 7
vId = 8
vPhi = 10
vL4 = 14
vTch = 15
vCsA = 16
vCsB = 34
vRes = 52
vBias = 56
vX = 64
vAcc = 128
vW = 152
vT = 200
vStamp = 232
vDummy = 233
vXch = 234
vL1k = 235
vMv = 236; vRv = 240
vX32, vX48, vRowB, vSt = 244, 245, 246, 247
vOnes = 248
vM, vR = 252, 253
vPoll = 254
vTmp = 255
vHalo = vT + 26
NR = 9
vBK = vW + 36

class KM:
    def __init__(self, a, stop=None):
        self.a = a; self.vm = VM(a); self.uid = 0; self.stop = stop; self.prof = False; self.outl = []; self.force_slow = False
    def lab(self, p):
        self.uid += 1; return f"L_{p}_{self.uid}"
    def stamp(self, k):
        if not self.prof: return
        if getattr(self, "gst", 0) and getattr(self, "inwo", 0) and k >= 8: return
        self.a(f"s_memtime s[70:71]\ns_waitcnt lgkmcnt(0)\ns_lshl_b32 s72, s39, 4\ns_add_u32 m0, s72, {k}\ns_nop 1\nv_writelane_b32 v{vStamp}, s70, m0")
    def cstamp(self, k):
        if not self.prof: return
        self.a(f"s_lshl_b32 s72, s39, 4\ns_add_u32 m0, s72, {k}\ns_nop 1\nv_writelane_b32 v{vStamp}, s90, m0\ns_mov_b32 s90, 0")
    def rstamp(self, k):
        if not self.prof: return
        self.a(f"s_memrealtime s[70:71]\ns_waitcnt lgkmcnt(0)\nv_writelane_b32 v{vStamp}, s70, {k}")
    def stamp_dump(self):
        if not self.prof: return
        self.rstamp(62)
        self.a(f"s_lshl_b32 s57, s2, 3\ns_add_u32 s57, s57, s32\ns_lshl_b32 s57, s57, 8\ns_add_u32 s57, s57, 0x1800000\nbuffer_store_dword v{vStamp}, v{vL4}, s[4:7], s57 offen")
    def poll1(self, sreg, target):
        a = self.a; L = self.lab("poll"); D = self.lab("pd")
        a(f"""
        s_mov_b32 s56, 0
{L}:
        s_add_u32 s56, s56, 1
        s_cmp_gt_u32 s56, 0x40000
        s_cbranch_scc1 {D}
        buffer_load_dword v{vPoll}, v{vZero}, s[4:7], {sreg} offen sc1
        s_waitcnt vmcnt(0)
        v_readfirstlane_b32 s53, v{vPoll}
        s_cmp_ge_u32 s53, {target}
        s_cbranch_scc1 {D}
        s_sleep 2
        s_branch {L}
{D}:
        """)
    def sync(self, sig, waits, others=None):
        a = self.a; S = self.lab("sy"); O = self.lab("so")
        a(f"""
        s_barrier
        s_cmp_lg_u32 s32, 0
        s_cbranch_scc1 {O}
        s_mov_b64 exec, 1
        buffer_atomic_add v{vOne}, v{vZero}, s[4:7], {sig} offen sc1
        """)
        for w in waits:
            if isinstance(w, tuple):
                K = self.lab("sk")
                a(f"s_cmp_eq_u32 {w[1]}, 0\ns_cbranch_scc1 {K}")
                self.poll1(w[0], 16); a(f"{K}:")
            else:
                self.poll1(w, 16)
        a(f"""
        s_mov_b64 exec, -1
        s_branch {S}
{O}:
        """)
        if others: others(S)
        a(f"""
{S}:
        s_barrier
        """)
    def dma_w(self, sbase, nper, ldsbase, mod=""):
        a = self.a
        if "X" in self.opt and sbase == "s67":
            K = self.lab("xs"); a(f"s_cmp_lg_u32 s39, 0\ns_cbranch_scc1 {K}")
            sv = list(self.vm.q); o = self.opt; self.opt = ""
            self.dma_w(sbase, nper, ldsbase, mod); self.opt = o; self.vm.q = sv
            a(f"{K}:"); return
        a(f"s_mul_i32 s53, s32, {nper*1024}")
        a(f"s_add_u32 s52, {sbase}, s53")
        a(f"s_add_u32 s53, s53, {ldsbase}")
        for g in range(nper // 4):
            a(f"s_mov_b32 m0, s53")
            for i in range(4):
                a(f"buffer_load_dwordx4 v{vL16}, s[4:7], s52 offen offset:{i*1024} {mod} lds")
                self.vm.issue("dma")
            if g != nper // 4 - 1:
                a("s_add_u32 s52, s52, 4096\ns_add_u32 s53, s53, 4096")
    def touch(self, sbase, nper):
        a = self.a
        if "X" in self.opt and sbase == "s67":
            K = self.lab("xs"); a(f"s_cmp_lg_u32 s39, 0\ns_cselect_b32 s52, s41, s67"); sbase = "s52"
        a(f"s_mul_i32 s53, s32, {nper*1024}\ns_add_u32 s52, {sbase}, s53")
        if nper == 12:
            a(f"buffer_load_dword v{vDummy}, v{vTch}, s[4:7], s52 offen"); self.vm.issue("t")
            a(f"s_add_u32 s52, s52, 4096\nbuffer_load_dword v{vDummy}, v{vTch}, s[4:7], s52 offen"); self.vm.issue("t")
        else:
            a(f"s_mov_b64 exec, 0xffffffff\nbuffer_load_dword v{vDummy}, v{vTch}, s[4:7], s52 offen\ns_mov_b64 exec, -1"); self.vm.issue("t")
    def mainloop(self, tiles, nks, xreg, addr_of, xtag=None):
        a = self.a
        seq = [(ks, tl) for ks in range(nks) for tl in tiles]
        D = 8
        issued = 0
        def rd(i):
            ks, (nt, acc, tr) = seq[i]
            vb, off = addr_of(ks, nt)
            r = vW + 4*(i % NR)
            a(f"ds_read_b128 v[{r}:{r+3}], v{vb} offset:{off}")
        for i in range(len(seq)):
            while issued < min(len(seq), i + D):
                rd(issued); issued += 1
            ks, (nt, acc, tr) = seq[i]
            if xtag is not None and (i % len(tiles)) == 0: self.vm.wait((xtag, ks))
            a(f"s_waitcnt lgkmcnt({issued - i - 1})")
            r = vW + 4*(i % NR); x = xreg(ks)
            c = f"v[{acc}:{acc+3}]" if ks > 0 else "0"
            if tr: a(f"v_mfma_f32_16x16x32_bf16 v[{acc}:{acc+3}], v[{r}:{r+3}], v[{x}:{x+3}], {c}")
            else:  a(f"v_mfma_f32_16x16x32_bf16 v[{acc}:{acc+3}], v[{x}:{x+3}], v[{r}:{r+3}], {c}")
    def hint_wait(self, sreg, mask="0xffff"):
        a = self.a; L = self.lab("hw"); D = self.lab("hd")
        a(f"""
        s_mov_b32 s56, 0
        s_mov_b64 exec, {mask}
{L}:
        buffer_load_dword v{vPoll}, v{vL4}, s[4:7], {sreg} offen sc1
        s_add_u32 s56, s56, 1
        s_cmp_gt_u32 s56, 0x40000
        s_cbranch_scc1 {D}
        s_waitcnt vmcnt(0)
        v_cmp_ne_u32 vcc, 1, v{vPoll}
        s_cbranch_vccz {D}
        s_sleep 1
        s_branch {L}
{D}:
        s_mov_b64 exec, -1
        """)
        self.vm.reset()
    def hint_set(self, sreg):
        self.a(f"""
        s_lshl_b32 s53, s31, 2
        s_add_u32 s53, s53, {sreg}
        s_mov_b64 exec, 1
        buffer_store_dword v{vOne}, v{vZero}, s[4:7], s53 offen sc1
        s_mov_b64 exec, -1
        """)
    def dstore(self, lines):
        a = self.a; S = self.lab("ds"); D = self.lab("dd")
        a(f"s_cmp_eq_u32 s73, 0\ns_cbranch_scc1 {S}")
        a("\n".join(l.replace(" @", "") for l in lines))
        a(f"s_branch {D}\n{S}:")
        a("\n".join(l.replace(" @", " sc1") for l in lines))
        a(f"{D}:")
    def issue_group(self, sbase, g, tag):
        a = self.a
        if g: a(f"s_add_u32 s58, {sbase}, {g*4096}")
        sb = "s58" if g else sbase
        half = (("1" in self.opt and sbase == "s43") or ("2" in self.opt and sbase == "s40")) and g >= 2
        if half: a("s_mov_b64 exec, 1")
        for i in range(4):
            ks = 4*g + i
            a(f"buffer_load_dwordx4 v[{vX+4*ks}:{vX+4*ks+3}], v{vL16}, s[4:7], {sb} offen offset:{i*1024} sc1")
            if tag: self.vm.issue((tag, ks))
        if half: a("s_mov_b64 exec, -1")
    def check(self, base, n, reissue, hint=None):
        a = self.a; C = self.lab("chk"); R = self.lab("rt"); D = self.lab("cd")
        a(f"s_mov_b32 s56, 0\n{C}:")
        a(f"v_max3_u32 v{vTmp}, v{base}, v{base+1}, v{base+2}")
        i = 3
        while i < n:
            if i + 1 < n: a(f"v_max3_u32 v{vTmp}, v{vTmp}, v{base+i}, v{base+i+1}"); i += 2
            else: a(f"v_max_u32 v{vTmp}, v{vTmp}, v{base+i}"); i += 1
        a(f"v_cmp_eq_u32 vcc, -1, v{vTmp}\ns_cbranch_vccnz {R}\n{D}:")
        self.outl.append((R, C, D, reissue, hint))
    def flush_outl(self):
        a = self.a
        for (R, C, D, reissue, hint) in self.outl:
            a.fence()
            a(f"{R}:\ns_add_u32 s90, s90, 1\ns_add_u32 s56, s56, 1\ns_cmp_gt_u32 s56, 0x40000\ns_cbranch_scc1 {D}\ns_sleep 1")
            if hint is not None:
                sbase, g = hint
                a(f"""
                s_mov_b64 exec, 0xffff
                buffer_load_dword v{vPoll}, v{vL1k}, s[4:7], {sbase} offen offset:1020 sc1
                s_waitcnt vmcnt(0)
                v_cmp_eq_u32 vcc, -1, v{vPoll}
                s_mov_b64 exec, -1
                s_cbranch_vccnz {R}
                """)
            reissue()
            a(f"s_waitcnt vmcnt(0)\ns_branch {C}")
        self.outl = []
    def streamloop(self, tiles, sbase, tag, addr_of, fillers={}):
        a = self.a
        seq = [(ks, tl) for ks in range(16) for tl in tiles]
        D = 8
        issued = 0
        def rd(i):
            ks, (nt, acc, tr) = seq[i]
            vb, off = addr_of(ks, nt)
            r = vW + 4*(i % NR)
            a(f"ds_read_b128 v[{r}:{r+3}], v{vb} offset:{off}")
        for i in range(len(seq)):
            while issued < min(len(seq), i + D):
                rd(issued); issued += 1
            ks, (nt, acc, tr) = seq[i]
            if i % (4*len(tiles)) == 0:
                g = ks // 4
                self.vm.wait((tag, ks+3))
                def reis(g=g):
                    self.issue_group(sbase, g, None)
                    if g < 3: self.issue_group(sbase, g+1, None)
                self.check(vX+16*g, 16, reis, (sbase, g))
                if getattr(self, "gst", 0) and tag == "x": self.stamp(8+g)
                if g + 2 <= 3: self.issue_group(sbase, g+2, tag)
                if g in fillers: fillers[g]()
            a(f"s_waitcnt lgkmcnt({issued - i - 1})")
            r = vW + 4*(i % NR); x = vX + 4*ks
            c = f"v[{acc}:{acc+3}]" if ks > 0 else "0"
            if tr: a(f"v_mfma_f32_16x16x32_bf16 v[{acc}:{acc+3}], v[{r}:{r+3}], v[{x}:{x+3}], {c}")
            else:  a(f"v_mfma_f32_16x16x32_bf16 v[{acc}:{acc+3}], v[{x}:{x+3}], v[{r}:{r+3}], {c}")
    def st_loads(self, tag=True):
        a = self.a
        a(f"buffer_load_dwordx4 v[{vT+24}:{vT+27}], v{vSt}, s[4:7], s41 offen sc1")
        a(f"buffer_load_dwordx4 v[{vT+28}:{vT+31}], v{vSt}, s[4:7], s41 offen offset:256 sc1")
        if tag: self.vm.issue("st0"); self.vm.issue("st1")
    def wo_early(self):
        if "w" in self.opt: self.dma_w("s66", 4, LDS_WO)
    def wo_late(self):
        if "w" not in self.opt: self.dma_w("s66", 4, LDS_WO)
    def touch_early(self):
        if "t" in self.opt: self.touch("s67", 12)
    def touch_late(self):
        if "t" not in self.opt: self.touch("s67", 12)
    def stats_inloop(self):
        self.check(vT+24, 8, lambda: self.st_loads(False))
        self.stats(vT+24, vM, vR, vT+16)
        self.stats_v(vM, vR)
    def wq_addr(self, ks, nt):
        off = (ks*6 + nt)*1024
        return (vL16, off) if off < 49152 else (vLdsB, off - 49152)
    def stats(self, ld, vm_, vr_, t):
        self.a(f"""
        v_add_f32 v{ld}, v{ld}, v{ld+2}
        v_add_f32 v{ld+1}, v{ld+1}, v{ld+3}
        v_add_f32 v{ld+4}, v{ld+4}, v{ld+6}
        v_add_f32 v{ld+5}, v{ld+5}, v{ld+7}
        v_add_f32 v{ld}, v{ld}, v{ld+4}
        v_add_f32 v{ld+1}, v{ld+1}, v{ld+5}
        v_mfma_f32_16x16x4_f32 v[{t}:{t+3}], v{vOnef}, v{ld}, 0
        v_mfma_f32_16x16x4_f32 v[{t+4}:{t+7}], v{vOnef}, v{ld+1}, 0
        v_mul_f32 v{t}, 0x3b000000, v{t}
        v_mul_f32 v{t+4}, 0x3b000000, v{t+4}
        v_fma_f32 v{t+4}, -v{t}, v{t}, v{t+4}
        v_max_f32 v{t+4}, 0, v{t+4}
        v_cvt_pk_bf16_f32 v{t+1}, v{t}, v{t+4}
        v_lshlrev_b32 v{vm_}, 16, v{t+1}
        v_and_b32 v{t+4}, 0xffff0000, v{t+1}
        v_add_f32 v{t+4}, 0x3727c5ac, v{t+4}
        v_cvt_pk_bf16_f32 v{t+4}, v{t+4}, v{t+4}
        v_lshlrev_b32 v{t+4}, 16, v{t+4}
        v_sqrt_f32 v{t+4}, v{t+4}
        v_cvt_pk_bf16_f32 v{t+4}, v{t+4}, v{t+4}
        v_lshlrev_b32 v{t+4}, 16, v{t+4}
        v_rcp_f32 v{vr_}, v{t+4}
        """)
    def stats_v(self, vm_, vr_):
        a = self.a
        for r in range(4):
            a(f"ds_bpermute_b32 v{vMv+r}, v{vRowB}, v{vm_} offset:{4*r}")
            a(f"ds_bpermute_b32 v{vRv+r}, v{vRowB}, v{vr_} offset:{4*r}")
    def scaleT(self, acc, cs, out, vm_=vM, vr_=vR):
        s = []
        for r in range(4): s.append(f"v_fma_f32 v{acc+r}, -v{vm_}, v{cs+r}, v{acc+r}")
        for r in range(4): s.append(f"v_mul_f32 v{acc+r}, v{acc+r}, v{vr_}")
        s.append(f"v_cvt_pk_bf16_f32 v{out}, v{acc}, v{acc+1}")
        s.append(f"v_cvt_pk_bf16_f32 v{out+1}, v{acc+2}, v{acc+3}")
        return s
    def scaleN(self, acc, cs, out):
        s = []
        for r in range(4): s.append(f"v_fma_f32 v{acc+r}, -v{vMv+r}, v{cs}, v{acc+r}")
        for r in range(4): s.append(f"v_mul_f32 v{acc+r}, v{acc+r}, v{vRv+r}")
        s.append(f"v_cvt_pk_bf16_f32 v{out}, v{acc}, v{acc+1}")
        s.append(f"v_cvt_pk_bf16_f32 v{out+1}, v{acc+2}, v{acc+3}")
        return s
    def round4(self, p, t):
        return [f"v_cvt_pk_bf16_f32 v{t}, v{p}, v{p+1}", f"v_cvt_pk_bf16_f32 v{t+1}, v{p+2}, v{p+3}",
                f"v_lshlrev_b32 v{p}, 16, v{t}", f"v_and_b32 v{p+1}, 0xffff0000, v{t}",
                f"v_lshlrev_b32 v{p+2}, 16, v{t+1}", f"v_and_b32 v{p+3}, 0xffff0000, v{t+1}"]
    def xlane(self, src, d):
        return [f"ds_swizzle_b32 v{d}, v{src} offset:0x401f",
                f"ds_bpermute_b32 v{d+1}, v{vX32}, v{src}",
                f"ds_bpermute_b32 v{d+2}, v{vX48}, v{src}"]
    def featmap_spread(self, accs, css, outs, tb, spread, at=None):
        real = self.a
        buf = []
        class Cap:
            def __call__(s_, text):
                for ln in text.strip().split("\n"):
                    if ln.strip(): buf.append(ln.strip())
        self.a = Cap()
        self.featmap(accs, css, outs, tb)
        self.a = real
        if at is not None:
            pos = int(len(buf) * at[0])
            buf = buf[:pos] + at[1] + buf[pos:]
        step = max(1, len(buf) // (len(spread) + 1))
        out = []; k = 0
        for i, ln in enumerate(buf):
            out.append(ln)
            if (i + 1) % step == 0 and k < len(spread):
                out.append(spread[k]); k += 1
        out += spread[k:]
        real("\n".join(out))
    def featmap(self, accs, css, outs, tb, extra=None):
        a = self.a
        T = [tb, tb + 24]
        a("\n".join(interleave(*[self.scaleT(accs[h], css[h], T[h]+4) for h in range(2)])))
        for h in range(2):
            a(f"v_mfma_f32_16x16x16_bf16 v[{T[h]}:{T[h]+3}], v[{vPhi+2*h}:{vPhi+2*h+1}], v[{T[h]+4}:{T[h]+5}], 0")
        if extra: a("s_waitcnt lgkmcnt(0)\n" + "\n".join(extra))
        st = []
        for h in range(2):
            t = T[h]
            s = self.round4(t, t+4)
            s += [f"v_max_f32 v{t+6}, v{t}, v{t+1}", f"v_min_f32 v{t+7}, v{t}, v{t+1}",
                  f"v_max_f32 v{t+8}, v{t+2}, v{t+3}", f"v_min_f32 v{t+9}, v{t+2}, v{t+3}",
                  f"v_max_f32 v{t+6}, v{t+6}, v{t+8}", f"v_min_f32 v{t+7}, v{t+7}, v{t+9}"]
            s += self.xlane(t+6, t+8) + self.xlane(t+7, t+11)
            st.append(s)
        a("\n".join(interleave(*st)))
        a("s_waitcnt lgkmcnt(0)")
        st = []
        for h in range(2):
            t = T[h]
            s = [f"v_max_f32 v{t+6}, v{t+6}, v{t+8}", f"v_min_f32 v{t+7}, v{t+7}, v{t+11}",
                 f"v_max_f32 v{t+9}, v{t+9}, v{t+10}", f"v_min_f32 v{t+12}, v{t+12}, v{t+13}",
                 f"v_max_f32 v{t+6}, v{t+6}, v{t+9}", f"v_min_f32 v{t+7}, v{t+7}, v{t+12}",
                 f"v_mul_f32 v{t+6}, s60, v{t+6}", f"v_mul_f32 v{t+7}, s60, v{t+7}"]
            for r in range(4):
                s.append(f"v_fma_f32 v{t+14+r}, v{t+r}, s60, -v{t+6}")
                s.append(f"v_fma_f32 v{t+18+r}, -v{t+r}, s60, v{t+7}")
            for r in range(8): s.append(f"v_exp_f32 v{t+14+r}, v{t+14+r}" if "3" not in self.opt else f"v_mov_b32 v{t+14+r}, 1.0")
            s += [f"v_add_f32 v{t+4}, v{t+14}, v{t+15}", f"v_add_f32 v{t+5}, v{t+18}, v{t+19}",
                  f"v_add_f32 v{t+6}, v{t+16}, v{t+17}", f"v_add_f32 v{t+7}, v{t+20}, v{t+21}",
                  f"v_add_f32 v{t+4}, v{t+4}, v{t+6}", f"v_add_f32 v{t+5}, v{t+5}, v{t+7}",
                  f"v_mfma_f32_16x16x4_f32 v[{t}:{t+3}], v{vOnef}, v{t+4}, 0",
                  f"v_mfma_f32_16x16x4_f32 v[{t+8}:{t+11}], v{vOnef}, v{t+5}, 0"]
            st.append(s)
        a("\n".join(interleave(*st)))
        st = []
        for h in range(2):
            t = T[h]; o = outs[h]
            s = [f"v_rcp_f32 v{t}, v{t}", f"v_rcp_f32 v{t+8}, v{t+8}"]
            for r in range(4):
                s.append(f"v_mul_f32 v{t+14+r}, v{t+14+r}, v{t}")
                s.append(f"v_mul_f32 v{t+18+r}, v{t+18+r}, v{t+8}")
            for r in range(4):
                s.append(f"v_cvt_pk_bf16_f32 v{o+r}, v{t+14+2*r}, v{t+15+2*r}")
            st.append(s)
        a("\n".join(interleave(*st)))

    def layer_offsets(self):
        self.a(f"""
        s_lshl_b32 s53, s39, 21                 ; l*2MB
        s_lshl_b32 s54, s33, 14
        s_add_u32 s53, s53, s54
        s_add_u32 s40, s53, {XF}                ; sXin
        s_add_u32 s43, s53, {OF}                ; sOin
        s_lshl_b32 s55, s31, 10
        s_add_u32 s42, s43, s55                 ; sOout
        s_add_u32 s44, s40, s55
        s_add_u32 s44, s44, 0x200000            ; sXout
        s_lshl_b32 s53, s39, 18
        s_lshl_b32 s54, s33, 11
        s_add_u32 s41, s53, s54
        s_add_u32 s41, s41, {ST}                ; sSTin
        s_add_u32 s45, s41, s64                 ; sSTout
        s_lshl_b32 s53, s39, 7
        s_add_u32 s54, s53, s33
        s_lshl_b32 s54, s54, 6
        s_add_u32 s47, s54, {HNT}               ; hint O (l, t)
        s_add_u32 s46, s54, {HNT + 0x8000}      ; hint X (l, t)
        s_add_u32 s49, s46, {128*64}            ; hint X (l+1, t)
        s_lshr_b32 s53, s39, 1
        s_lshl_b32 s54, s53, 4
        s_add_u32 s54, s54, s31
        s_lshl_b32 s50, s54, 12
        s_add_u32 s50, s50, {ZP}
        s_lshl_b32 s51, s54, 16
        s_add_u32 s51, s51, {KVP}
        ; s66 = Wo(l) tile, s67 = Wq(l+1) tile, s68 = Wo(l+1) tile, s65 = need halo wait for next layer (l even && rb>0)
        s_and_b32 s53, s39, 1
        s_cmp_eq_u32 s53, 0
        s_cselect_b32 s66, 0, {WO_B-WO_A}
        s_cselect_b32 s68, {WO_B-WO_A}, 0
        s_cselect_b32 s67, {WQ_B}, 0
        s_cselect_b32 s65, s30, 0
        s_add_u32 s66, s66, s63
        s_add_u32 s68, s68, s63
        s_add_u32 s67, s67, s62
        """)
    def xloads(self):
        self.issue_group("s40", 0, "x"); self.issue_group("s40", 1, "x")

    def gen(self, name):
        a = self.a; vm = self.vm
        a.raw(f".globl {name}\n.p2align 8\n.type {name},@function\n{name}:")
        a(f"""
        s_cmp_ge_u32 s2, 256
        s_cbranch_scc1 L_km_end
        s_load_dwordx2 s[16:17], s[0:1], 16     ; w_phi
        s_load_dwordx2 s[18:19], s[0:1], 56     ; out
        s_load_dwordx2 s[20:21], s[0:1], 72     ; ws
        v_lshrrev_b32 v{vT}, 6, v0
        v_and_b32 v{vLane}, 63, v0
        v_readfirstlane_b32 s32, v{vT}          ; wave
        v_lshlrev_b32 v{vL16}, 4, v{vLane}
        v_lshlrev_b32 v{vL4}, 2, v{vLane}
        v_lshlrev_b32 v{vTch}, 7, v{vLane}
        v_lshlrev_b32 v{vL1k}, 10, v{vLane}
        v_lshrrev_b32 v{vT+1}, 4, v{vLane}      ; g
        v_and_b32 v{vT+2}, 15, v{vLane}         ; i
        v_lshlrev_b32 v{vSt}, 9, v{vT+1}
        v_lshlrev_b32 v{vT+3}, 4, v{vT+2}
        v_add_u32 v{vSt}, v{vSt}, v{vT+3}       ; g*512 + i*16
        s_and_b32 s30, s2, 7
        s_lshr_b32 s31, s2, 3
        s_lshl_b32 s30, s30, 1
        s_and_b32 s53, s31, 1
        s_add_u32 s30, s30, s53                 ; rb
        s_lshr_b32 s31, s31, 1                  ; ct
        s_lshl_b32 s33, s30, 3
        s_add_u32 s33, s33, s32                 ; t
        s_mov_b32 s39, 0
        s_mov_b32 s90, 0
        s_mov_b32 s60, {LOG2E}
        s_mov_b32 s61, {LOG2E_Q}
        s_mul_i32 s62, s31, 98304
        s_lshl_b32 s63, s31, 15
        s_add_u32 s63, s63, {WO_A}
        ; s64 = 0x40000 + (p>>2)*512 + ((p>>1)&1)*256 + (p&1)*8, p = ct
        s_lshr_b32 s64, s31, 1
        s_lshl_b32 s64, s64, 8
        s_and_b32 s53, s31, 1
        s_lshl_b32 s53, s53, 3
        s_add_u32 s64, s64, s53
        s_add_u32 s64, s64, 0x40000
        v_cmp_le_u32 vcc, 96, v0
        v_subrev_u32 v{vT+5}, 96, v0
        v_cndmask_b32 v{vT+5}, v0, v{vT+5}, vcc          ; c
        v_mov_b32 v{vT+6}, 98304
        v_cndmask_b32 v{vT+6}, 0, v{vT+6}, vcc
        v_lshrrev_b32 v{vT+7}, 5, v{vT+5}
        v_lshlrev_b32 v{vT+7}, 11, v{vT+7}
        v_add_u32 v{vT+6}, v{vT+6}, v{vT+7}
        v_and_b32 v{vT+7}, 31, v{vT+5}
        v_lshlrev_b32 v{vT+7}, 2, v{vT+7}
        v_add_u32 v{vT+6}, v{vT+6}, v{vT+7}
        v_lshlrev_b32 v{vT+3}, 7, v{vT+1}
        v_lshlrev_b32 v{vT+4}, 1, v{vT+2}
        v_add_u32 v{vT+3}, v{vT+3}, v{vT+4}
        """)
        self.layer_offsets()
        a(f"""
        s_waitcnt lgkmcnt(0)
        s_mov_b32 s4, s20
        s_mov_b32 s5, s21
        s_mov_b32 s6, {WS_SIZE}
        s_mov_b32 s7, 0x20000
        s_mov_b32 s8, s18
        s_mov_b32 s9, s19
        s_mov_b32 s10, 0x200000
        s_mov_b32 s11, 0x20000
        s_mov_b32 s12, s16
        s_mov_b32 s13, s17
        s_mov_b32 s14, 16384
        s_mov_b32 s15, 0x20000
        """)
        self.stamp(15)
        self.rstamp(14)
        a(f"""
        s_getreg_b32 s74, hwreg(HW_REG_XCC_ID)
        s_and_b32 s74, s74, 15
        s_add_u32 s74, s74, 1
        s_lshl_b32 s75, s30, 6
        s_add_u32 s75, s75, {XID}
        s_cmp_lg_u32 s32, 0
        s_cbranch_scc1 L_noxid
        s_lshl_b32 s53, s31, 2
        s_add_u32 s53, s53, s75
        v_mov_b32 v{vT+8}, s74
        v_mov_b32 v{vT+9}, 0
        s_mov_b64 exec, 1
        buffer_store_dword v{vT+8}, v{vT+9}, s[4:7], s53 offen sc1
        s_mov_b64 exec, -1
L_noxid:
        """)
        a("s_mul_i32 s53, s32, 12288\ns_add_u32 s52, s62, s53\ns_add_u32 s54, s53, 2048\ns_add_u32 s55, s52, 2048")
        for hh in range(2):
            a("s_mov_b32 m0, s54")
            for i in range(4):
                a(f"buffer_load_dwordx4 v{vL16}, s[4:7], s55 offen offset:{i*1024} lds"); vm.issue("dma")
            if hh == 0: a("s_add_u32 s54, s54, 6144\ns_add_u32 s55, s55, 6144")
        a("s_mov_b32 s88, s52\ns_mov_b32 s89, s53")
        vm.q[-1] = "wlast"
        self.xloads()
        qx = list(vm.q)
        a(f"""
        s_lshl_b32 s53, s31, 7
        s_add_u32 s53, s53, {CSP}
        s_cmp_ge_u32 s32, 3
        s_cbranch_scc1 L_cs_skip1
        """)
        for k in range(16):
            a(f"buffer_load_dword v{vW+k}, v{vT+6}, s[4:7], s53 offen")
            if k != 15: a("s_add_u32 s53, s53, 6144")
        a("L_cs_skip1:\ns_lshl_b32 s53, s31, 10")
        for h in range(2):
            for e in range(4):
                a(f"buffer_load_ushort v{vW+16+4*h+e}, v{vT+3}, s[12:15], s53 offen offset:{h*512+e*32}")
                vm.issue("phi")
        vm.q[-1] = "philast"
        for hh in range(2):
            a("s_mov_b32 m0, s89")
            for i in range(2):
                a(f"buffer_load_dwordx4 v{vL16}, s[4:7], s88 offen offset:{i*1024} lds"); vm.issue("dmaq")
            if hh == 0: a("s_add_u32 s88, s88, 6144\ns_add_u32 s89, s89, 6144")
        a(f"s_sub_u32 s53, s44, 0x200000\nbuffer_load_dwordx4 v[{vRes}:{vRes+3}], v{vL16}, s[4:7], s53 offen")
        vm.issue("res")
        a(f"""
        v_lshlrev_b32 v{vRowB}, 4, v{vT+1}      ; (4g)*4
        s_cmp_ge_u32 s32, 4
        s_cbranch_scc1 L_noarm2
        v_mov_b32 v{vAcc}, -1
        v_mov_b32 v{vAcc+1}, -1
        v_mov_b32 v{vAcc+2}, -1
        v_mov_b32 v{vAcc+3}, -1
        s_lshl_b32 s53, s32, 14
        s_lshl_b32 s54, s30, 10
        s_add_u32 s53, s53, s54
        s_add_u32 s53, s53, s51
        s_add_u32 s53, s53, 0x100000
        buffer_store_dwordx4 v[{vAcc}:{vAcc+3}], v{vL16}, s[4:7], s53 offen sc1
        s_lshl_b32 s53, s32, 6
        s_lshl_b32 s54, s30, 8
        s_add_u32 s53, s53, s54
        s_add_u32 s53, s53, s50
        s_add_u32 s53, s53, 0x10000
        s_mov_b32 s54, 0x00010001
        s_mov_b32 s55, 0x00010001
        s_mov_b64 exec, s[54:55]
        buffer_store_dwordx4 v[{vAcc}:{vAcc+3}], v{vRowB}, s[4:7], s53 offen sc1
        s_mov_b64 exec, -1
L_noarm2:
        v_add_u32 v{vLdsB}, 49152, v{vL16}
        v_add_u32 v{vLdsC}, {LDS_WO}, v{vL16}
        v_add_u32 v{vXch}, {XCH}, v{vL16}
        v_mov_b32 v{vZero}, 0
        v_mov_b32 v{vOne}, 1
        v_mov_b32 v{vOnef}, 1.0
        v_mov_b32 v{vOnes}, 0x3f803f80
        v_mov_b32 v{vOnes+1}, 0x3f803f80
        v_mov_b32 v{vOnes+2}, 0x3f803f80
        v_mov_b32 v{vOnes+3}, 0x3f803f80
        v_xor_b32 v{vX32}, 32, v{vLane}
        v_lshlrev_b32 v{vX32}, 2, v{vX32}
        v_xor_b32 v{vX48}, 48, v{vLane}
        v_lshlrev_b32 v{vX48}, 2, v{vX48}
        v_lshlrev_b32 v{vRowB}, 4, v{vT+1}      ; (4g)*4
        v_lshlrev_b32 v{vT+3}, 2, v{vT+1}
        v_sub_u32 v{vT+3}, v{vT+2}, v{vT+3}     ; j-4g
        v_mov_b32 v{vT+4}, 0x3f80
        v_mov_b32 v{vT+5}, 0x3f800000
        v_cmp_eq_u32 vcc, 0, v{vT+3}
        v_cndmask_b32 v{vId}, 0, v{vT+4}, vcc
        v_cmp_eq_u32 vcc, 1, v{vT+3}
        v_cndmask_b32 v{vId}, v{vId}, v{vT+5}, vcc
        v_cmp_eq_u32 vcc, 2, v{vT+3}
        v_cndmask_b32 v{vId+1}, 0, v{vT+4}, vcc
        v_cmp_eq_u32 vcc, 3, v{vT+3}
        v_cndmask_b32 v{vId+1}, v{vId+1}, v{vT+5}, vcc
        v_mov_b32 v{vT+4}, 0xf149f2ca
        s_cmp_lt_u32 s33, 2
        s_cselect_b32 s53, -100, -9
        """)
        for r in range(4):
            a(f"""
            v_subrev_u32 v{vT+5}, {r}, v{vT+3}
            v_cmp_gt_u32 vcc, 8, v{vT+5}
            v_cndmask_b32 v{vBias+r}, v{vT+4}, 0, vcc
            v_cmp_ge_i32 vcc, s53, v{vT+5}
            v_cndmask_b32 v{vBias+4+r}, v{vT+4}, 0, vcc
            """)
        vm.wait("philast")
        for i in range(4): a(f"v_lshl_or_b32 v{vPhi+i}, v{vW+17+2*i}, 16, v{vW+16+2*i}")
        a("s_cmp_ge_u32 s32, 3\ns_cbranch_scc1 L_cs_skip2")
        for st in (8, 4, 2, 1):
            for k in range(st): a(f"v_add_f32 v{vW+k}, v{vW+k}, v{vW+k+st}")
        a(f"""
        v_lshlrev_b32 v{vT+5}, 2, v0
        v_add_u32 v{vT+5}, {XCH + 28672}, v{vT+5}
        ds_write_b32 v{vT+5}, v{vW}
        s_waitcnt lgkmcnt(0)
L_cs_skip2:
        """)
        a(f"""
        s_barrier
        v_add_u32 v{vT+5}, {XCH + 28672}, v{vRowB}    ; g*16
        v_lshlrev_b32 v{vT+6}, 2, v{vT+2}
        v_add_u32 v{vT+6}, {XCH + 28672}, v{vT+6}     ; i*4
        """)
        for m, base in ((0, vCsA), (1, vCsB)):
            for nt in range(4):
                a(f"ds_read_b128 v[{base+4*nt}:{base+4*nt+3}], v{vT+5} offset:{m*384+nt*64}")
            for nt in range(4, 6):
                a(f"ds_read_b32 v{base+16+nt-4}, v{vT+6} offset:{m*384+nt*64}")
        a("s_branch L_A_entry")
        a.fence()
        a("L_layer:")
        self.layer_offsets()
        vm.reset()
        a("s_barrier")
        self.stamp(1)
        self.xloads()
        q0 = list(vm.q)
        a("""
        s_and_b32 s53, s39, 1
        s_cmp_eq_u32 s53, 1
        s_cbranch_scc1 L_B
L_A_entry:
        """)
        self.phaseA()
        a("s_branch L_WO")
        a.fence()
        a("L_B:")
        vm.q = list(q0)
        self.phaseB()
        a.fence()
        a("L_WO:")
        vm.reset()
        self.phaseWo()
        a("L_km_end:\ns_endpgm")
        self.flush_outl()
        a("s_endpgm\nL_code_end:")

    def early_prefetch(self):
        self.dma_w("s66", 4, LDS_WO)
        self.touch("s67", 12)

    def xid_issue(self):
        self.a(f"""
        s_mov_b64 exec, 0xffff
        buffer_load_dword v{vPoll}, v{vL4}, s[4:7], s75 offen sc1
        s_mov_b64 exec, -1
        """)
        self.vm.issue("xid")
    def decide(self):
        a = self.a
        a(f"""
        s_cmp_lg_u32 s39, 0
        s_cbranch_scc1 L_nodec
        s_mov_b32 s56, 0
        s_mov_b64 exec, 0xffff
L_xid:
        v_cmp_eq_u32 vcc, 0, v{vPoll}
        s_cbranch_vccz L_xid_done
        s_add_u32 s56, s56, 1
        s_cmp_gt_u32 s56, 0x40000
        s_cbranch_scc1 L_xid_done
        buffer_load_dword v{vPoll}, v{vL4}, s[4:7], s75 offen sc1
        s_waitcnt vmcnt(0)
        s_branch L_xid
L_xid_done:
        v_cmp_ne_u32 vcc, s74, v{vPoll}
        s_mov_b64 exec, -1
        s_cmp_eq_u64 vcc, 0
        s_cselect_b32 s73, {0 if self.force_slow else 1}, 0
L_nodec:
        """)
    def arm(self):
        a = self.a; A = vW
        a(f"""
        s_cmp_lg_u32 s39, 0
        s_cbranch_scc1 L_noarm
        v_mov_b32 v{A}, -1
        v_mov_b32 v{A+1}, -1
        v_mov_b32 v{A+2}, -1
        v_mov_b32 v{A+3}, -1
        """)
        L = []
        for base, offs in (("s42", (0x200000, 0x400000, 0x600000)), ("s44", (0x200000, 0x400000))):
            for o in offs:
                L += [f"s_add_u32 s53, {base}, {o}", f"buffer_store_dwordx4 v[{A}:{A+3}], v{vL16}, s[4:7], s53 offen @"]
        L += ["s_mov_b64 exec, 0xffff"]
        for o in (0x40000, 0x80000):
            L += [f"s_add_u32 s53, s45, {o}", f"buffer_store_dwordx2 v[{A}:{A+1}], v{vL16}, s[4:7], s53 offen @"]
        L += ["s_mov_b64 exec, -1"]
        self.dstore(L)
        a("L_noarm:")

    def phaseA(self):
        a = self.a; vm = self.vm
        self.stamp(2)
        K0, K1, V0, V1, Q0, Q1 = [vAcc + 4*i for i in range(6)]
        self.streamloop([(2, K0, True), (3, K1, True), (4, V0, False), (5, V1, False)], "s40", "x", self.wq_addr,
                        {0: self.st_loads, 2: self.wo_early, 3: lambda: (self.touch_early(), self.stats_inloop())})
        self.stamp(3); self.cstamp(12)
        self.wo_late(); self.touch_late()
        PK = [vT+0, vT+4]
        VP = vT + 16
        self.featmap([K0, K1], [vCsA+8, vCsA+12], PK, vW,
                     extra=interleave(self.scaleN(V0, vCsA+16, VP), self.scaleN(V1, vCsA+17, VP+2)))
        for i in range(4):
            d = vW + 4*i
            a(f"v_mfma_f32_16x16x16_bf16 v[{d}:{d+3}], v[{vT+2*i}:{vT+2*i+1}], v[{vId}:{vId+1}], 0")
        a(f"s_mul_i32 s53, s32, 3072\nv_add_u32 v{vTmp}, s53, v{vXch}")
        a(f"ds_write_b128 v{vTmp}, v[{VP}:{VP+3}] offset:2048")
        for i in range(4):
            d = vW + 4*i
            a(f"v_cvt_pk_bf16_f32 v{vT+8+2*i}, v{d}, v{d+1}")
            a(f"v_cvt_pk_bf16_f32 v{vT+9+2*i}, v{d+2}, v{d+3}")
        a(f"""
        ds_write_b128 v{vTmp}, v[{vT+8}:{vT+11}]
        ds_write_b128 v{vTmp}, v[{vT+12}:{vT+15}] offset:1024
        s_waitcnt lgkmcnt(0)
        s_barrier
        s_cmp_ge_u32 s32, 4
        s_cbranch_scc1 L_A_noatom
        s_lshr_b32 s53, s32, 1
        s_and_b32 s54, s32, 1
        s_lshl_b32 s55, s53, 10
        s_lshl_b32 s57, s54, 3
        s_add_u32 s55, s55, s57
        v_add_u32 v{vT}, s55, v{vXch}
        s_lshl_b32 s55, s53, 3
        s_add_u32 s55, s55, 2048
        v_add_u32 v{vT+1}, s55, v{vXch}          ; v addr
        """)
        for u in range(8):
            a(f"ds_read_b64 v[{vW+2*u}:{vW+2*u+1}], v{vT} offset:{u*3072}")
            a(f"ds_read_b64 v[{vW+16+2*u}:{vW+17+2*u}], v{vT+1} offset:{u*3072}")
        a(f"""
        s_lshl_b32 s57, s32, 14
        s_lshl_b32 s55, s30, 10
        s_add_u32 s57, s57, s55
        s_add_u32 s57, s57, s51
        s_lshl_b32 s58, s32, 6
        s_lshl_b32 s55, s30, 8
        s_add_u32 s58, s58, s55
        s_add_u32 s58, s58, s50
        """)
        KA = vW + 32; ZA = vW + 36
        for p in range(4):
            a(f"s_waitcnt lgkmcnt({12-4*p})")
            c = f"v[{KA}:{KA+3}]" if p else "0"; cz = f"v[{ZA}:{ZA+3}]" if p else "0"
            a(f"v_mfma_f32_16x16x32_bf16 v[{KA}:{KA+3}], v[{vW+4*p}:{vW+4*p+3}], v[{vW+16+4*p}:{vW+19+4*p}], {c}")
            a(f"v_mfma_f32_16x16x32_bf16 v[{ZA}:{ZA+3}], v[{vW+4*p}:{vW+4*p+3}], v[{vOnes}:{vOnes+3}], {cz}")
        a(f"""
        buffer_store_dwordx4 v[{KA}:{KA+3}], v{vL16}, s[4:7], s57 offen sc1
        s_mov_b32 s54, 0x00010001
        s_mov_b32 s55, 0x00010001
        s_mov_b64 exec, s[54:55]
        buffer_store_dwordx4 v[{ZA}:{ZA+3}], v{vRowB}, s[4:7], s58 offen sc1
        s_mov_b64 exec, -1
        """)
        a.fence()
        a("L_A_noatom:")
        self.stamp(4)
        self.xid_issue()
        self.mainloop([(0, Q0, True), (1, Q1, True)], 16, lambda ks: vX+4*ks, self.wq_addr)
        PQ = [vT+0, vT+4]
        a("s_barrier\ns_mul_i32 s53, s32, 12288\ns_add_u32 s52, s67, s53")
        sp = []
        for g in range(3):
            for i in range(4):
                pre = "s_mov_b32 m0, s53\n" if i == 0 else ""
                post = "\ns_add_u32 s52, s52, 4096\ns_add_u32 s53, s53, 4096" if i == 3 else ""
                sp.append(pre + f"buffer_load_dwordx4 v{vL16}, s[4:7], s52 offen offset:{i*1024} lds" + post)
        a("s_lshl_b32 s57, s32, 13\ns_add_u32 s57, s57, s51")
        early = os.environ.get("KVAT")
        at = None
        if early:
            L = ["s_add_u32 s58, s57, 4096"]
            for p in range(8):
                L.append(f"buffer_load_dwordx4 v[{vX+4*p}:{vX+4*p+3}], v{vL16}, s[4:7], {'s57' if p < 4 else 's58'} offen offset:{(p&3)*1024} sc1")
            L.append("s_cmp_lg_u32 s32, 7\ns_cbranch_scc1 L_A_noz0")
            for i in range(4):
                L.append(f"buffer_load_dwordx4 v[{vX+32+4*i}:{vX+35+4*i}], v{vL16}, s[4:7], s50 offen offset:{i*1024} sc1")
            L.append("L_A_noz0:")
            at = (float(early), ["\n".join(L)])
        self.featmap_spread([Q0, Q1], [vCsA+0, vCsA+4], PQ, vW, [] if "d" in self.opt else sp, at)
        self.stamp(5)
        def kvl():
            a("s_add_u32 s58, s57, 4096")
            for p in range(8):
                a(f"buffer_load_dwordx4 v[{vX+4*p}:{vX+4*p+3}], v{vL16}, s[4:7], {'s57' if p < 4 else 's58'} offen offset:{(p&3)*1024} sc1")
        def zl():
            for i in range(4):
                a(f"buffer_load_dwordx4 v[{vX+32+4*i}:{vX+35+4*i}], v{vL16}, s[4:7], s50 offen offset:{i*1024} sc1")
        if not early:
            kvl()
            a("s_cmp_lg_u32 s32, 7\ns_cbranch_scc1 L_A_noz1")
            zl()
            a("L_A_noz1:")
        vm.wait_all()
        self.decide()
        self.check(vX, 32, kvl)
        for st_ in (4, 2, 1):
            for p in range(st_):
                for r in range(4): a(f"v_add_f32 v{vX+4*p+r}, v{vX+4*p+r}, v{vX+4*(p+st_)+r}")
        a(f"s_lshl_b32 s53, s32, 10\nv_add_u32 v{vTmp}, s53, v{vXch}\nds_write_b128 v{vTmp}, v[{vX}:{vX+3}]")
        a("s_cmp_lg_u32 s32, 7\ns_cbranch_scc1 L_A_noz2")
        Z = vX + 32
        self.check(Z, 16, zl)
        for r in range(4): a(f"v_add_f32 v{Z+r}, v{Z+r}, v{Z+4+r}\nv_add_f32 v{Z+8+r}, v{Z+8+r}, v{Z+12+r}")
        for r in range(4): a(f"v_add_f32 v{Z+r}, v{Z+r}, v{Z+8+r}")
        for r in range(4): a(f"v_mfma_f32_16x16x4_f32 v[{Z+16+4*r}:{Z+19+4*r}], v{vOnef}, v{Z+r}, 0")
        a(f"""
        v_bfe_u32 v{Z+4}, v{vLane}, 3, 1
        v_lshlrev_b32 v{Z+4}, 6, v{Z+4}
        v_and_b32 v{Z+5}, 3, v{vLane}
        v_lshl_add_u32 v{Z+4}, v{Z+5}, 4, v{Z+4}
        v_bfe_u32 v{Z+5}, v{vLane}, 2, 1
        v_lshl_add_u32 v{Z+4}, v{Z+5}, 3, v{Z+4}
        v_add_u32 v{Z+4}, {XCH + 8192}, v{Z+4}
        v_cvt_pk_bf16_f32 v{Z+6}, v{Z+16}, v{Z+20}
        v_cvt_pk_bf16_f32 v{Z+7}, v{Z+24}, v{Z+28}
        s_mov_b64 exec, 0xffff
        ds_write_b64 v{Z+4}, v[{Z+6}:{Z+7}]
        s_mov_b64 exec, -1
L_A_noz2:
        s_waitcnt lgkmcnt(0)
        s_barrier
        """)
        self.stamp(6)
        for i in range(8): a(f"ds_read_b128 v[{vW+4*i}:{vW+4*i+3}], v{vXch} offset:{i*1024}")
        a(f"v_add_u32 v{vTmp}, {XCH + 8192}, v{vRowB}")
        for h in range(2): a(f"ds_read_b128 v[{vW+36+8*h}:{vW+39+8*h}], v{vTmp} offset:{h*64}")
        a("s_waitcnt lgkmcnt(2)")
        for b in range(4):
            for r in range(4): a(f"v_add_f32 v{vW+8*b+r}, v{vW+8*b+r}, v{vW+8*b+4+r}")
        for b in range(4):
            o = vW + 32 + 8*(b >> 1) + 2*(b & 1)
            a(f"v_cvt_pk_bf16_f32 v{o}, v{vW+8*b}, v{vW+8*b+1}\nv_cvt_pk_bf16_f32 v{o+1}, v{vW+8*b+2}, v{vW+8*b+3}")
        a("s_waitcnt lgkmcnt(0)")
        for h in range(2):
            o = vW + 32 + 8*h; d = vW + 8*h
            a(f"v_mfma_f32_16x16x32_bf16 v[{d}:{d+3}], v[{o}:{o+3}], v[{PQ[h]}:{PQ[h]+3}], 0")
            a(f"v_mfma_f32_16x16x32_bf16 v[{d+4}:{d+7}], v[{o+4}:{o+7}], v[{PQ[h]}:{PQ[h]+3}], 0")
        st = []
        for h in range(2):
            d = vW + 8*h; t = vW + 16 + 4*h
            s = [f"v_cvt_pk_bf16_f32 v{d+4}, v{d+4}, v{d+4}", f"v_lshlrev_b32 v{d+4}, 16, v{d+4}",
                 f"v_add_f32 v{d+4}, 0x358637bd, v{d+4}", f"v_cvt_pk_bf16_f32 v{d+4}, v{d+4}, v{d+4}",
                 f"v_lshlrev_b32 v{d+4}, 16, v{d+4}", f"v_rcp_f32 v{d+4}, v{d+4}"]
            s += self.round4(d, t)
            for r in range(4): s.append(f"v_mul_f32 v{d+r}, v{d+r}, v{d+4}")
            s += [f"v_cvt_pk_bf16_f32 v{vT+8+2*h}, v{d}, v{d+1}", f"v_cvt_pk_bf16_f32 v{vT+9+2*h}, v{d+2}, v{d+3}"]
            st.append(s)
        a("\n".join(interleave(*st)))
        self.dstore([f"buffer_store_dwordx4 v[{vT+8}:{vT+11}], v{vL16}, s[4:7], s42 offen @"])
        if "d" in self.opt: self.dma_w("s67", 12, 0)
        self.arm()

    def phaseB(self):
        a = self.a; vm = self.vm
        HP = XCH + 16384
        hM, hR = vT+6, vT+7
        HF = vW + 24
        def halo_x():
            for i in range(4):
                a(f"buffer_load_dwordx4 v[{vT+8+4*i}:{vT+11+4*i}], v{vT+1}, s[4:7], s54 offen offset:{i*1024} sc1")
        def halo_s():
            a(f"buffer_load_dwordx4 v[{vT+24}:{vT+27}], v{vT+2}, s[4:7], s55 offen sc1")
            a(f"buffer_load_dwordx4 v[{vT+28}:{vT+31}], v{vT+2}, s[4:7], s55 offen offset:256 sc1")
        a(f"""
        s_cmp_lt_u32 s32, 6
        s_cbranch_scc1 L_B_nohc
        s_lshr_b32 s53, s39, 1
        s_lshl_b32 s53, s53, 4
        s_add_u32 s53, s53, s30
        s_lshl_b32 s53, s53, 1
        s_add_u32 s53, s53, s32
        s_sub_u32 s53, s53, 6
        s_lshl_b32 s54, s53, 11
        s_add_u32 s54, s54, s64
        s_add_u32 s54, s54, {HST - 0x40000}
        s_lshl_b32 s53, s53, 14
        s_lshl_b32 s55, s31, 10
        s_add_u32 s53, s53, s55
        s_add_u32 s53, s53, {HXF}
        buffer_store_dwordx4 v[{vRes}:{vRes+3}], v{vL16}, s[4:7], s53 offen sc1
        s_mov_b64 exec, 0xffff
        buffer_store_dwordx2 v[4:5], v{vL16}, s[4:7], s54 offen sc1
        s_mov_b64 exec, -1
        s_branch L_B_hc2
L_B_nohc:
        s_mov_b64 exec, 1
        buffer_load_dword v{vDummy}, v{vL16}, s[4:7], s41 offen
        buffer_load_dword v{vDummy}, v{vL16}, s[4:7], s41 offen
        s_mov_b64 exec, -1
L_B_hc2:
        s_cmp_lt_u32 s32, 4
        s_cselect_b32 s69, s30, 0
        v_bfe_u32 v{vT}, v{vLane}, 3, 1
        v_lshlrev_b32 v{vT+1}, 14, v{vT}
        v_or_b32 v{vT+2}, 128, v{vL16}
        v_add_u32 v{vT+1}, v{vT+1}, v{vT+2}
        s_lshr_b32 s57, s39, 1
        s_lshl_b32 s57, s57, 4
        s_add_u32 s57, s57, s30
        s_sub_u32 s57, s57, 1
        s_lshl_b32 s54, s57, 15
        s_add_u32 s54, s54, {HXF}
        s_lshl_b32 s55, s32, 12
        s_add_u32 s54, s54, s55
        v_or_b32 v{vT+2}, 128, v{vSt}
        s_lshl_b32 s55, s57, 12
        s_lshl_b32 s57, s32, 11
        s_add_u32 s55, s55, s57
        s_add_u32 s55, s55, {HST}
        """)
        vm.issue("hc"); vm.issue("hc")
        self.stamp(2)
        K0, K1, V0, V1, Q0, Q1 = [vAcc + 4*i for i in range(6)]
        def f3():
            self.check(vT+24, 8, lambda: self.st_loads(False))
            self.stats(vT+24, vM, vR, vT+8)
            self.stats_v(vM, vR)
        self.streamloop([(2, K0, True), (3, K1, True), (4, V0, False), (5, V1, False)], "s40", "x", self.wq_addr,
                        {0: self.st_loads, 2: self.wo_early, 3: lambda: (self.touch_early(), f3())})
        self.stamp(3); self.cstamp(12)
        a("s_cmp_eq_u32 s69, 0\ns_cbranch_scc1 L_B_nh4")
        halo_x()
        a("s_cmp_ge_u32 s32, 2\ns_cbranch_scc1 L_B_nh4")
        halo_s()
        a("L_B_nh4:")
        self.wo_late(); self.touch_late()
        nyoung = (0 if "w" in self.opt else 4) + (0 if "t" in self.opt else 2)
        KP = vT + 0 + 0;
        KP = vBK; VPk = vBK + 4; QP = vBK + 8
        a("\n".join(interleave(self.scaleT(K0, vCsB+8, KP), self.scaleT(K1, vCsB+12, KP+2),
                               self.scaleN(V0, vCsB+16, VPk), self.scaleN(V1, vCsB+17, VPk+2))))
        a(f"""
        s_lshl_b32 s53, s32, 11
        v_add_u32 v{vT}, s53, v{vXch}
        s_cmp_ge_u32 s32, 6
        s_cbranch_scc1 L_B_nowr
        ds_write_b128 v{vT}, v[{KP}:{KP+3}] offset:4096
        ds_write_b128 v{vT}, v[{VPk}:{VPk+3}] offset:5120
L_B_nowr:
        """)
        self.mainloop([(0, Q0, True), (1, Q1, True)], 16, lambda ks: vX+4*ks, self.wq_addr)
        a(f"""
        s_cmp_eq_u32 s69, 0
        s_cbranch_scc1 L_B_nh3
        s_mul_i32 s53, s32, 24576
        v_add_u32 v{vT+3}, s53, v{vL16}
        s_waitcnt vmcnt({nyoung})
        """)
        self.check(vT+8, 16, halo_x)
        self.mainloop([(2, K0, True), (3, K1, True), (4, V0, False), (5, V1, False)], 4, lambda ks: vT+8+4*ks, lambda ks, nt: (vT+3, (ks*6+nt)*1024))
        a(f"s_lshl_b32 s53, s32, 12\ns_add_u32 s53, s53, {HP-XCH}\nv_add_u32 v{vT+3}, s53, v{vXch}")
        for i in range(4): a(f"ds_write_b128 v{vT+3}, v[{K0+4*i}:{K0+4*i+3}] offset:{i*1024}")
        a("s_cmp_ge_u32 s32, 2\ns_cbranch_scc1 L_B_nh3")
        self.check(vT+24, 8, halo_s)
        self.stats(vT+24, hM, hR, vT+8)
        self.stats_v(hM, hR)
        a.fence()
        a("L_B_nh3:")
        self.stamp(4)
        a("\n".join(interleave(self.scaleT(Q0, vCsB+0, QP), self.scaleT(Q1, vCsB+4, QP+2))))
        S = [vW + 20, vW + 28]
        for h in range(2):
            a(f"v_mfma_f32_16x16x16_bf16 v[{S[h]}:{S[h]+3}], v[{KP+2*h}:{KP+2*h+1}], v[{QP+2*h}:{QP+2*h+1}], 0")
        KPp = vW + 12; VPp = vW + 16
        a(f"""
        s_waitcnt vmcnt(2) lgkmcnt(0)
        s_barrier
        s_cmp_lt_u32 s32, 2
        s_cbranch_scc1 L_B_rd01
        ds_read_b128 v[{KPp}:{KPp+3}], v{vT}
        ds_read_b128 v[{VPp}:{VPp+3}], v{vT} offset:1024
        s_waitcnt lgkmcnt(0)
        s_branch L_B_rdd
L_B_rd01:
        """)
        for r in range(8): a(f"v_mov_b32 v{KPp+r}, 0")
        a(f"""
        s_cmp_eq_u32 s30, 0
        s_cbranch_scc1 L_B_rdd
        v_and_b32 v{vT+1}, 0x370, v{vL16}
        s_lshl_b32 s53, s32, 7
        s_add_u32 s53, s53, {HP}
        v_add_u32 v{vT+1}, s53, v{vT+1}
        v_and_b32 v{vT+2}, 0x1f0, v{vL16}
        s_lshl_b32 s53, s32, 9
        s_add_u32 s53, s53, {HP}
        v_add_u32 v{vT+2}, s53, v{vT+2}
        """)
        for tl in range(4):
            for j in range(4):
                a(f"ds_read_b128 v[{vX+16*tl+4*j}:{vX+16*tl+4*j+3}], v{vT+1 if tl < 2 else vT+2} offset:{j*4096+tl*1024}")
        for tl in range(4):
            a(f"s_waitcnt lgkmcnt({12-4*tl})")
            b = vX + 16*tl
            for r in range(4): a(f"v_add_f32 v{b+r}, v{b+r}, v{b+4+r}\nv_add_f32 v{b+8+r}, v{b+8+r}, v{b+12+r}")
            for r in range(4): a(f"v_add_f32 v{b+r}, v{b+r}, v{b+8+r}")
        a("\n".join(interleave(self.scaleT(vX, vCsB+8, KPp, hM, hR), self.scaleT(vX+16, vCsB+12, KPp+2, hM, hR),
                               self.scaleN(vX+32, vCsB+16, VPp), self.scaleN(vX+48, vCsB+17, VPp+2))))
        a.fence()
        a("L_B_rdd:")
        self.stamp(5)
        for h in range(2):
            a(f"v_mfma_f32_16x16x16_bf16 v[{S[h]+4}:{S[h]+7}], v[{KPp+2*h}:{KPp+2*h+1}], v[{QP+2*h}:{QP+2*h+1}], 0")
        AV = [vT+0, vT+4]
        for h in range(2):
            a(f"v_mov_b32 v{AV[h]}, v{VPp+2*h}\nv_mov_b32 v{AV[h]+1}, v{VPp+2*h+1}\nv_mov_b32 v{AV[h]+2}, v{VPk+2*h}\nv_mov_b32 v{AV[h]+3}, v{VPk+2*h+1}")
        st = []
        for h in range(2):
            s_ = S[h]; t = vT + 8 + 8*h
            s = self.round4(s_, t) + self.round4(s_+4, t+2)
            for r in range(8): s.append(f"v_add_f32 v{s_+r}, v{s_+r}, v{vBias+r}")
            s += [f"v_max_f32 v{t}, v{s_}, v{s_+1}", f"v_max_f32 v{t+1}, v{s_+2}, v{s_+3}",
                  f"v_max_f32 v{t+2}, v{s_+4}, v{s_+5}", f"v_max_f32 v{t+3}, v{s_+6}, v{s_+7}",
                  f"v_max_f32 v{t}, v{t}, v{t+1}", f"v_max_f32 v{t+2}, v{t+2}, v{t+3}", f"v_max_f32 v{t}, v{t}, v{t+2}"]
            s += self.xlane(t, t+1)
            st.append(s)
        a("\n".join(interleave(*st)))
        a("s_waitcnt lgkmcnt(0)")
        st = []
        for h in range(2):
            s_ = S[h]; t = vT + 8 + 8*h
            s = [f"v_max_f32 v{t}, v{t}, v{t+1}", f"v_max_f32 v{t+2}, v{t+2}, v{t+3}", f"v_max_f32 v{t}, v{t}, v{t+2}",
                 f"v_mul_f32 v{t}, s61, v{t}"]
            for r in range(8): s.append(f"v_fma_f32 v{s_+r}, v{s_+r}, s61, -v{t}")
            for r in range(8): s.append(f"v_exp_f32 v{s_+r}, v{s_+r}")
            s += [f"v_add_f32 v{t}, v{s_}, v{s_+1}", f"v_add_f32 v{t+1}, v{s_+2}, v{s_+3}",
                  f"v_add_f32 v{t+2}, v{s_+4}, v{s_+5}", f"v_add_f32 v{t+3}, v{s_+6}, v{s_+7}",
                  f"v_add_f32 v{t}, v{t}, v{t+1}", f"v_add_f32 v{t+2}, v{t+2}, v{t+3}", f"v_add_f32 v{t}, v{t}, v{t+2}",
                  f"v_mfma_f32_16x16x4_f32 v[{t+4}:{t+7}], v{vOnef}, v{t}, 0"]
            st.append(s)
        a("\n".join(interleave(*st)))
        st = []
        for h in range(2):
            s_ = S[h]; t = vT + 8 + 8*h
            s = [f"v_rcp_f32 v{t+4}, v{t+4}"]
            for r in range(8): s.append(f"v_mul_f32 v{s_+r}, v{s_+r}, v{t+4}")
            s += [f"v_cvt_pk_bf16_f32 v{t}, v{s_+4}, v{s_+5}", f"v_cvt_pk_bf16_f32 v{t+1}, v{s_+6}, v{s_+7}",
                  f"v_cvt_pk_bf16_f32 v{t+2}, v{s_}, v{s_+1}", f"v_cvt_pk_bf16_f32 v{t+3}, v{s_+2}, v{s_+3}",
                  f"v_mfma_f32_16x16x32_bf16 v[{s_}:{s_+3}], v[{AV[h]}:{AV[h]+3}], v[{t}:{t+3}], 0"]
            st.append(s)
        a("\n".join(interleave(*st)))
        for h in range(2):
            a(f"v_cvt_pk_bf16_f32 v{vW+2*h}, v{S[h]}, v{S[h]+1}\nv_cvt_pk_bf16_f32 v{vW+2*h+1}, v{S[h]+2}, v{S[h]+3}")
        self.dstore([f"buffer_store_dwordx4 v[{vW}:{vW+3}], v{vL16}, s[4:7], s42 offen @"])
        a("s_cmp_eq_u32 s39, 3\ns_cbranch_scc1 L_B_nopf")
        self.dma_w("s67", 12, 0)
        a("L_B_nopf:")

    def phaseWo(self):
        a = self.a; vm = self.vm
        self.inwo = 1
        self.stamp(7); self.cstamp(13)
        self.issue_group("s43", 0, "o"); self.issue_group("s43", 1, "o")
        T = [vAcc, vAcc+4]
        for p in range(4):
            a(f"v_lshlrev_b32 v{vT+2*p}, 16, v{vRes+p}\nv_and_b32 v{vT+1+2*p}, 0xffff0000, v{vRes+p}")
        self.streamloop([(i, T[i], True) for i in range(2)], "s43", "o", lambda ks, nt: (vLdsC, (ks*2+nt)*1024),
                        {0: lambda: self.stamp(8), 3: lambda: (self.touch("s68", 4) if "w" in self.opt else None)})
        self.stamp(9); self.cstamp(0)
        a("\n".join(interleave(self.round4(vAcc, vW), self.round4(vAcc+4, vW+2))))
        for r in range(8): a(f"v_add_f32 v{vAcc+r}, v{vAcc+r}, v{vT+r}")
        for p in range(4): a(f"v_cvt_pk_bf16_f32 v{vRes+p}, v{vAcc+2*p}, v{vAcc+2*p+1}")
        a("""
        s_cmp_eq_u32 s39, 3
        s_cbranch_scc1 L_final
        """)
        self.dstore([f"buffer_store_dwordx4 v[{vRes}:{vRes+3}], v{vL16}, s[4:7], s44 offen @"])
        a(f"v_dot2_f32_bf16 v{vW}, v{vRes}, v{vOnes}, 0\nv_dot2_f32_bf16 v{vW+1}, v{vRes}, v{vRes}, 0")
        for p in range(1, 4):
            a(f"v_dot2_f32_bf16 v{vW}, v{vRes+p}, v{vOnes}, v{vW}\nv_dot2_f32_bf16 v{vW+1}, v{vRes+p}, v{vRes+p}, v{vW+1}")
        a(f"""
        v_mfma_f32_16x16x4_f32 v[{vW+4}:{vW+7}], v{vOnef}, v{vW}, 0
        v_mfma_f32_16x16x4_f32 v[{vW+8}:{vW+11}], v{vOnef}, v{vW+1}, 0
        v_mov_b32 v{vW+5}, v{vW+8}
        s_mov_b64 exec, 0xffff
        """)
        self.dstore([f"buffer_store_dwordx2 v[{vW+4}:{vW+5}], v{vL16}, s[4:7], s45 offen @"])
        a(f"""
        s_mov_b64 exec, -1
        v_mov_b32 v4, v{vW+4}
        v_mov_b32 v5, v{vW+5}
        """)
        self.stamp(10)
        self.stamp(11)
        if self.stop is not None:
            a(f"s_cmp_eq_u32 s39, {self.stop}\ns_cbranch_scc1 L_km_end")
        a("""
        s_add_u32 s39, s39, 1
        s_branch L_layer
        """)
        a.fence()
        a(f"""
L_final:
        v_and_b32 v{vT}, 15, v{vLane}
        v_lshlrev_b32 v{vT}, 11, v{vT}
        v_lshrrev_b32 v{vT+1}, 1, v{vRowB}
        v_add_u32 v{vT}, v{vT}, v{vT+1}
        s_lshr_b32 s53, s33, 1
        s_lshl_b32 s53, s53, 5
        s_and_b32 s54, s33, 1
        s_add_u32 s53, s53, s54
        s_lshl_b32 s53, s53, 10
        s_lshl_b32 s54, s31, 6
        s_add_u32 s53, s53, s54
        buffer_store_dwordx2 v[{vRes}:{vRes+1}], v{vT}, s[8:11], s53 offen
        buffer_store_dwordx2 v[{vRes+2}:{vRes+3}], v{vT}, s[8:11], s53 offen offset:32
        """)
        self.stamp(10)
        self.stamp_dump()

def build(path, stop=None, mode=None):
    from gen_k0 import gen_k0
    a = Asm()
    a.raw("; @launch kernel=prep_kernel grid=(256,1,1) block=(256,1,1) lds=0")
    a.raw("; @launch kernel=main_kernel grid=(256,1,1) block=(512,1,1) lds=163840")
    a.raw('.amdgcn_target "amdgcn-amd-amdhsa--gfx950"\n.text')
    gen_k0(a)
    a.hist = []
    km = KM(a, stop); km.prof = (mode in ("prof", "gprof")); km.gst = (mode == "gprof"); km.opt = os.environ.get("OPT", ""); km.wo_mod = os.environ.get("WO_MOD", ""); km.force_slow = (mode == "slow"); km.gen("main_kernel")
    a.raw('.section .rodata,"a"')
    a.raw(kernel_desc("prep_kernel", 112))
    a.raw(kernel_desc("main_kernel", 256))
    open(path, "w").write(a.text())
    return a

if __name__ == "__main__":
    stop = int(sys.argv[2]) if len(sys.argv) > 2 and sys.argv[2] != "-" else None
    a = build(sys.argv[1] if len(sys.argv) > 1 else "km7.s", stop, sys.argv[3] if len(sys.argv) > 3 else None)
    print("nops inserted", a.nnop, "lines", len(a.lines))
```

```python
from asmlib import *
from layout import *
import sys, os
from gen_km import VM, interleave, LOG2E, LOG2E_Q

LDS_WO = 98304
XCH = 131072

vL16, vLdsB, vLdsC, vZero, vOne, vOnef, vLane = 1, 2, 3, 4, 5, 6, 7
vId = 8
vPhi = 10
vL4 = 14
vTch = 15
vCsA = 16
vCsB = 34
vRes = 52
vBias = 56
vX = 64
vAcc = 128
vW = 152
vT = 200
vStamp = 232
vDummy = 233
vXch = 234
vL1k = 235
vMv = 236; vRv = 240
vX32, vX48, vRowB, vSt = 244, 245, 246, 247
vOnes = 248
vM, vR = 252, 253
vPoll = 254
vTmp = 255
vHalo = vT + 26
NR = 9
vBK = vW + 36

class KM:
    def __init__(self, a, stop=None):
        self.a = a; self.vm = VM(a); self.uid = 0; self.stop = stop; self.prof = False; self.outl = []; self.force_slow = False
    def lab(self, p):
        self.uid += 1; return f"L_{p}_{self.uid}"
    def stamp(self, k):
        if not self.prof: return
        if (getattr(self, "gst", 0) or getattr(self, "ast", 0)) and getattr(self, "inwo", 0) and k >= 8: return
        self.a(f"s_memtime s[70:71]\ns_waitcnt lgkmcnt(0)\ns_lshl_b32 s72, s39, 4\ns_add_u32 m0, s72, {k}\ns_nop 1\nv_writelane_b32 v{vStamp}, s70, m0")
    def fstamp(self, k):
        if getattr(self, "ast", 0):
            sv = getattr(self, "inwo", 0); self.inwo = 0; self.stamp(k); self.inwo = sv
    def cstamp(self, k):
        if not self.prof or getattr(self, "ast", 0): return
        self.a(f"s_lshl_b32 s72, s39, 4\ns_add_u32 m0, s72, {k}\ns_nop 1\nv_writelane_b32 v{vStamp}, s90, m0\ns_mov_b32 s90, 0")
    def rstamp(self, k):
        if not self.prof: return
        self.a(f"s_memrealtime s[70:71]\ns_waitcnt lgkmcnt(0)\nv_writelane_b32 v{vStamp}, s70, {k}")
    def stamp_dump(self):
        if not self.prof: return
        self.rstamp(62)
        self.a(f"s_lshl_b32 s57, s2, 3\ns_add_u32 s57, s57, s32\ns_lshl_b32 s57, s57, 8\ns_add_u32 s57, s57, 0x1800000\nbuffer_store_dword v{vStamp}, v{vL4}, s[4:7], s57 offen")
    def poll1(self, sreg, target):
        a = self.a; L = self.lab("poll"); D = self.lab("pd")
        a(f"""
        s_mov_b32 s56, 0
{L}:
        s_add_u32 s56, s56, 1
        s_cmp_gt_u32 s56, 0x40000
        s_cbranch_scc1 {D}
        buffer_load_dword v{vPoll}, v{vZero}, s[4:7], {sreg} offen sc1
        s_waitcnt vmcnt(0)
        v_readfirstlane_b32 s53, v{vPoll}
        s_cmp_ge_u32 s53, {target}
        s_cbranch_scc1 {D}
        s_sleep 2
        s_branch {L}
{D}:
        """)
    def sync(self, sig, waits, others=None):
        a = self.a; S = self.lab("sy"); O = self.lab("so")
        a(f"""
        s_barrier
        s_cmp_lg_u32 s32, 0
        s_cbranch_scc1 {O}
        s_mov_b64 exec, 1
        buffer_atomic_add v{vOne}, v{vZero}, s[4:7], {sig} offen sc1
        """)
        for w in waits:
            if isinstance(w, tuple):
                K = self.lab("sk")
                a(f"s_cmp_eq_u32 {w[1]}, 0\ns_cbranch_scc1 {K}")
                self.poll1(w[0], 16); a(f"{K}:")
            else:
                self.poll1(w, 16)
        a(f"""
        s_mov_b64 exec, -1
        s_branch {S}
{O}:
        """)
        if others: others(S)
        a(f"""
{S}:
        s_barrier
        """)
    def dma_w(self, sbase, nper, ldsbase, mod=""):
        a = self.a
        if "X" in self.opt and sbase == "s67":
            K = self.lab("xs"); a(f"s_cmp_lg_u32 s39, 0\ns_cbranch_scc1 {K}")
            sv = list(self.vm.q); o = self.opt; self.opt = ""
            self.dma_w(sbase, nper, ldsbase, mod); self.opt = o; self.vm.q = sv
            a(f"{K}:"); return
        a(f"s_mul_i32 s53, s32, {nper*1024}")
        a(f"s_add_u32 s52, {sbase}, s53")
        a(f"s_add_u32 s53, s53, {ldsbase}")
        for g in range(nper // 4):
            a(f"s_mov_b32 m0, s53")
            for i in range(4):
                a(f"buffer_load_dwordx4 v{vL16}, s[4:7], s52 offen offset:{i*1024} {mod} lds")
                self.vm.issue("dma")
            if g != nper // 4 - 1:
                a("s_add_u32 s52, s52, 4096\ns_add_u32 s53, s53, 4096")
    def touch(self, sbase, nper):
        a = self.a
        if "X" in self.opt and sbase == "s67":
            K = self.lab("xs"); a(f"s_cmp_lg_u32 s39, 0\ns_cselect_b32 s52, s41, s67"); sbase = "s52"
        a(f"s_mul_i32 s53, s32, {nper*1024}\ns_add_u32 s52, {sbase}, s53")
        if nper == 12:
            a(f"buffer_load_dword v{vDummy}, v{vTch}, s[4:7], s52 offen"); self.vm.issue("t")
            a(f"s_add_u32 s52, s52, 4096\nbuffer_load_dword v{vDummy}, v{vTch}, s[4:7], s52 offen"); self.vm.issue("t")
        else:
            a(f"s_mov_b64 exec, 0xffffffff\nbuffer_load_dword v{vDummy}, v{vTch}, s[4:7], s52 offen\ns_mov_b64 exec, -1"); self.vm.issue("t")
    def mainloop(self, tiles, nks, xreg, addr_of, xtag=None):
        a = self.a
        seq = [(ks, tl) for ks in range(nks) for tl in tiles]
        D = 8
        issued = 0
        def rd(i):
            ks, (nt, acc, tr) = seq[i]
            vb, off = addr_of(ks, nt)
            r = vW + 4*(i % NR)
            a(f"ds_read_b128 v[{r}:{r+3}], v{vb} offset:{off}")
        for i in range(len(seq)):
            while issued < min(len(seq), i + D):
                rd(issued); issued += 1
            ks, (nt, acc, tr) = seq[i]
            if xtag is not None and (i % len(tiles)) == 0: self.vm.wait((xtag, ks))
            a(f"s_waitcnt lgkmcnt({issued - i - 1})")
            r = vW + 4*(i % NR); x = xreg(ks)
            c = f"v[{acc}:{acc+3}]" if ks > 0 else "0"
            if tr: a(f"v_mfma_f32_16x16x32_bf16 v[{acc}:{acc+3}], v[{r}:{r+3}], v[{x}:{x+3}], {c}")
            else:  a(f"v_mfma_f32_16x16x32_bf16 v[{acc}:{acc+3}], v[{x}:{x+3}], v[{r}:{r+3}], {c}")
    def hint_wait(self, sreg, mask="0xffff"):
        a = self.a; L = self.lab("hw"); D = self.lab("hd")
        a(f"""
        s_mov_b32 s56, 0
        s_mov_b64 exec, {mask}
{L}:
        buffer_load_dword v{vPoll}, v{vL4}, s[4:7], {sreg} offen sc1
        s_add_u32 s56, s56, 1
        s_cmp_gt_u32 s56, 0x40000
        s_cbranch_scc1 {D}
        s_waitcnt vmcnt(0)
        v_cmp_ne_u32 vcc, 1, v{vPoll}
        s_cbranch_vccz {D}
        s_sleep 1
        s_branch {L}
{D}:
        s_mov_b64 exec, -1
        """)
        self.vm.reset()
    def hint_set(self, sreg):
        self.a(f"""
        s_lshl_b32 s53, s31, 2
        s_add_u32 s53, s53, {sreg}
        s_mov_b64 exec, 1
        buffer_store_dword v{vOne}, v{vZero}, s[4:7], s53 offen sc1
        s_mov_b64 exec, -1
        """)
    def dstore(self, lines):
        a = self.a; S = self.lab("ds"); D = self.lab("dd")
        a(f"s_cmp_eq_u32 s73, 0\ns_cbranch_scc1 {S}")
        a("\n".join(l.replace(" @", "") for l in lines))
        a(f"s_branch {D}\n{S}:")
        a("\n".join(l.replace(" @", " sc1") for l in lines))
        a(f"{D}:")
    def issue_group(self, sbase, g, tag):
        a = self.a
        if g: a(f"s_add_u32 s58, {sbase}, {g*4096}")
        sb = "s58" if g else sbase
        half = (("1" in self.opt and sbase == "s43") or ("2" in self.opt and sbase == "s40")) and g >= 2
        if half: a("s_mov_b64 exec, 1")
        for i in range(4):
            ks = 4*g + i
            a(f"buffer_load_dwordx4 v[{vX+4*ks}:{vX+4*ks+3}], v{vL16}, s[4:7], {sb} offen offset:{i*1024} sc1")
            if tag: self.vm.issue((tag, ks))
        if half: a("s_mov_b64 exec, -1")
    def check(self, base, n, reissue, hint=None):
        a = self.a; C = self.lab("chk"); R = self.lab("rt"); D = self.lab("cd")
        a(f"s_mov_b32 s56, 0\n{C}:")
        a(f"v_max3_u32 v{vTmp}, v{base}, v{base+1}, v{base+2}")
        i = 3
        while i < n:
            if i + 1 < n: a(f"v_max3_u32 v{vTmp}, v{vTmp}, v{base+i}, v{base+i+1}"); i += 2
            else: a(f"v_max_u32 v{vTmp}, v{vTmp}, v{base+i}"); i += 1
        a(f"v_cmp_eq_u32 vcc, -1, v{vTmp}\ns_cbranch_vccnz {R}\n{D}:")
        self.outl.append((R, C, D, reissue, hint))
    def flush_outl(self):
        a = self.a
        for (R, C, D, reissue, hint) in self.outl:
            a.fence()
            a(f"{R}:\ns_add_u32 s90, s90, 1\ns_add_u32 s56, s56, 1\ns_cmp_gt_u32 s56, 0x40000\ns_cbranch_scc1 {D}\ns_sleep 1")
            if hint is not None:
                sbase, g = hint
                a(f"""
                s_mov_b64 exec, 0xffff
                buffer_load_dword v{vPoll}, v{vL1k}, s[4:7], {sbase} offen offset:1020 sc1
                s_waitcnt vmcnt(0)
                v_cmp_eq_u32 vcc, -1, v{vPoll}
                s_mov_b64 exec, -1
                s_cbranch_vccnz {R}
                """)
            reissue()
            a(f"s_waitcnt vmcnt(0)\ns_branch {C}")
        self.outl = []
    def streamloop(self, tiles, sbase, tag, addr_of, fillers={}):
        a = self.a
        seq = [(ks, tl) for ks in range(16) for tl in tiles]
        D = 8
        issued = 0
        def rd(i):
            ks, (nt, acc, tr) = seq[i]
            vb, off = addr_of(ks, nt)
            r = vW + 4*(i % NR)
            a(f"ds_read_b128 v[{r}:{r+3}], v{vb} offset:{off}")
        for i in range(len(seq)):
            while issued < min(len(seq), i + D):
                rd(issued); issued += 1
            ks, (nt, acc, tr) = seq[i]
            if i % (4*len(tiles)) == 0:
                g = ks // 4
                self.vm.wait((tag, ks+3))
                def reis(g=g):
                    for gg in range(g, min(4, g + self.ah)): self.issue_group(sbase, gg, None)
                self.check(vX+16*g, 16, reis, (sbase, g))
                if getattr(self, "gst", 0) and tag == "x": self.stamp(8+g)
                if "q" in self.opt and g == self.pg: a("s_setprio 2")
                if g + self.ah <= 3: self.issue_group(sbase, g+self.ah, tag)
                if g in fillers: fillers[g]()
            a(f"s_waitcnt lgkmcnt({issued - i - 1})")
            r = vW + 4*(i % NR); x = vX + 4*ks
            c = f"v[{acc}:{acc+3}]" if ks > 0 else "0"
            if tr: a(f"v_mfma_f32_16x16x32_bf16 v[{acc}:{acc+3}], v[{r}:{r+3}], v[{x}:{x+3}], {c}")
            else:  a(f"v_mfma_f32_16x16x32_bf16 v[{acc}:{acc+3}], v[{x}:{x+3}], v[{r}:{r+3}], {c}")
    def prio_end(self):
        if "q" in self.opt: self.a("s_setprio 0")
    def st_loads(self, tag=True):
        a = self.a
        a(f"buffer_load_dwordx4 v[{vT+24}:{vT+27}], v{vSt}, s[4:7], s41 offen sc1")
        a(f"buffer_load_dwordx4 v[{vT+28}:{vT+31}], v{vSt}, s[4:7], s41 offen offset:256 sc1")
        if tag: self.vm.issue("st0"); self.vm.issue("st1")
    def wo_early(self):
        if "w" in self.opt: self.dma_w("s66", 4, LDS_WO)
    def wo_late(self):
        if "w" not in self.opt: self.dma_w("s66", 4, LDS_WO)
    def touch_early(self):
        if "t" in self.opt: self.touch("s67", 12)
    def touch_late(self):
        if "t" not in self.opt: self.touch("s67", 12)
    def stats_inloop(self):
        self.vm.wait("st1")
        self.check(vT+24, 8, lambda: self.st_loads(False))
        self.stats(vT+24, vM, vR, vT+16)
        self.stats_v(vM, vR)
    def wq_addr(self, ks, nt):
        off = (ks*6 + nt)*1024
        return (vL16, off) if off < 49152 else (vLdsB, off - 49152)
    def stats(self, ld, vm_, vr_, t):
        self.a(f"""
        v_add_f32 v{ld}, v{ld}, v{ld+2}
        v_add_f32 v{ld+1}, v{ld+1}, v{ld+3}
        v_add_f32 v{ld+4}, v{ld+4}, v{ld+6}
        v_add_f32 v{ld+5}, v{ld+5}, v{ld+7}
        v_add_f32 v{ld}, v{ld}, v{ld+4}
        v_add_f32 v{ld+1}, v{ld+1}, v{ld+5}
        v_mfma_f32_16x16x4_f32 v[{t}:{t+3}], v{vOnef}, v{ld}, 0
        v_mfma_f32_16x16x4_f32 v[{t+4}:{t+7}], v{vOnef}, v{ld+1}, 0
        v_mul_f32 v{t}, 0x3b000000, v{t}
        v_mul_f32 v{t+4}, 0x3b000000, v{t+4}
        v_fma_f32 v{t+4}, -v{t}, v{t}, v{t+4}
        v_max_f32 v{t+4}, 0, v{t+4}
        v_cvt_pk_bf16_f32 v{t+1}, v{t}, v{t+4}
        v_lshlrev_b32 v{vm_}, 16, v{t+1}
        v_and_b32 v{t+4}, 0xffff0000, v{t+1}
        v_add_f32 v{t+4}, 0x3727c5ac, v{t+4}
        v_cvt_pk_bf16_f32 v{t+4}, v{t+4}, v{t+4}
        v_lshlrev_b32 v{t+4}, 16, v{t+4}
        v_sqrt_f32 v{t+4}, v{t+4}
        v_cvt_pk_bf16_f32 v{t+4}, v{t+4}, v{t+4}
        v_lshlrev_b32 v{t+4}, 16, v{t+4}
        v_rcp_f32 v{vr_}, v{t+4}
        """)
    def stats_v(self, vm_, vr_):
        a = self.a
        for r in range(4):
            a(f"ds_bpermute_b32 v{vMv+r}, v{vRowB}, v{vm_} offset:{4*r}")
            a(f"ds_bpermute_b32 v{vRv+r}, v{vRowB}, v{vr_} offset:{4*r}")
    def scaleT(self, acc, cs, out, vm_=vM, vr_=vR):
        s = []
        for r in range(4): s.append(f"v_fma_f32 v{acc+r}, -v{vm_}, v{cs+r}, v{acc+r}")
        for r in range(4): s.append(f"v_mul_f32 v{acc+r}, v{acc+r}, v{vr_}")
        s.append(f"v_cvt_pk_bf16_f32 v{out}, v{acc}, v{acc+1}")
        s.append(f"v_cvt_pk_bf16_f32 v{out+1}, v{acc+2}, v{acc+3}")
        return s
    def scaleN(self, acc, cs, out):
        s = []
        for r in range(4): s.append(f"v_fma_f32 v{acc+r}, -v{vMv+r}, v{cs}, v{acc+r}")
        for r in range(4): s.append(f"v_mul_f32 v{acc+r}, v{acc+r}, v{vRv+r}")
        s.append(f"v_cvt_pk_bf16_f32 v{out}, v{acc}, v{acc+1}")
        s.append(f"v_cvt_pk_bf16_f32 v{out+1}, v{acc+2}, v{acc+3}")
        return s
    def round4(self, p, t):
        return [f"v_cvt_pk_bf16_f32 v{t}, v{p}, v{p+1}", f"v_cvt_pk_bf16_f32 v{t+1}, v{p+2}, v{p+3}",
                f"v_lshlrev_b32 v{p}, 16, v{t}", f"v_and_b32 v{p+1}, 0xffff0000, v{t}",
                f"v_lshlrev_b32 v{p+2}, 16, v{t+1}", f"v_and_b32 v{p+3}, 0xffff0000, v{t+1}"]
    def xlane(self, src, d):
        return [f"ds_swizzle_b32 v{d}, v{src} offset:0x401f",
                f"ds_bpermute_b32 v{d+1}, v{vX32}, v{src}",
                f"ds_bpermute_b32 v{d+2}, v{vX48}, v{src}"]
    def featmap_spread(self, accs, css, outs, tb, spread, at=None):
        real = self.a
        buf = []
        class Cap:
            def __call__(s_, text):
                for ln in text.strip().split("\n"):
                    if ln.strip(): buf.append(ln.strip())
        self.a = Cap()
        self.featmap(accs, css, outs, tb)
        self.a = real
        if at is not None:
            pos = int(len(buf) * at[0])
            buf = buf[:pos] + at[1] + buf[pos:]
        step = max(1, len(buf) // (len(spread) + 1))
        out = []; k = 0
        for i, ln in enumerate(buf):
            out.append(ln)
            if (i + 1) % step == 0 and k < len(spread):
                out.append(spread[k]); k += 1
        out += spread[k:]
        real("\n".join(out))
    def featmap(self, accs, css, outs, tb, extra=None):
        a = self.a
        T = [tb, tb + 24]
        a("\n".join(interleave(*[self.scaleT(accs[h], css[h], T[h]+4) for h in range(2)])))
        for h in range(2):
            a(f"v_mfma_f32_16x16x16_bf16 v[{T[h]}:{T[h]+3}], v[{vPhi+2*h}:{vPhi+2*h+1}], v[{T[h]+4}:{T[h]+5}], 0")
        if extra: a("s_waitcnt lgkmcnt(0)\n" + "\n".join(extra))
        st = []
        for h in range(2):
            t = T[h]
            s = self.round4(t, t+4)
            s += [f"v_max_f32 v{t+6}, v{t}, v{t+1}", f"v_min_f32 v{t+7}, v{t}, v{t+1}",
                  f"v_max_f32 v{t+8}, v{t+2}, v{t+3}", f"v_min_f32 v{t+9}, v{t+2}, v{t+3}",
                  f"v_max_f32 v{t+6}, v{t+6}, v{t+8}", f"v_min_f32 v{t+7}, v{t+7}, v{t+9}"]
            s += self.xlane(t+6, t+8) + self.xlane(t+7, t+11)
            st.append(s)
        a("\n".join(interleave(*st)))
        a("s_waitcnt lgkmcnt(0)")
        st = []
        for h in range(2):
            t = T[h]
            s = [f"v_max_f32 v{t+6}, v{t+6}, v{t+8}", f"v_min_f32 v{t+7}, v{t+7}, v{t+11}",
                 f"v_max_f32 v{t+9}, v{t+9}, v{t+10}", f"v_min_f32 v{t+12}, v{t+12}, v{t+13}",
                 f"v_max_f32 v{t+6}, v{t+6}, v{t+9}", f"v_min_f32 v{t+7}, v{t+7}, v{t+12}",
                 f"v_mul_f32 v{t+6}, s60, v{t+6}", f"v_mul_f32 v{t+7}, s60, v{t+7}"]
            for r in range(4):
                s.append(f"v_fma_f32 v{t+14+r}, v{t+r}, s60, -v{t+6}")
                s.append(f"v_fma_f32 v{t+18+r}, -v{t+r}, s60, v{t+7}")
            for r in range(8): s.append(f"v_exp_f32 v{t+14+r}, v{t+14+r}" if "3" not in self.opt else f"v_mov_b32 v{t+14+r}, 1.0")
            s += [f"v_add_f32 v{t+4}, v{t+14}, v{t+15}", f"v_add_f32 v{t+5}, v{t+18}, v{t+19}",
                  f"v_add_f32 v{t+6}, v{t+16}, v{t+17}", f"v_add_f32 v{t+7}, v{t+20}, v{t+21}",
                  f"v_add_f32 v{t+4}, v{t+4}, v{t+6}", f"v_add_f32 v{t+5}, v{t+5}, v{t+7}",
                  f"v_mfma_f32_16x16x4_f32 v[{t}:{t+3}], v{vOnef}, v{t+4}, 0",
                  f"v_mfma_f32_16x16x4_f32 v[{t+8}:{t+11}], v{vOnef}, v{t+5}, 0"]
            st.append(s)
        a("\n".join(interleave(*st)))
        st = []
        for h in range(2):
            t = T[h]; o = outs[h]
            s = [f"v_rcp_f32 v{t}, v{t}", f"v_rcp_f32 v{t+8}, v{t+8}"]
            for r in range(4):
                s.append(f"v_mul_f32 v{t+14+r}, v{t+14+r}, v{t}")
                s.append(f"v_mul_f32 v{t+18+r}, v{t+18+r}, v{t+8}")
            for r in range(4):
                s.append(f"v_cvt_pk_bf16_f32 v{o+r}, v{t+14+2*r}, v{t+15+2*r}")
            st.append(s)
        a("\n".join(interleave(*st)))

    def layer_offsets(self):
        self.a(f"""
        s_lshl_b32 s53, s39, 21                 ; l*2MB
        s_lshl_b32 s54, s33, 14
        s_add_u32 s53, s53, s54
        s_add_u32 s40, s53, {XF}                ; sXin
        s_add_u32 s43, s53, {OF}                ; sOin
        s_lshl_b32 s55, s31, 10
        s_add_u32 s42, s43, s55                 ; sOout
        s_add_u32 s44, s40, s55
        s_add_u32 s44, s44, 0x200000            ; sXout
        s_lshl_b32 s53, s39, 18
        s_lshl_b32 s54, s33, 11
        s_add_u32 s41, s53, s54
        s_add_u32 s41, s41, {ST}                ; sSTin
        s_add_u32 s45, s41, s64                 ; sSTout
        s_lshl_b32 s53, s39, 7
        s_add_u32 s54, s53, s33
        s_lshl_b32 s54, s54, 6
        s_add_u32 s47, s54, {HNT}               ; hint O (l, t)
        s_add_u32 s46, s54, {HNT + 0x8000}      ; hint X (l, t)
        s_add_u32 s49, s46, {128*64}            ; hint X (l+1, t)
        s_lshr_b32 s53, s39, 1
        s_lshl_b32 s54, s53, 4
        s_add_u32 s54, s54, s31
        s_lshl_b32 s50, s54, 12
        s_add_u32 s50, s50, {ZP}
        s_lshl_b32 s51, s54, 16
        s_add_u32 s51, s51, {KVP}
        ; s66 = Wo(l) tile, s67 = Wq(l+1) tile, s68 = Wo(l+1) tile, s65 = need halo wait for next layer (l even && rb>0)
        s_and_b32 s53, s39, 1
        s_cmp_eq_u32 s53, 0
        s_cselect_b32 s66, 0, {WO_B-WO_A}
        s_cselect_b32 s68, {WO_B-WO_A}, 0
        s_cselect_b32 s67, {WQ_B}, 0
        s_cselect_b32 s65, s30, 0
        s_add_u32 s66, s66, s63
        s_add_u32 s68, s68, s63
        s_add_u32 s67, s67, s62
        """)
    def xloads(self):
        for g in range(self.ah):
            self.issue_group("s40", g, "x")
            if g == 1 and "s" in self.opt: self.st_loads()

    def gen(self, name):
        a = self.a; vm = self.vm
        a.raw(f".globl {name}\n.p2align 8\n.type {name},@function\n{name}:")
        a(f"""
        s_cmp_ge_u32 s2, 256
        s_cbranch_scc1 L_km_end
        s_load_dwordx2 s[16:17], s[0:1], 16     ; w_phi
        s_load_dwordx2 s[18:19], s[0:1], 56     ; out
        s_load_dwordx2 s[20:21], s[0:1], 72     ; ws
        v_lshrrev_b32 v{vT}, 6, v0
        v_and_b32 v{vLane}, 63, v0
        v_readfirstlane_b32 s32, v{vT}          ; wave
        v_lshlrev_b32 v{vL16}, 4, v{vLane}
        v_lshlrev_b32 v{vL4}, 2, v{vLane}
        v_lshlrev_b32 v{vTch}, 7, v{vLane}
        v_lshlrev_b32 v{vL1k}, 10, v{vLane}
        v_lshrrev_b32 v{vT+1}, 4, v{vLane}      ; g
        v_and_b32 v{vT+2}, 15, v{vLane}         ; i
        v_lshlrev_b32 v{vSt}, 9, v{vT+1}
        v_lshlrev_b32 v{vT+3}, 4, v{vT+2}
        v_add_u32 v{vSt}, v{vSt}, v{vT+3}       ; g*512 + i*16
        s_and_b32 s30, s2, 7
        s_lshr_b32 s31, s2, 3
        s_lshl_b32 s30, s30, 1
        s_and_b32 s53, s31, 1
        s_add_u32 s30, s30, s53                 ; rb
        s_lshr_b32 s31, s31, 1                  ; ct
        s_lshl_b32 s33, s30, 3
        s_add_u32 s33, s33, s32                 ; t
        s_mov_b32 s39, 0
        s_mov_b32 s90, 0
        s_mov_b32 s60, {LOG2E}
        s_mov_b32 s61, {LOG2E_Q}
        s_mul_i32 s62, s31, 98304
        s_lshl_b32 s63, s31, 15
        s_add_u32 s63, s63, {WO_A}
        ; s64 = 0x40000 + (p>>2)*512 + ((p>>1)&1)*256 + (p&1)*8, p = ct
        s_lshr_b32 s64, s31, 1
        s_lshl_b32 s64, s64, 8
        s_and_b32 s53, s31, 1
        s_lshl_b32 s53, s53, 3
        s_add_u32 s64, s64, s53
        s_add_u32 s64, s64, 0x40000
        v_cmp_le_u32 vcc, 96, v0
        v_subrev_u32 v{vT+5}, 96, v0
        v_cndmask_b32 v{vT+5}, v0, v{vT+5}, vcc          ; c
        v_mov_b32 v{vT+6}, 98304
        v_cndmask_b32 v{vT+6}, 0, v{vT+6}, vcc
        v_lshrrev_b32 v{vT+7}, 5, v{vT+5}
        v_lshlrev_b32 v{vT+7}, 11, v{vT+7}
        v_add_u32 v{vT+6}, v{vT+6}, v{vT+7}
        v_and_b32 v{vT+7}, 31, v{vT+5}
        v_lshlrev_b32 v{vT+7}, 2, v{vT+7}
        v_add_u32 v{vT+6}, v{vT+6}, v{vT+7}
        v_lshlrev_b32 v{vT+3}, 7, v{vT+1}
        v_lshlrev_b32 v{vT+4}, 1, v{vT+2}
        v_add_u32 v{vT+3}, v{vT+3}, v{vT+4}
        """)
        self.layer_offsets()
        a(f"""
        s_waitcnt lgkmcnt(0)
        s_mov_b32 s4, s20
        s_mov_b32 s5, s21
        s_mov_b32 s6, {WS_SIZE}
        s_mov_b32 s7, 0x20000
        s_mov_b32 s8, s18
        s_mov_b32 s9, s19
        s_mov_b32 s10, 0x200000
        s_mov_b32 s11, 0x20000
        s_mov_b32 s12, s16
        s_mov_b32 s13, s17
        s_mov_b32 s14, 16384
        s_mov_b32 s15, 0x20000
        """)
        self.stamp(15)
        self.rstamp(14)
        a(f"""
        s_getreg_b32 s74, hwreg(HW_REG_XCC_ID)
        s_and_b32 s74, s74, 15
        s_add_u32 s74, s74, 1
        s_lshl_b32 s75, s30, 6
        s_add_u32 s75, s75, {XID}
        s_cmp_lg_u32 s32, 0
        s_cbranch_scc1 L_noxid
        s_lshl_b32 s53, s31, 2
        s_add_u32 s53, s53, s75
        v_mov_b32 v{vT+8}, s74
        v_mov_b32 v{vT+9}, 0
        s_mov_b64 exec, 1
        buffer_store_dword v{vT+8}, v{vT+9}, s[4:7], s53 offen sc1
        s_mov_b64 exec, -1
L_noxid:
        """)
        a("s_mul_i32 s53, s32, 12288\ns_add_u32 s52, s62, s53\ns_add_u32 s54, s53, 2048\ns_add_u32 s55, s52, 2048")
        for hh in range(2):
            a("s_mov_b32 m0, s54")
            for i in range(4):
                a(f"buffer_load_dwordx4 v{vL16}, s[4:7], s55 offen offset:{i*1024} lds"); vm.issue("dma")
            if hh == 0: a("s_add_u32 s54, s54, 6144\ns_add_u32 s55, s55, 6144")
        a("s_mov_b32 s88, s52\ns_mov_b32 s89, s53")
        vm.q[-1] = "wlast"
        self.xloads()
        qx = list(vm.q)
        a(f"""
        s_lshl_b32 s53, s31, 7
        s_add_u32 s53, s53, {CSP}
        s_cmp_ge_u32 s32, 3
        s_cbranch_scc1 L_cs_skip1
        """)
        for k in range(16):
            a(f"buffer_load_dword v{vW+k}, v{vT+6}, s[4:7], s53 offen")
            if k != 15: a("s_add_u32 s53, s53, 6144")
        a("L_cs_skip1:\ns_lshl_b32 s53, s31, 10")
        for h in range(2):
            for e in range(4):
                a(f"buffer_load_ushort v{vW+16+4*h+e}, v{vT+3}, s[12:15], s53 offen offset:{h*512+e*32}")
                vm.issue("phi")
        vm.q[-1] = "philast"
        for hh in range(2):
            a("s_mov_b32 m0, s89")
            for i in range(2):
                a(f"buffer_load_dwordx4 v{vL16}, s[4:7], s88 offen offset:{i*1024} lds"); vm.issue("dmaq")
            if hh == 0: a("s_add_u32 s88, s88, 6144\ns_add_u32 s89, s89, 6144")
        a(f"s_sub_u32 s53, s44, 0x200000\nbuffer_load_dwordx4 v[{vRes}:{vRes+3}], v{vL16}, s[4:7], s53 offen")
        vm.issue("res")
        a(f"""
        v_lshlrev_b32 v{vRowB}, 4, v{vT+1}      ; (4g)*4
        s_cmp_ge_u32 s32, 4
        s_cbranch_scc1 L_noarm2
        v_mov_b32 v{vAcc}, -1
        v_mov_b32 v{vAcc+1}, -1
        v_mov_b32 v{vAcc+2}, -1
        v_mov_b32 v{vAcc+3}, -1
        s_lshl_b32 s53, s32, 14
        s_lshl_b32 s54, s30, 10
        s_add_u32 s53, s53, s54
        s_add_u32 s53, s53, s51
        s_add_u32 s53, s53, 0x100000
        buffer_store_dwordx4 v[{vAcc}:{vAcc+3}], v{vL16}, s[4:7], s53 offen sc1
        s_lshl_b32 s53, s32, 6
        s_lshl_b32 s54, s30, 8
        s_add_u32 s53, s53, s54
        s_add_u32 s53, s53, s50
        s_add_u32 s53, s53, 0x10000
        s_mov_b32 s54, 0x00010001
        s_mov_b32 s55, 0x00010001
        s_mov_b64 exec, s[54:55]
        buffer_store_dwordx4 v[{vAcc}:{vAcc+3}], v{vRowB}, s[4:7], s53 offen sc1
        s_mov_b64 exec, -1
L_noarm2:
        v_add_u32 v{vLdsB}, 49152, v{vL16}
        v_add_u32 v{vLdsC}, {LDS_WO}, v{vL16}
        v_add_u32 v{vXch}, {XCH}, v{vL16}
        v_mov_b32 v{vZero}, 0
        v_mov_b32 v{vOne}, 1
        v_mov_b32 v{vOnef}, 1.0
        v_mov_b32 v{vOnes}, 0x3f803f80
        v_mov_b32 v{vOnes+1}, 0x3f803f80
        v_mov_b32 v{vOnes+2}, 0x3f803f80
        v_mov_b32 v{vOnes+3}, 0x3f803f80
        v_xor_b32 v{vX32}, 32, v{vLane}
        v_lshlrev_b32 v{vX32}, 2, v{vX32}
        v_xor_b32 v{vX48}, 48, v{vLane}
        v_lshlrev_b32 v{vX48}, 2, v{vX48}
        v_lshlrev_b32 v{vRowB}, 4, v{vT+1}      ; (4g)*4
        v_lshlrev_b32 v{vT+3}, 2, v{vT+1}
        v_sub_u32 v{vT+3}, v{vT+2}, v{vT+3}     ; j-4g
        v_mov_b32 v{vT+4}, 0x3f80
        v_mov_b32 v{vT+5}, 0x3f800000
        v_cmp_eq_u32 vcc, 0, v{vT+3}
        v_cndmask_b32 v{vId}, 0, v{vT+4}, vcc
        v_cmp_eq_u32 vcc, 1, v{vT+3}
        v_cndmask_b32 v{vId}, v{vId}, v{vT+5}, vcc
        v_cmp_eq_u32 vcc, 2, v{vT+3}
        v_cndmask_b32 v{vId+1}, 0, v{vT+4}, vcc
        v_cmp_eq_u32 vcc, 3, v{vT+3}
        v_cndmask_b32 v{vId+1}, v{vId+1}, v{vT+5}, vcc
        v_mov_b32 v{vT+4}, 0xf149f2ca
        s_cmp_lt_u32 s33, 2
        s_cselect_b32 s53, -100, -9
        """)
        for r in range(4):
            a(f"""
            v_subrev_u32 v{vT+5}, {r}, v{vT+3}
            v_cmp_gt_u32 vcc, 8, v{vT+5}
            v_cndmask_b32 v{vBias+r}, v{vT+4}, 0, vcc
            v_cmp_ge_i32 vcc, s53, v{vT+5}
            v_cndmask_b32 v{vBias+4+r}, v{vT+4}, 0, vcc
            """)
        vm.wait("philast")
        for i in range(4): a(f"v_lshl_or_b32 v{vPhi+i}, v{vW+17+2*i}, 16, v{vW+16+2*i}")
        a("s_cmp_ge_u32 s32, 3\ns_cbranch_scc1 L_cs_skip2")
        for st in (8, 4, 2, 1):
            for k in range(st): a(f"v_add_f32 v{vW+k}, v{vW+k}, v{vW+k+st}")
        a(f"""
        v_lshlrev_b32 v{vT+5}, 2, v0
        v_add_u32 v{vT+5}, {XCH + 28672}, v{vT+5}
        ds_write_b32 v{vT+5}, v{vW}
        s_waitcnt lgkmcnt(0)
L_cs_skip2:
        """)
        a(f"""
        s_barrier
        v_add_u32 v{vT+5}, {XCH + 28672}, v{vRowB}    ; g*16
        v_lshlrev_b32 v{vT+6}, 2, v{vT+2}
        v_add_u32 v{vT+6}, {XCH + 28672}, v{vT+6}     ; i*4
        """)
        for m, base in ((0, vCsA), (1, vCsB)):
            for nt in range(4):
                a(f"ds_read_b128 v[{base+4*nt}:{base+4*nt+3}], v{vT+5} offset:{m*384+nt*64}")
            for nt in range(4, 6):
                a(f"ds_read_b32 v{base+16+nt-4}, v{vT+6} offset:{m*384+nt*64}")
        if "p" in self.opt: a("s_cmp_lt_u32 s32, 4\ns_cbranch_scc1 L_A_entry\ns_setprio 1")
        a("s_branch L_A_entry")
        a.fence()
        a("L_layer:")
        self.layer_offsets()
        vm.reset()
        a("s_barrier")
        self.stamp(1)
        self.xloads()
        q0 = list(vm.q)
        a("""
        s_and_b32 s53, s39, 1
        s_cmp_eq_u32 s53, 1
        s_cbranch_scc1 L_B
L_A_entry:
        """)
        self.phaseA()
        a("s_branch L_WO")
        a.fence()
        a("L_B:")
        vm.q = list(q0)
        self.phaseB()
        a.fence()
        a("L_WO:")
        vm.reset()
        self.phaseWo()
        a("L_km_end:\ns_endpgm")
        self.flush_outl()
        a("s_endpgm\nL_code_end:")

    def early_prefetch(self):
        self.dma_w("s66", 4, LDS_WO)
        self.touch("s67", 12)

    def xid_issue(self):
        self.a(f"""
        s_mov_b64 exec, 0xffff
        buffer_load_dword v{vPoll}, v{vL4}, s[4:7], s75 offen sc1
        s_mov_b64 exec, -1
        """)
        self.vm.issue("xid")
    def decide(self):
        a = self.a
        a(f"""
        s_cmp_lg_u32 s39, 0
        s_cbranch_scc1 L_nodec
        s_mov_b32 s56, 0
        s_mov_b64 exec, 0xffff
L_xid:
        v_cmp_eq_u32 vcc, 0, v{vPoll}
        s_cbranch_vccz L_xid_done
        s_add_u32 s56, s56, 1
        s_cmp_gt_u32 s56, 0x40000
        s_cbranch_scc1 L_xid_done
        buffer_load_dword v{vPoll}, v{vL4}, s[4:7], s75 offen sc1
        s_waitcnt vmcnt(0)
        s_branch L_xid
L_xid_done:
        v_cmp_ne_u32 vcc, s74, v{vPoll}
        s_mov_b64 exec, -1
        s_cmp_eq_u64 vcc, 0
        s_cselect_b32 s73, {0 if self.force_slow else 1}, 0
L_nodec:
        """)
    def arm(self):
        a = self.a; A = vW
        a(f"""
        s_cmp_lg_u32 s39, 0
        s_cbranch_scc1 L_noarm
        v_mov_b32 v{A}, -1
        v_mov_b32 v{A+1}, -1
        v_mov_b32 v{A+2}, -1
        v_mov_b32 v{A+3}, -1
        """)
        L = []
        for base, offs in (("s42", (0x200000, 0x400000, 0x600000)), ("s44", (0x200000, 0x400000))):
            for o in offs:
                L += [f"s_add_u32 s53, {base}, {o}", f"buffer_store_dwordx4 v[{A}:{A+3}], v{vL16}, s[4:7], s53 offen @"]
        L += ["s_mov_b64 exec, 0xffff"]
        for o in (0x40000, 0x80000):
            L += [f"s_add_u32 s53, s45, {o}", f"buffer_store_dwordx2 v[{A}:{A+1}], v{vL16}, s[4:7], s53 offen @"]
        L += ["s_mov_b64 exec, -1"]
        self.dstore(L)
        a("L_noarm:")

    def phaseA(self):
        a = self.a; vm = self.vm
        self.stamp(2)
        K0, K1, V0, V1, Q0, Q1 = [vAcc + 4*i for i in range(6)]
        self.streamloop([(2, K0, True), (3, K1, True), (4, V0, False), (5, V1, False)], "s40", "x", self.wq_addr,
                        ({2: lambda: (self.wo_early(), self.stats_inloop()), 3: self.touch_early} if "s" in self.opt else {0: self.st_loads, 2: self.wo_early, 3: lambda: (self.touch_early(), self.stats_inloop())}))
        self.prio_end(); self.stamp(3); self.cstamp(12)
        self.wo_late(); self.touch_late()
        PK = [vT+0, vT+4]
        VP = vT + 16
        self.featmap([K0, K1], [vCsA+8, vCsA+12], PK, vW,
                     extra=interleave(self.scaleN(V0, vCsA+16, VP), self.scaleN(V1, vCsA+17, VP+2)))
        self.fstamp(8)
        for i in range(4):
            d = vW + 4*i
            a(f"v_mfma_f32_16x16x16_bf16 v[{d}:{d+3}], v[{vT+2*i}:{vT+2*i+1}], v[{vId}:{vId+1}], 0")
        a(f"s_mul_i32 s53, s32, 3072\nv_add_u32 v{vTmp}, s53, v{vXch}")
        a(f"ds_write_b128 v{vTmp}, v[{VP}:{VP+3}] offset:2048")
        for i in range(4):
            d = vW + 4*i
            a(f"v_cvt_pk_bf16_f32 v{vT+8+2*i}, v{d}, v{d+1}")
            a(f"v_cvt_pk_bf16_f32 v{vT+9+2*i}, v{d+2}, v{d+3}")
        a(f"""
        ds_write_b128 v{vTmp}, v[{vT+8}:{vT+11}]
        ds_write_b128 v{vTmp}, v[{vT+12}:{vT+15}] offset:1024
        s_waitcnt lgkmcnt(0)
        """)
        self.fstamp(9)
        a("s_barrier")
        self.fstamp(10)
        a(f"""
        s_cmp_ge_u32 s32, 4
        s_cbranch_scc1 L_A_noatom
        s_lshr_b32 s53, s32, 1
        s_and_b32 s54, s32, 1
        s_lshl_b32 s55, s53, 10
        s_lshl_b32 s57, s54, 3
        s_add_u32 s55, s55, s57
        v_add_u32 v{vT}, s55, v{vXch}
        s_lshl_b32 s55, s53, 3
        s_add_u32 s55, s55, 2048
        v_add_u32 v{vT+1}, s55, v{vXch}          ; v addr
        """)
        for u in range(8):
            a(f"ds_read_b64 v[{vW+2*u}:{vW+2*u+1}], v{vT} offset:{u*3072}")
            a(f"ds_read_b64 v[{vW+16+2*u}:{vW+17+2*u}], v{vT+1} offset:{u*3072}")
        a(f"""
        s_lshl_b32 s57, s32, 14
        s_lshl_b32 s55, s30, 10
        s_add_u32 s57, s57, s55
        s_add_u32 s57, s57, s51
        s_lshl_b32 s58, s32, 6
        s_lshl_b32 s55, s30, 8
        s_add_u32 s58, s58, s55
        s_add_u32 s58, s58, s50
        """)
        KA = vW + 32; ZA = vW + 36
        for p in range(4):
            a(f"s_waitcnt lgkmcnt({12-4*p})")
            c = f"v[{KA}:{KA+3}]" if p else "0"; cz = f"v[{ZA}:{ZA+3}]" if p else "0"
            a(f"v_mfma_f32_16x16x32_bf16 v[{KA}:{KA+3}], v[{vW+4*p}:{vW+4*p+3}], v[{vW+16+4*p}:{vW+19+4*p}], {c}")
            a(f"v_mfma_f32_16x16x32_bf16 v[{ZA}:{ZA+3}], v[{vW+4*p}:{vW+4*p+3}], v[{vOnes}:{vOnes+3}], {cz}")
        a(f"""
        buffer_store_dwordx4 v[{KA}:{KA+3}], v{vL16}, s[4:7], s57 offen sc1
        s_mov_b32 s54, 0x00010001
        s_mov_b32 s55, 0x00010001
        s_mov_b64 exec, s[54:55]
        buffer_store_dwordx4 v[{ZA}:{ZA+3}], v{vRowB}, s[4:7], s58 offen sc1
        s_mov_b64 exec, -1
        """)
        a.fence()
        a("L_A_noatom:")
        self.stamp(4)
        self.xid_issue()
        self.mainloop([(0, Q0, True), (1, Q1, True)], 16, lambda ks: vX+4*ks, self.wq_addr)
        PQ = [vT+0, vT+4]
        self.fstamp(11)
        a("s_barrier")
        self.fstamp(12)
        a("s_mul_i32 s53, s32, 12288\ns_add_u32 s52, s67, s53")
        sp = []
        for g in range(3):
            for i in range(4):
                pre = "s_mov_b32 m0, s53\n" if i == 0 else ""
                post = "\ns_add_u32 s52, s52, 4096\ns_add_u32 s53, s53, 4096" if i == 3 else ""
                sp.append(pre + f"buffer_load_dwordx4 v{vL16}, s[4:7], s52 offen offset:{i*1024} lds" + post)
        a("s_lshl_b32 s57, s32, 13\ns_add_u32 s57, s57, s51")
        early = os.environ.get("KVAT")
        at = None
        if early:
            L = ["s_add_u32 s58, s57, 4096"]
            for p in range(8):
                L.append(f"buffer_load_dwordx4 v[{vX+4*p}:{vX+4*p+3}], v{vL16}, s[4:7], {'s57' if p < 4 else 's58'} offen offset:{(p&3)*1024} sc1")
            L.append("s_cmp_lg_u32 s32, 0\ns_cbranch_scc1 L_A_noz0")
            for i in range(4):
                L.append(f"buffer_load_dwordx4 v[{vX+32+4*i}:{vX+35+4*i}], v{vL16}, s[4:7], s50 offen offset:{i*1024} sc1")
            L.append("L_A_noz0:")
            at = (float(early), ["\n".join(L)])
        self.featmap_spread([Q0, Q1], [vCsA+0, vCsA+4], PQ, vW, [] if "d" in self.opt else sp, at)
        self.stamp(5)
        def kvl():
            a("s_add_u32 s58, s57, 4096")
            for p in range(8):
                a(f"buffer_load_dwordx4 v[{vX+4*p}:{vX+4*p+3}], v{vL16}, s[4:7], {'s57' if p < 4 else 's58'} offen offset:{(p&3)*1024} sc1")
        def zl():
            for i in range(4):
                a(f"buffer_load_dwordx4 v[{vX+32+4*i}:{vX+35+4*i}], v{vL16}, s[4:7], s50 offen offset:{i*1024} sc1")
        if not early:
            kvl()
            a("s_cmp_lg_u32 s32, 0\ns_cbranch_scc1 L_A_noz1")
            zl()
            a("L_A_noz1:")
        vm.wait_all()
        self.decide()
        self.check(vX, 32, kvl)
        self.fstamp(13)
        for st_ in (4, 2, 1):
            for p in range(st_):
                for r in range(4): a(f"v_add_f32 v{vX+4*p+r}, v{vX+4*p+r}, v{vX+4*(p+st_)+r}")
        a(f"s_lshl_b32 s53, s32, 10\nv_add_u32 v{vTmp}, s53, v{vXch}\nds_write_b128 v{vTmp}, v[{vX}:{vX+3}]")
        a("s_cmp_lg_u32 s32, 0\ns_cbranch_scc1 L_A_noz2")
        Z = vX + 32
        self.check(Z, 16, zl)
        for r in range(4): a(f"v_add_f32 v{Z+r}, v{Z+r}, v{Z+4+r}\nv_add_f32 v{Z+8+r}, v{Z+8+r}, v{Z+12+r}")
        for r in range(4): a(f"v_add_f32 v{Z+r}, v{Z+r}, v{Z+8+r}")
        for r in range(4): a(f"v_mfma_f32_16x16x4_f32 v[{Z+16+4*r}:{Z+19+4*r}], v{vOnef}, v{Z+r}, 0")
        a(f"""
        v_bfe_u32 v{Z+4}, v{vLane}, 3, 1
        v_lshlrev_b32 v{Z+4}, 6, v{Z+4}
        v_and_b32 v{Z+5}, 3, v{vLane}
        v_lshl_add_u32 v{Z+4}, v{Z+5}, 4, v{Z+4}
        v_bfe_u32 v{Z+5}, v{vLane}, 2, 1
        v_lshl_add_u32 v{Z+4}, v{Z+5}, 3, v{Z+4}
        v_add_u32 v{Z+4}, {XCH + 8192}, v{Z+4}
        v_cvt_pk_bf16_f32 v{Z+6}, v{Z+16}, v{Z+20}
        v_cvt_pk_bf16_f32 v{Z+7}, v{Z+24}, v{Z+28}
        s_mov_b64 exec, 0xffff
        ds_write_b64 v{Z+4}, v[{Z+6}:{Z+7}]
        s_mov_b64 exec, -1
L_A_noz2:
        s_waitcnt lgkmcnt(0)
        s_barrier
        """)
        self.stamp(6)
        for i in range(8): a(f"ds_read_b128 v[{vW+4*i}:{vW+4*i+3}], v{vXch} offset:{i*1024}")
        a(f"v_add_u32 v{vTmp}, {XCH + 8192}, v{vRowB}")
        for h in range(2): a(f"ds_read_b128 v[{vW+36+8*h}:{vW+39+8*h}], v{vTmp} offset:{h*64}")
        a("s_waitcnt lgkmcnt(2)")
        for b in range(4):
            for r in range(4): a(f"v_add_f32 v{vW+8*b+r}, v{vW+8*b+r}, v{vW+8*b+4+r}")
        for b in range(4):
            o = vW + 32 + 8*(b >> 1) + 2*(b & 1)
            a(f"v_cvt_pk_bf16_f32 v{o}, v{vW+8*b}, v{vW+8*b+1}\nv_cvt_pk_bf16_f32 v{o+1}, v{vW+8*b+2}, v{vW+8*b+3}")
        a("s_waitcnt lgkmcnt(0)")
        for h in range(2):
            o = vW + 32 + 8*h; d = vW + 8*h
            a(f"v_mfma_f32_16x16x32_bf16 v[{d}:{d+3}], v[{o}:{o+3}], v[{PQ[h]}:{PQ[h]+3}], 0")
            a(f"v_mfma_f32_16x16x32_bf16 v[{d+4}:{d+7}], v[{o+4}:{o+7}], v[{PQ[h]}:{PQ[h]+3}], 0")
        st = []
        for h in range(2):
            d = vW + 8*h; t = vW + 16 + 4*h
            s = [f"v_cvt_pk_bf16_f32 v{d+4}, v{d+4}, v{d+4}", f"v_lshlrev_b32 v{d+4}, 16, v{d+4}",
                 f"v_add_f32 v{d+4}, 0x358637bd, v{d+4}", f"v_cvt_pk_bf16_f32 v{d+4}, v{d+4}, v{d+4}",
                 f"v_lshlrev_b32 v{d+4}, 16, v{d+4}", f"v_rcp_f32 v{d+4}, v{d+4}"]
            s += self.round4(d, t)
            for r in range(4): s.append(f"v_mul_f32 v{d+r}, v{d+r}, v{d+4}")
            s += [f"v_cvt_pk_bf16_f32 v{vT+8+2*h}, v{d}, v{d+1}", f"v_cvt_pk_bf16_f32 v{vT+9+2*h}, v{d+2}, v{d+3}"]
            st.append(s)
        a("\n".join(interleave(*st)))
        self.dstore([f"buffer_store_dwordx4 v[{vT+8}:{vT+11}], v{vL16}, s[4:7], s42 offen @"])
        if "d" in self.opt: self.dma_w("s67", 12, 0)
        self.arm()

    def phaseB(self):
        a = self.a; vm = self.vm
        HP = XCH + 16384
        hM, hR = vT+6, vT+7
        HF = vW + 24
        def halo_x():
            for i in range(4):
                a(f"buffer_load_dwordx4 v[{vT+8+4*i}:{vT+11+4*i}], v{vT+1}, s[4:7], s54 offen offset:{i*1024} sc1")
        def halo_s():
            a(f"buffer_load_dwordx4 v[{vT+24}:{vT+27}], v{vT+2}, s[4:7], s55 offen sc1")
            a(f"buffer_load_dwordx4 v[{vT+28}:{vT+31}], v{vT+2}, s[4:7], s55 offen offset:256 sc1")
        a(f"""
        s_cmp_lt_u32 s32, 6
        s_cbranch_scc1 L_B_nohc
        s_lshr_b32 s53, s39, 1
        s_lshl_b32 s53, s53, 4
        s_add_u32 s53, s53, s30
        s_lshl_b32 s53, s53, 1
        s_add_u32 s53, s53, s32
        s_sub_u32 s53, s53, 6
        s_lshl_b32 s54, s53, 11
        s_add_u32 s54, s54, s64
        s_add_u32 s54, s54, {HST - 0x40000}
        s_lshl_b32 s53, s53, 14
        s_lshl_b32 s55, s31, 10
        s_add_u32 s53, s53, s55
        s_add_u32 s53, s53, {HXF}
        buffer_store_dwordx4 v[{vRes}:{vRes+3}], v{vL16}, s[4:7], s53 offen sc1
        s_mov_b64 exec, 0xffff
        buffer_store_dwordx2 v[4:5], v{vL16}, s[4:7], s54 offen sc1
        s_mov_b64 exec, -1
        s_branch L_B_hc2
L_B_nohc:
        s_mov_b64 exec, 1
        buffer_load_dword v{vDummy}, v{vL16}, s[4:7], s41 offen
        buffer_load_dword v{vDummy}, v{vL16}, s[4:7], s41 offen
        s_mov_b64 exec, -1
L_B_hc2:
        s_cmp_lt_u32 s32, 4
        s_cselect_b32 s69, s30, 0
        v_bfe_u32 v{vT}, v{vLane}, 3, 1
        v_lshlrev_b32 v{vT+1}, 14, v{vT}
        v_or_b32 v{vT+2}, 128, v{vL16}
        v_add_u32 v{vT+1}, v{vT+1}, v{vT+2}
        s_lshr_b32 s57, s39, 1
        s_lshl_b32 s57, s57, 4
        s_add_u32 s57, s57, s30
        s_sub_u32 s57, s57, 1
        s_lshl_b32 s54, s57, 15
        s_add_u32 s54, s54, {HXF}
        s_lshl_b32 s55, s32, 12
        s_add_u32 s54, s54, s55
        v_or_b32 v{vT+2}, 128, v{vSt}
        s_lshl_b32 s55, s57, 12
        s_lshl_b32 s57, s32, 11
        s_add_u32 s55, s55, s57
        s_add_u32 s55, s55, {HST}
        """)
        vm.issue("hc"); vm.issue("hc")
        self.stamp(2)
        K0, K1, V0, V1, Q0, Q1 = [vAcc + 4*i for i in range(6)]
        def f3():
            self.vm.wait("st1")
            self.check(vT+24, 8, lambda: self.st_loads(False))
            self.stats(vT+24, vM, vR, vT+8)
            self.stats_v(vM, vR)
        self.streamloop([(2, K0, True), (3, K1, True), (4, V0, False), (5, V1, False)], "s40", "x", self.wq_addr,
                        ({2: lambda: (self.wo_early(), f3()), 3: self.touch_early} if "s" in self.opt else {0: self.st_loads, 2: self.wo_early, 3: lambda: (self.touch_early(), f3())}))
        self.prio_end(); self.stamp(3); self.cstamp(12)
        a("s_cmp_eq_u32 s69, 0\ns_cbranch_scc1 L_B_nh4")
        halo_x()
        a("s_cmp_ge_u32 s32, 2\ns_cbranch_scc1 L_B_nh4")
        halo_s()
        a("L_B_nh4:")
        self.wo_late(); self.touch_late()
        nyoung = (0 if "w" in self.opt else 4) + (0 if "t" in self.opt else 2)
        KP = vT + 0 + 0;
        KP = vBK; VPk = vBK + 4; QP = vBK + 8
        a("\n".join(interleave(self.scaleT(K0, vCsB+8, KP), self.scaleT(K1, vCsB+12, KP+2),
                               self.scaleN(V0, vCsB+16, VPk), self.scaleN(V1, vCsB+17, VPk+2))))
        a(f"""
        s_lshl_b32 s53, s32, 11
        v_add_u32 v{vT}, s53, v{vXch}
        s_cmp_ge_u32 s32, 6
        s_cbranch_scc1 L_B_nowr
        ds_write_b128 v{vT}, v[{KP}:{KP+3}] offset:4096
        ds_write_b128 v{vT}, v[{VPk}:{VPk+3}] offset:5120
L_B_nowr:
        """)
        self.mainloop([(0, Q0, True), (1, Q1, True)], 16, lambda ks: vX+4*ks, self.wq_addr)
        a(f"""
        s_cmp_eq_u32 s69, 0
        s_cbranch_scc1 L_B_nh3
        s_mul_i32 s53, s32, 24576
        v_add_u32 v{vT+3}, s53, v{vL16}
        s_waitcnt vmcnt({nyoung})
        """)
        self.check(vT+8, 16, halo_x)
        self.mainloop([(2, K0, True), (3, K1, True), (4, V0, False), (5, V1, False)], 4, lambda ks: vT+8+4*ks, lambda ks, nt: (vT+3, (ks*6+nt)*1024))
        a(f"s_lshl_b32 s53, s32, 12\ns_add_u32 s53, s53, {HP-XCH}\nv_add_u32 v{vT+3}, s53, v{vXch}")
        for i in range(4): a(f"ds_write_b128 v{vT+3}, v[{K0+4*i}:{K0+4*i+3}] offset:{i*1024}")
        a("s_cmp_ge_u32 s32, 2\ns_cbranch_scc1 L_B_nh3")
        self.check(vT+24, 8, halo_s)
        self.stats(vT+24, hM, hR, vT+8)
        self.stats_v(hM, hR)
        a.fence()
        a("L_B_nh3:")
        self.stamp(4)
        a("\n".join(interleave(self.scaleT(Q0, vCsB+0, QP), self.scaleT(Q1, vCsB+4, QP+2))))
        S = [vW + 20, vW + 28]
        for h in range(2):
            a(f"v_mfma_f32_16x16x16_bf16 v[{S[h]}:{S[h]+3}], v[{KP+2*h}:{KP+2*h+1}], v[{QP+2*h}:{QP+2*h+1}], 0")
        KPp = vW + 12; VPp = vW + 16
        a(f"""
        s_waitcnt vmcnt(2) lgkmcnt(0)
        s_barrier
        s_cmp_lt_u32 s32, 2
        s_cbranch_scc1 L_B_rd01
        ds_read_b128 v[{KPp}:{KPp+3}], v{vT}
        ds_read_b128 v[{VPp}:{VPp+3}], v{vT} offset:1024
        s_waitcnt lgkmcnt(0)
        s_branch L_B_rdd
L_B_rd01:
        """)
        for r in range(8): a(f"v_mov_b32 v{KPp+r}, 0")
        a(f"""
        s_cmp_eq_u32 s30, 0
        s_cbranch_scc1 L_B_rdd
        v_and_b32 v{vT+1}, 0x370, v{vL16}
        s_lshl_b32 s53, s32, 7
        s_add_u32 s53, s53, {HP}
        v_add_u32 v{vT+1}, s53, v{vT+1}
        v_and_b32 v{vT+2}, 0x1f0, v{vL16}
        s_lshl_b32 s53, s32, 9
        s_add_u32 s53, s53, {HP}
        v_add_u32 v{vT+2}, s53, v{vT+2}
        """)
        for tl in range(4):
            for j in range(4):
                a(f"ds_read_b128 v[{vX+16*tl+4*j}:{vX+16*tl+4*j+3}], v{vT+1 if tl < 2 else vT+2} offset:{j*4096+tl*1024}")
        for tl in range(4):
            a(f"s_waitcnt lgkmcnt({12-4*tl})")
            b = vX + 16*tl
            for r in range(4): a(f"v_add_f32 v{b+r}, v{b+r}, v{b+4+r}\nv_add_f32 v{b+8+r}, v{b+8+r}, v{b+12+r}")
            for r in range(4): a(f"v_add_f32 v{b+r}, v{b+r}, v{b+8+r}")
        a("\n".join(interleave(self.scaleT(vX, vCsB+8, KPp, hM, hR), self.scaleT(vX+16, vCsB+12, KPp+2, hM, hR),
                               self.scaleN(vX+32, vCsB+16, VPp), self.scaleN(vX+48, vCsB+17, VPp+2))))
        a.fence()
        a("L_B_rdd:")
        self.stamp(5)
        for h in range(2):
            a(f"v_mfma_f32_16x16x16_bf16 v[{S[h]+4}:{S[h]+7}], v[{KPp+2*h}:{KPp+2*h+1}], v[{QP+2*h}:{QP+2*h+1}], 0")
        AV = [vT+0, vT+4]
        for h in range(2):
            a(f"v_mov_b32 v{AV[h]}, v{VPp+2*h}\nv_mov_b32 v{AV[h]+1}, v{VPp+2*h+1}\nv_mov_b32 v{AV[h]+2}, v{VPk+2*h}\nv_mov_b32 v{AV[h]+3}, v{VPk+2*h+1}")
        st = []
        for h in range(2):
            s_ = S[h]; t = vT + 8 + 8*h
            s = self.round4(s_, t) + self.round4(s_+4, t+2)
            for r in range(8): s.append(f"v_add_f32 v{s_+r}, v{s_+r}, v{vBias+r}")
            s += [f"v_max_f32 v{t}, v{s_}, v{s_+1}", f"v_max_f32 v{t+1}, v{s_+2}, v{s_+3}",
                  f"v_max_f32 v{t+2}, v{s_+4}, v{s_+5}", f"v_max_f32 v{t+3}, v{s_+6}, v{s_+7}",
                  f"v_max_f32 v{t}, v{t}, v{t+1}", f"v_max_f32 v{t+2}, v{t+2}, v{t+3}", f"v_max_f32 v{t}, v{t}, v{t+2}"]
            s += self.xlane(t, t+1)
            st.append(s)
        a("\n".join(interleave(*st)))
        a("s_waitcnt lgkmcnt(0)")
        st = []
        for h in range(2):
            s_ = S[h]; t = vT + 8 + 8*h
            s = [f"v_max_f32 v{t}, v{t}, v{t+1}", f"v_max_f32 v{t+2}, v{t+2}, v{t+3}", f"v_max_f32 v{t}, v{t}, v{t+2}",
                 f"v_mul_f32 v{t}, s61, v{t}"]
            for r in range(8): s.append(f"v_fma_f32 v{s_+r}, v{s_+r}, s61, -v{t}")
            for r in range(8): s.append(f"v_exp_f32 v{s_+r}, v{s_+r}")
            s += [f"v_add_f32 v{t}, v{s_}, v{s_+1}", f"v_add_f32 v{t+1}, v{s_+2}, v{s_+3}",
                  f"v_add_f32 v{t+2}, v{s_+4}, v{s_+5}", f"v_add_f32 v{t+3}, v{s_+6}, v{s_+7}",
                  f"v_add_f32 v{t}, v{t}, v{t+1}", f"v_add_f32 v{t+2}, v{t+2}, v{t+3}", f"v_add_f32 v{t}, v{t}, v{t+2}",
                  f"v_mfma_f32_16x16x4_f32 v[{t+4}:{t+7}], v{vOnef}, v{t}, 0"]
            st.append(s)
        a("\n".join(interleave(*st)))
        st = []
        for h in range(2):
            s_ = S[h]; t = vT + 8 + 8*h
            s = [f"v_rcp_f32 v{t+4}, v{t+4}"]
            for r in range(8): s.append(f"v_mul_f32 v{s_+r}, v{s_+r}, v{t+4}")
            s += [f"v_cvt_pk_bf16_f32 v{t}, v{s_+4}, v{s_+5}", f"v_cvt_pk_bf16_f32 v{t+1}, v{s_+6}, v{s_+7}",
                  f"v_cvt_pk_bf16_f32 v{t+2}, v{s_}, v{s_+1}", f"v_cvt_pk_bf16_f32 v{t+3}, v{s_+2}, v{s_+3}",
                  f"v_mfma_f32_16x16x32_bf16 v[{s_}:{s_+3}], v[{AV[h]}:{AV[h]+3}], v[{t}:{t+3}], 0"]
            st.append(s)
        a("\n".join(interleave(*st)))
        for h in range(2):
            a(f"v_cvt_pk_bf16_f32 v{vW+2*h}, v{S[h]}, v{S[h]+1}\nv_cvt_pk_bf16_f32 v{vW+2*h+1}, v{S[h]+2}, v{S[h]+3}")
        self.dstore([f"buffer_store_dwordx4 v[{vW}:{vW+3}], v{vL16}, s[4:7], s42 offen @"])
        a("s_cmp_eq_u32 s39, 3\ns_cbranch_scc1 L_B_nopf")
        self.dma_w("s67", 12, 0)
        a("L_B_nopf:")

    def phaseWo(self):
        a = self.a; vm = self.vm
        self.inwo = 1
        self.stamp(7); self.cstamp(13)
        if "h" in self.opt:
            L = self.lab("hw"); D = self.lab("hd")
            a(f"""
            s_mov_b32 s56, 0
            s_mov_b64 exec, 0xffff
{L}:
            buffer_load_dword v{vPoll}, v{vL1k}, s[4:7], s43 offen offset:1020 sc1
            s_add_u32 s56, s56, 1
            s_waitcnt vmcnt(0)
            v_cmp_eq_u32 vcc, -1, v{vPoll}
            s_cbranch_vccz {D}
            s_cmp_gt_u32 s56, 0x40000
            s_cbranch_scc1 {D}
            s_sleep 1
            s_branch {L}
{D}:
            s_mov_b64 exec, -1
            """)
        for g in range(self.ah): self.issue_group("s43", g, "o")
        T = [vAcc, vAcc+4]
        for p in range(4):
            a(f"v_lshlrev_b32 v{vT+2*p}, 16, v{vRes+p}\nv_and_b32 v{vT+1+2*p}, 0xffff0000, v{vRes+p}")
        self.streamloop([(i, T[i], True) for i in range(2)], "s43", "o", lambda ks, nt: (vLdsC, (ks*2+nt)*1024),
                        {0: lambda: self.stamp(8), 3: lambda: (self.touch("s68", 4) if "w" in self.opt else None)})
        self.prio_end(); self.stamp(9); self.cstamp(0)
        a("\n".join(interleave(self.round4(vAcc, vW), self.round4(vAcc+4, vW+2))))
        for r in range(8): a(f"v_add_f32 v{vAcc+r}, v{vAcc+r}, v{vT+r}")
        for p in range(4): a(f"v_cvt_pk_bf16_f32 v{vRes+p}, v{vAcc+2*p}, v{vAcc+2*p+1}")
        a("""
        s_cmp_eq_u32 s39, 3
        s_cbranch_scc1 L_final
        """)
        self.dstore([f"buffer_store_dwordx4 v[{vRes}:{vRes+3}], v{vL16}, s[4:7], s44 offen @"])
        a(f"v_dot2_f32_bf16 v{vW}, v{vRes}, v{vOnes}, 0\nv_dot2_f32_bf16 v{vW+1}, v{vRes}, v{vRes}, 0")
        for p in range(1, 4):
            a(f"v_dot2_f32_bf16 v{vW}, v{vRes+p}, v{vOnes}, v{vW}\nv_dot2_f32_bf16 v{vW+1}, v{vRes+p}, v{vRes+p}, v{vW+1}")
        a(f"""
        v_mfma_f32_16x16x4_f32 v[{vW+4}:{vW+7}], v{vOnef}, v{vW}, 0
        v_mfma_f32_16x16x4_f32 v[{vW+8}:{vW+11}], v{vOnef}, v{vW+1}, 0
        v_mov_b32 v{vW+5}, v{vW+8}
        s_mov_b64 exec, 0xffff
        """)
        self.dstore([f"buffer_store_dwordx2 v[{vW+4}:{vW+5}], v{vL16}, s[4:7], s45 offen @"])
        a(f"""
        s_mov_b64 exec, -1
        v_mov_b32 v4, v{vW+4}
        v_mov_b32 v5, v{vW+5}
        """)
        self.stamp(10)
        self.stamp(11)
        if self.stop is not None:
            a(f"s_cmp_eq_u32 s39, {self.stop}\ns_cbranch_scc1 L_km_end")
        a("""
        s_add_u32 s39, s39, 1
        s_branch L_layer
        """)
        a.fence()
        a(f"""
L_final:
        v_and_b32 v{vT}, 15, v{vLane}
        v_lshlrev_b32 v{vT}, 11, v{vT}
        v_lshrrev_b32 v{vT+1}, 1, v{vRowB}
        v_add_u32 v{vT}, v{vT}, v{vT+1}
        s_lshr_b32 s53, s33, 1
        s_lshl_b32 s53, s53, 5
        s_and_b32 s54, s33, 1
        s_add_u32 s53, s53, s54
        s_lshl_b32 s53, s53, 10
        s_lshl_b32 s54, s31, 6
        s_add_u32 s53, s53, s54
        buffer_store_dwordx2 v[{vRes}:{vRes+1}], v{vT}, s[8:11], s53 offen
        buffer_store_dwordx2 v[{vRes+2}:{vRes+3}], v{vT}, s[8:11], s53 offen offset:32
        """)
        self.stamp(10)
        self.stamp_dump()

def build(path, stop=None, mode=None):
    from gen_k0 import gen_k0
    a = Asm()
    a.raw("; @launch kernel=prep_kernel grid=(256,1,1) block=(256,1,1) lds=0")
    a.raw("; @launch kernel=main_kernel grid=(256,1,1) block=(512,1,1) lds=163840")
    a.raw('.amdgcn_target "amdgcn-amd-amdhsa--gfx950"\n.text')
    gen_k0(a)
    a.hist = []
    km = KM(a, stop); km.prof = (mode in ("prof", "gprof", "aprof")); km.ast = (mode == "aprof"); km.gst = (mode == "gprof"); km.opt = os.environ.get("OPT", ""); km.ah = int(os.environ.get("AH", "2")); km.pg = int(os.environ.get("PG", "2")); km.wo_mod = os.environ.get("WO_MOD", ""); km.force_slow = (mode == "slow"); km.gen("main_kernel")
    a.raw('.section .rodata,"a"')
    a.raw(kernel_desc("prep_kernel", 112))
    a.raw(kernel_desc("main_kernel", 256))
    open(path, "w").write(a.text())
    return a

if __name__ == "__main__":
    stop = int(sys.argv[2]) if len(sys.argv) > 2 and sys.argv[2] != "-" else None
    a = build(sys.argv[1] if len(sys.argv) > 1 else "km7.s", stop, sys.argv[3] if len(sys.argv) > 3 else None)
    print("nops inserted", a.nnop, "lines", len(a.lines))
```
